```python
import torch

def _softmax(x, axis=-1):
    return torch.softmax(x, dim=axis)
def _gelu(x):
    return torch.nn.functional.gelu(x, approximate="tanh")
def _silu(x):
    return torch.nn.functional.silu(x)
def _sigmoid(x):
    return torch.sigmoid(x)
def _layernorm(x, axis=-1, eps=1e-5):
    m = x.mean(dim=axis, keepdim=True)
    v = x.var(dim=axis, keepdim=True, unbiased=False)
    return (x - m) / torch.sqrt(v + eps)
def _scatter_add(tgt, idx, src, axis=0):
    return tgt.clone().index_add_(axis, idx, src)
def _segment_sum(src, seg, n):
    out = torch.zeros((n,) + src.shape[1:], dtype=src.dtype)
    return out.index_add_(0, seg, src)
def _pad(x, pw):
    flat = tuple(v for pair in reversed(pw) for v in pair)
    return torch.nn.functional.pad(x, flat)

kernel_name = 'sequential_preLN__sliding_block_cached__glu_gated_reglu__decode'

def setup_inputs():

    _w = (lambda a: (lambda t: t.to(torch.bfloat16) if t.is_floating_point() else t)(torch.as_tensor(a)))
    def _A_setup():
        B, Sq, D = 1, 1, 512
        Hq, Hkv, Sk, Dh = 32, 8, 32768, 128
        assert Hq % Hkv == 0, (Hq, Hkv)
        return {
            "x": _w((lambda *s: torch.randn(*s, dtype=torch.bfloat16) * 0.05)(B, Sq, D)),
            "k_cache": _w((lambda *s: torch.randn(*s, dtype=torch.bfloat16) * 1.6)(B, Hkv, Sk, Dh)),
            "v_cache": _w((lambda *s: torch.randn(*s, dtype=torch.bfloat16) * 0.8)(B, Hkv, Sk, Dh)),
            "wq": _w((lambda *s: torch.randn(*s, dtype=torch.bfloat16) * 1.6)(D, Hq * Dh) * (D ** -0.5)),
            "wo": _w((lambda *s: torch.randn(*s, dtype=torch.bfloat16) * 0.8)(Hq * Dh, D) * ((Hq * Dh) ** -0.5)),
        }
    _A_in = _A_setup()

    def _B_setup():
        B, S, D, F = 1, 1, 512, 1792
        return {
            "x": _w((lambda *s: torch.randn(*s, dtype=torch.bfloat16) * 0.05)(B, S, D)),
            "W_gate": _w((lambda *s: torch.randn(*s, dtype=torch.bfloat16) * 0.4)(D, F) * (2.0 / D) ** 0.5),
            "W_up": _w((lambda *s: torch.randn(*s, dtype=torch.bfloat16) * 0.4)(D, F) * (2.0 / D) ** 0.5),
            "W_down": _w((lambda *s: torch.randn(*s, dtype=torch.bfloat16) * 0.4)(F, D) * (1.0 / F) ** 0.5),
        }
    _B_in = _B_setup()

    return {
        "A_x": _A_in["x"],
        "A_k_cache": _A_in["k_cache"],
        "A_v_cache": _A_in["v_cache"],
        "A_wq": _A_in["wq"],
        "A_wo": _A_in["wo"],
        "B_x": _B_in["x"],
        "B_W_gate": _B_in["W_gate"],
        "B_W_up": _B_in["W_up"],
        "B_W_down": _B_in["W_down"],
    }

def reference(A_x, A_k_cache, A_v_cache, A_wq, A_wo, B_x, B_W_gate, B_W_up, B_W_down):
    def _A_ref(x, k_cache, v_cache, wq, wo):
        B, Sq, D = x.shape
        Hq, Dh = 32, 128
        Hkv, Sk = k_cache.shape[1], k_cache.shape[2]
        W = min(4096, max(256, Sk // 4))
        rep = Hq // Hkv
        q = (lambda x, *d: x.permute(*d))((x @ wq).reshape(B, Sq, Hq, Dh), 0, 2, 1, 3)
        k = (lambda x, n, axis: torch.repeat_interleave(x, n, dim=axis))(k_cache[:, :, Sk - W:, :], rep, axis=1)
        v = (lambda x, n, axis: torch.repeat_interleave(x, n, dim=axis))(v_cache[:, :, Sk - W:, :], rep, axis=1)
        scores = torch.einsum("bhqd,bhkd->bhqk", q, k) * (Dh ** -0.5)
        p = _softmax(scores, axis=-1)
        o = torch.einsum("bhqk,bhkd->bhqd", p, v)
        return (lambda x, *d: x.permute(*d))(o, 0, 2, 1, 3).reshape(B, Sq, Hq * Dh) @ wo

    def _B_ref(x, W_gate, W_up, W_down):
        gate = torch.einsum("bsd,df->bsf", x, W_gate)
        up = torch.einsum("bsd,df->bsf", x, W_up)
        gate = gate * (lambda x, dt: x.to(dt))(gate > 0, gate.dtype)
        h = gate * up
        return torch.einsum("bsf,fd->bsd", h, W_down)

    x = A_x
    h = x + _A_ref(_layernorm(x, axis=-1), A_k_cache, A_v_cache, A_wq, A_wo)
    h2 = h + _B_ref(_layernorm(h, axis=-1), B_W_gate, B_W_up, B_W_down)
    return h2
```

```python
import re

_REG = re.compile(r'(?<![\w.])([vsa])(\d+)(?![\w])|(?<![\w.])([vsa])\[(\d+):(\d+)\]|(?<![\w.])(vcc|exec|m0|scc)(?:_lo|_hi)?(?![\w])')

def regs_of(tok):
    out = set()
    for m in _REG.finditer(tok):
        if m.group(1):
            out.add((m.group(1), int(m.group(2))))
        elif m.group(3):
            for i in range(int(m.group(4)), int(m.group(5)) + 1):
                out.add((m.group(3), i))
        else:
            out.add((m.group(6), 0))
    return out

TRANS = ('v_exp_', 'v_log_', 'v_rcp_', 'v_rsq_', 'v_sqrt_', 'v_sin_', 'v_cos_')

class Ins:
    def __init__(self, text):
        self.text = text
        t = text.split(';')[0].strip()
        self.mn = t.split()[0] if t else ''
        rest = t[len(self.mn):].strip()
        ops, depth, cur = [], 0, ''
        for ch in rest:
            if ch == '[': depth += 1
            if ch == ']': depth -= 1
            if ch == ',' and depth == 0:
                ops.append(cur.strip()); cur = ''
            else:
                cur += ch
        if cur.strip(): ops.append(cur.strip())
        self.mods = ''
        if ops:
            parts = ops[-1].split(None, 1)
            if len(parts) == 2:
                ops[-1] = parts[0]; self.mods = parts[1]
        self.ops = ops
        mn = self.mn
        self.is_mfma = mn.startswith('v_mfma')
        self.is_valu = mn.startswith('v_') and not self.is_mfma
        self.is_salu = mn.startswith('s_') and not mn.startswith(('s_load', 's_buffer', 's_memtime', 's_memrealtime', 's_atomic', 's_waitcnt', 's_nop', 's_barrier', 's_branch', 's_cbranch', 's_endpgm', 's_sleep', 's_setprio'))
        self.is_smem = mn.startswith(('s_load', 's_buffer', 's_memtime', 's_memrealtime', 's_atomic'))
        self.is_ds = mn.startswith('ds_')
        self.is_vmem = mn.startswith(('buffer_', 'global_', 'flat_'))
        self.is_dpp = '_dpp' in mn or 'row_' in self.mods or 'quad_perm' in self.mods
        self.is_perml = mn.startswith('v_permlane')
        self.is_trans = mn.startswith(TRANS)
        self.is_dot = mn.startswith('v_dot')
        self.is_rdlane = mn.startswith(('v_readlane', 'v_readfirstlane'))
        self.is_wrlane = mn.startswith('v_writelane')
        self.is_ldsdma = (self.is_vmem and (' lds' in (' ' + self.mods) or 'load_lds' in mn))
        self.is_store = self.is_vmem and ('store' in mn or 'atomic' in mn)
        D, S = set(), set()
        o = [regs_of(x) for x in ops]
        self.o = o
        if self.is_mfma:
            D = o[0]; S = o[1] | o[2] | o[3]
            self.srcC = o[3]; self.srcAB = o[1] | o[2]
            self.passes = 8 if '32x32' in mn else 4
        elif self.is_valu:
            if self.is_perml:
                D = o[0] | o[1]; S = o[0] | o[1]
            elif mn.startswith(('v_add_co', 'v_sub_co', 'v_addc_co', 'v_subb_co', 'v_mad_u64')):
                D = o[0] | o[1]; S = set().union(*o[2:])
            elif mn.startswith('v_nop'):
                pass
            else:
                D = o[0]; S = set().union(*o[1:]) if len(o) > 1 else set()
                if mn.startswith(('v_fmac', 'v_dot2c', 'v_writelane', 'v_pk_fmac')) or self.is_dpp:
                    S |= o[0]
                if mn.startswith('v_cndmask') and len(ops) == 3: S.add(('vcc', 0))
                if mn.startswith('v_cmp') and not any(r[0] in ('s', 'vcc') for r in o[0]):
                    raise ValueError(text)
        elif self.is_ds:
            if mn.startswith(('ds_read', 'ds_bpermute', 'ds_permute', 'ds_swizzle')) or '_rtn' in mn:
                D = o[0]; S = set().union(*o[1:])
            else:
                S = set().union(*o)
        elif self.is_vmem:
            if self.is_store or self.is_ldsdma:
                S = set().union(*o)
            else:
                D = o[0]; S = set().union(*o[1:])
                if 'd16' in mn: S |= o[0]
        elif self.is_smem:
            D = o[0]; S = set().union(*o[1:]) if len(o) > 1 else set()
        elif self.is_salu:
            if mn.startswith(('s_cmp', 's_bitcmp', 's_setreg')):
                S = set().union(*o)
            else:
                D = o[0]; S = set().union(*o[1:]) if len(o) > 1 else set()
                if 'saveexec' in mn: D = D | {('exec', 0)}
        self.D, self.S = D, S
        self.wide_store_data = set()
        if self.is_store and ('x4' in mn or 'x3' in mn):
            self.wide_store_data = o[0] if mn.startswith('buffer_') else o[1]
        self.states = 1
        if mn == 's_nop':
            self.states = int(ops[0], 0) + 1

def need(p, c):
    n = 0
    vD = {r for r in p.D if r[0] in 'va'}
    sD = {r for r in p.D if r[0] in ('s', 'vcc')}
    if p.is_valu:
        if vD & c.S:
            if c.is_dpp and c.is_valu: n = max(n, 2)
            if c.is_perml: n = max(n, 2)
            if c.is_mfma: n = max(n, 2)
            if c.is_rdlane: n = max(n, 1)
            if p.is_trans and c.is_valu and not c.is_trans: n = max(n, 1)
            if p.is_trans and (c.is_vmem or c.is_ds or c.is_mfma): n = max(n, 2)
        if p.is_dot and (vD & (c.S | c.D)):
            same = c.mn == p.mn
            if same:
                ab = set().union(*c.o[1:3])
                if vD & ab: n = max(n, 3)
            else:
                n = max(n, 3)
        if sD & c.S:
            if c.is_valu:
                n = max(n, 2)
                if (c.is_rdlane or c.is_wrlane) and len(c.o) > 2 and (sD & c.o[2]): n = max(n, 4)
            if c.is_vmem: n = max(n, 5)
            if c.is_salu or c.is_smem: n = max(n, 1)
    if p.is_mfma:
        big = {4: 8, 8: 12}[p.passes]
        if c.is_mfma:
            if p.D & c.srcAB: n = max(n, big)
            if p.D & c.srcC:
                if c.srcC == p.D and c.passes == p.passes: pass
                else: n = max(n, {4: 6, 8: 10}[p.passes])
            elif p.D & c.D: n = max(n, big)
        else:
            if p.D & (c.S | c.D): n = max(n, big)
            if c.is_valu and (p.srcC & c.D): n = max(n, {4: 3, 8: 7}[p.passes])
    if p.is_salu and ('m0', 0) in p.D and (c.is_ldsdma): n = max(n, 1)
    if p.wide_store_data and (p.wide_store_data & c.D):
        n = max(n, 2)
    return n

class Asm:
    def __init__(self):
        self.lines = []
        self.hist = []
    def raw(self, s):
        self.lines.append(s)
    def label(self, name):
        self.lines.append(name + ':')
    def __call__(self, text):
        for t in text.strip().split('\n'):
            t = t.strip()
            if not t: continue
            if t.startswith(';') or t.startswith('.'):
                self.lines.append('    ' + t); continue
            if t.endswith(':'):
                self.label(t[:-1]); continue
            c = Ins(t)
            req = 0; dist = 0
            for p in reversed(self.hist):
                r = need(p, c) - dist
                req = max(req, r)
                dist += p.states
                if dist > 24: break
            while req > 0:
                k = min(req, 16)
                nop = Ins('s_nop %d' % (k - 1))
                self.lines.append('    ' + nop.text); self.hist.append(nop)
                req -= k
            self.lines.append('    ' + t)
            self.hist.append(c)
            if len(self.hist) > 64: self.hist = self.hist[-40:]
    def flush_hazards(self, n=12):
        self('s_nop %d' % (n - 1))
    def text(self):
        return '\n'.join(self.lines) + '\n'
```

```python
import sys
from asmlib import Asm

NAME = 'sequential_preLN__sliding_block_cached__glu_gated_reglu__decode'
STAMPS = '--stamps' in sys.argv
NOFAST = '--nofast' in sys.argv
OUT = [a for a in sys.argv[1:] if not a.startswith('--')]
OUT = OUT[0] if OUT else 'cdna_kernels/%s.s' % NAME

WS_EPOCH = 0
WS_ML = 0x8000
WS_E1 = 0x10000; E1_K = 4352; E1_G = 4 * E1_K; E1_FS = 0x24000
WS_CS = 0x60000
WS_E4 = 0x80000; E4_FS = 0x40000
WS_E2 = 0x100000; E2_FS = 0x100000
WS_E3 = 0x300000
WS_E5 = 0x400000; E5_S = 4352
WS_ST = 0x500000
WS_SIZE = 0x600000
L_V = 0; L_K = 32768; L_W = 65536
L_Q = 98304; L_P = L_Q + 1024; L_M = L_P + 1024
L_QACC = L_M
L_MAX = L_M + 2048
L_LS = L_MAX + 128
L_R1 = L_LS + 128
L_R2 = L_R1 + 512
L_ACC = L_R2 + 512
LDS_BYTES = L_ACC + 256

LOG2E = 0x3fb8aa3b; SCALE = 0x3db504f3; EPS = 0x3727c5ac; INV512 = 0x3b000000; ONES = 0x3f803f80
SPIN = 1 << 16

a = Asm(); A = a
sW, sG, sR = 's3', 's4', 's5'
sTAG = 's[6:7]'; sTA, sTB = 's6', 's7'
sMSK = 's[8:9]'
sSELLO, sSELHI = 's12', 's13'
sCNT = 's14'; sONE = 's15'
SRD_WS = 's[16:19]'; SRD_OUT = 's[20:23]'
sA, sB, sC, sD = 's24', 's25', 's26', 's27'
sKV = 's28'; sJ = 's29'; sSTEP = 's30'; sIDX = 's31'; sRB = 's32'; sM0 = 's33'
sXT = 's34'
sROLE = 's35'
SRD_X, SRD_WQ, SRD_K, SRD_V, SRD_W2 = 36, 40, 44, 48, 52
pWO, pWG, pWU = 56, 60, 62
sO4 = 's58'; sE = 's59'
def srd(n): return 's[%d:%d]' % (n, n + 3)

class V:
    n = 0
    @classmethod
    def alloc(cls, k=1, align=1):
        cls.n = (cls.n + align - 1) // align * align
        r = cls.n; cls.n += k
        return r
def v(r, k=1):
    return 'v%d' % r if k == 1 else 'v[%d:%d]' % (r, r + k - 1)

vTID = V.alloc(); vL = V.alloc(); vSTAMP = V.alloc()
vWv = V.alloc(); vPI = V.alloc(); vL15 = V.alloc(); vROW = V.alloc(); vRG8 = V.alloc(); vCC = V.alloc()
vT = [V.alloc() for _ in range(11)]
vXF = V.alloc(4, 4)
vWQa = V.alloc(4, 4); vWQb = V.alloc(4, 4)
vK = V.alloc(16, 4)
vW1 = V.alloc(16, 4); vW2 = V.alloc(8, 4)
vW1p = V.alloc(16, 4); vW2p = V.alloc(8, 4)
vY = V.alloc(8, 4)
vFB = V.alloc(16, 4); vFA = V.alloc(16, 4)
vACC = V.alloc(4, 4)
vG = V.alloc(4, 4); vG2 = V.alloc(4, 4)
vP0 = V.alloc(8, 4); vP1 = V.alloc(8, 4)
vXR = V.alloc(2, 2)
vOFF = [V.alloc() for _ in range(8)]
vPF = V.alloc(4, 4)
vCS = V.alloc(4, 4)
vA4 = V.alloc(4, 4)
vWA = V.alloc(2, 2)
vX4 = V.alloc(2, 2)
NVGPR = V.n

def stamp(i):
    if STAMPS: A('s_memrealtime s[%d:%d]' % (64 + 2 * i, 65 + 2 * i))
lab = [0]
def newlab(p='L'):
    lab[0] += 1
    return '%s%d' % (p, lab[0])
def wait_vm(n, extra0=0):
    if extra0 == 0:
        A('s_waitcnt vmcnt(%d)' % n); return
    l = newlab('W')
    A('s_cmp_eq_u32 %s, 0' % sW)
    A('s_waitcnt vmcnt(%d)' % (n + extra0))
    A('s_cbranch_scc1 %s' % l)
    A('s_waitcnt vmcnt(%d)' % n)
    A('%s:' % l)
def dpp(d, s, mod, op='add'):
    A('v_%s_f32_dpp %s, %s, %s %s row_mask:0xf bank_mask:0xf' % (op, v(d), v(s), v(s), mod))
def dpp_add(d, ror, op='add'): dpp(d, d, 'row_ror:%d' % ror, op)
def reduce8(y):
    for i in range(4): A('v_permlane32_swap_b32 %s, %s' % (v(y + i), v(y + 4 + i)))
    for i in range(4): A('v_add_f32 %s, %s, %s' % (v(y + i), v(y + i), v(y + 4 + i)))
    for i in range(2): A('v_permlane16_swap_b32 %s, %s' % (v(y + i), v(y + 2 + i)))
    for i in range(2): A('v_add_f32 %s, %s, %s' % (v(y + i), v(y + i), v(y + 2 + i)))
def allred_rows(x, t, op='add', which=(16, 32)):
    for wdt in which:
        A('v_mov_b32 %s, %s' % (v(t), v(x)))
        A('v_permlane%d_swap_b32 %s, %s' % (wdt, v(x), v(t)))
        A('v_%s_f32 %s, %s, %s' % (op, v(x), v(x), v(t)))
def bf16r(d, s):
    A('v_cvt_pk_bf16_f32 %s, %s, %s' % (v(d), v(s), v(s)))
    A('v_and_b32 %s, 0xffff0000, %s' % (v(d), v(d)))
def ln_stats(vsum, vsq, vm, vr, t):
    A('v_mul_f32 %s, 0x%x, %s' % (v(vsum), INV512, v(vsum)))
    A('v_mul_f32 %s, 0x%x, %s' % (v(vsq), INV512, v(vsq)))
    A('v_fma_f32 %s, -%s, %s, %s' % (v(vsq), v(vsum), v(vsum), v(vsq)))
    A('v_max_f32 %s, 0, %s' % (v(vsq), v(vsq)))
    A('v_cvt_pk_bf16_f32 %s, %s, %s' % (v(t), v(vsum), v(vsq)))
    A('v_lshlrev_b32 %s, 16, %s' % (v(vm), v(t)))
    A('v_and_b32 %s, 0xffff0000, %s' % (v(vr), v(t)))
    A('v_add_f32 %s, 0x%x, %s' % (v(vr), EPS, v(vr)))
    bf16r(vr, vr)
    A('v_sqrt_f32 %s, %s' % (v(vr), v(vr)))
    bf16r(vr, vr)
    A('v_rcp_f32 %s, %s' % (v(vr), v(vr)))
def perm_pairs(dst, ra, rb, n):
    for j in range(n):
        A('v_perm_b32 %s, %s, %s, %s' % (v(dst + 2 * j), v(rb + j), v(ra + j), sSELLO))
        A('v_perm_b32 %s, %s, %s, %s' % (v(dst + 2 * j + 1), v(rb + j), v(ra + j), sSELHI))
FULL = (1 << 64) - 1
def set_exec(mask):
    lo, hi = mask & 0xffffffff, mask >> 32
    if mask == FULL: A('s_mov_b64 exec, -1')
    elif hi == 0 and lo <= 64: A('s_mov_b64 exec, %d' % lo)
    else:
        A('s_mov_b32 exec_lo, 0x%x' % lo); A('s_mov_b32 exec_hi, 0x%x' % hi)
def tagcheck(grans, xcc=False):
    t, u = vT[10], vT[9]
    for i, gq in enumerate(grans):
        if i == 0:
            A('v_xor_b32 %s, %s, %s' % (v(t), sTA, v(gq + 2)))
            A('v_xor_b32 %s, %s, %s' % (v(u), sTB, v(gq + 3)))
            if xcc: A('v_and_b32 %s, -16, %s' % (v(u), v(u)))
            A('v_or_b32 %s, %s, %s' % (v(t), v(t), v(u)))
        else:
            A('v_xor_b32 %s, %s, %s' % (v(u), sTA, v(gq + 2)))
            A('v_xor_b32 %s, %s, %s' % (v(vT[8]), sTB, v(gq + 3)))
            A('v_or3_b32 %s, %s, %s, %s' % (v(t), v(t), v(u), v(vT[8])))
    A('v_cmp_ne_u32 vcc, 0, %s' % v(t))
def poll(loads, grans, first_in_flight=False, xcc=False, each=None):
    top = newlab('P'); done = newlab('D'); chk = newlab('C')
    A('s_mov_b32 %s, %d' % (sCNT, SPIN))
    if first_in_flight: A('s_branch %s' % chk)
    A('%s:' % top)
    if each: each()
    for l in loads: A(l)
    A('%s:' % chk)
    A('s_waitcnt vmcnt(0)')
    tagcheck(grans, xcc)
    A('s_sub_u32 %s, %s, 1' % (sCNT, sCNT))
    A('s_cbranch_scc1 %s' % done)
    A('s_cbranch_vccnz %s' % top)
    A('%s:' % done)
def ldws(dst, voff, soff, imm=0):
    return 'buffer_load_dwordx4 %s, %s, %s, %s offen%s sc1' % (v(dst, 4), v(voff), SRD_WS, soff, (' offset:%d' % imm) if imm else '')
def stws(src, voff, soff, sc1=True):
    A('buffer_store_dwordx4 %s, %s, %s, %s offen%s' % (v(src, 4), v(voff), SRD_WS, soff, ' sc1' if sc1 else ''))
def st_dual(src, voff, sfast, sslow):
    stws(src, voff, sfast, False); stws(src, voff, sslow, True)
def red8both(x):
    A('v_permlane32_swap_b32 %s, %s' % (v(x), v(x + 1)))
    A('v_add_f32 %s, %s, %s' % (v(x), v(x), v(x + 1)))
    allred_rows(x, x + 1, 'add', (16,))
    dpp(x + 1, x, 'row_ror:8'); dpp(x, x, 'row_ror:8')
    A('v_permlane32_swap_b32 %s, %s' % (v(x), v(x + 1)))
def red8(x):
    A('v_permlane32_swap_b32 %s, %s' % (v(x), v(x + 1)))
    A('v_add_f32 %s, %s, %s' % (v(x), v(x), v(x + 1)))
    allred_rows(x, x + 1, 'add', (16,))
    dpp_add(x, 8)
def resid(dst, x, base, t0, t1):
    A('v_cvt_pk_bf16_f32 %s, %s, %s' % (v(t0), v(x), v(x + 1)))
    A('v_lshlrev_b32 %s, 16, %s' % (v(x), v(t0)))
    A('v_and_b32 %s, 0xffff0000, %s' % (v(x + 1), v(t0)))
    A('v_lshlrev_b32 %s, 16, %s' % (v(t0), v(base)))
    A('v_and_b32 %s, 0xffff0000, %s' % (v(t1), v(base)))
    A('v_add_f32 %s, %s, %s' % (v(x), v(x), v(t0)))
    A('v_add_f32 %s, %s, %s' % (v(x + 1), v(x + 1), v(t1)))
    A('v_cvt_pk_bf16_f32 %s, %s, %s' % (v(dst), v(x), v(x + 1)))
def gemv16(lo, hi):
    for e in range(8): A('v_dot2_f32_bf16 %s, %s, %s, 0' % (v(vY + e), v(vW1p + e), lo))
    for e in range(8): A('v_dot2_f32_bf16 %s, %s, %s, %s' % (v(vY + e), v(vW1p + 8 + e), hi, v(vY + e)))

head = []
for l in open('cdna_kernels/%s.s.ref' % NAME).read().split('\n'):
    if not l.startswith(';'): break
    head.append('; @launch grid=(256,1,1) block=(512,1,1) lds=%d' % LDS_BYTES if l.startswith('; @launch') else l)
a.raw('\n'.join(head))
a.raw('.amdgcn_target "amdgcn-amd-amdhsa--gfx950"\n.text\n.globl %s_kernel\n.p2align 8\n.type %s_kernel,@function\n%s_kernel:' % (NAME, NAME, NAME))

oX, oXR, oWQ, oK, oV, oW2, oTR, oFR = vOFF
A('s_cmp_ge_u32 s2, 256')
A('s_cbranch_scc1 L_END')
A('s_load_dwordx2 s[%d:%d], s[0:1], 24' % (SRD_WQ, SRD_WQ + 1))
A('s_load_dwordx2 s[%d:%d], s[0:1], 0' % (SRD_X, SRD_X + 1))
A('s_load_dwordx2 s[16:17], s[0:1], 88')
A('s_load_dwordx2 s[%d:%d], s[0:1], 8' % (SRD_K, SRD_K + 1))
A('s_load_dwordx2 s[%d:%d], s[0:1], 16' % (SRD_V, SRD_V + 1))
if STAMPS:
    for i in range(16): A('s_mov_b64 s[%d:%d], 0' % (64 + 2 * i, 65 + 2 * i))
stamp(0)
A('v_lshrrev_b32 %s, 3, v0' % v(vT[0]))
A('v_and_b32 %s, 7, v0' % v(vCC))
A('s_and_b32 %s, s2, 7' % sG)
A('s_lshr_b32 %s, s2, 3' % sR)
A('v_lshlrev_b32 %s, 14, %s' % (v(oWQ), v(vT[0])))
A('v_lshl_or_b32 %s, %s, 4, %s' % (v(oWQ), v(vCC), v(oWQ)))
A('s_and_b32 %s, %s, 3' % (sRB, sR))
A('s_lshl_b32 %s, %s, 20' % (sA, sRB))
A('s_lshl_b32 %s, %s, 10' % (sC, sG))
A('s_add_u32 %s, %s, %s' % (sA, sA, sC))
A('s_lshr_b32 %s, %s, 2' % (sE, sR))
A('s_lshl_b32 %s, %s, 7' % (sC, sE))
A('s_add_u32 %s, %s, %s' % (sA, sA, sC))
A('s_add_u32 %s, %s, 8192' % (sB, sA))
A('s_mov_b32 s%d, 0x400000' % (SRD_WQ + 2)); A('s_mov_b32 s%d, 0x20000' % (SRD_WQ + 3))
A('s_mov_b32 s%d, 1024' % (SRD_X + 2)); A('s_mov_b32 s%d, 0x20000' % (SRD_X + 3))
A('v_and_b32 %s, 63, v0' % v(vL))
A('v_lshlrev_b32 %s, 4, %s' % (v(oX), v(vL)))
A('v_lshlrev_b32 %s, 2, %s' % (v(oXR), v(vT[0])))
A('s_lshl_b32 %s, %s, 8' % (sD, sRB))
A('v_lshrrev_b32 %s, 6, v0' % v(vWv))
A('v_and_b32 %s, 15, %s' % (v(vL15), v(vL)))
A('v_readfirstlane_b32 %s, %s' % (sW, v(vWv)))
A('v_lshrrev_b32 %s, 4, %s' % (v(vROW), v(vL)))
A('s_lshl_b32 %s, %s, 23' % (sKV, sG))
A('s_lshl_b32 %s, %s, 15' % (sC, sR))
A('s_add_u32 %s, %s, %s' % (sKV, sKV, sC))
A('s_add_u32 %s, %s, 0x700000' % (sKV, sKV))
A('v_lshl_add_u32 %s, %s, 4, %s' % (v(oK), v(vWv), v(vROW)))
A('v_lshlrev_b32 %s, 8, %s' % (v(oK), v(oK)))
A('v_xor_b32 %s, %s, %s' % (v(vT[1]), v(vL15), v(vROW)))
A('v_lshl_or_b32 %s, %s, 4, %s' % (v(oK), v(vT[1]), v(oK)))
A('s_mov_b32 s%d, 0x4000000' % (SRD_K + 2)); A('s_mov_b32 s%d, 0x20000' % (SRD_K + 3))
A('s_lshl_b32 %s, %s, 12' % (sM0, sW))
A('s_add_u32 %s, %s, %d' % (sM0, sM0, L_K))
A('s_mov_b32 m0, %s' % sM0)
A('s_waitcnt lgkmcnt(0)')
stamp(1)
A('buffer_load_dwordx4 %s, %s, %s, 0 offen' % (v(vXF, 4), v(oX), srd(SRD_X)))
A('buffer_load_dword %s, %s, %s, %s offen' % (v(vXR), v(oXR), srd(SRD_X), sD))
A('buffer_load_dwordx4 %s, %s, %s, %s offen nt' % (v(vWQa, 4), v(oWQ), srd(SRD_WQ), sA))
A('buffer_load_dwordx4 %s, %s, %s, %s offen nt' % (v(vWQb, 4), v(oWQ), srd(SRD_WQ), sB))
A('s_load_dwordx2 %s, s[16:17], %d' % (sTAG, WS_EPOCH))
A('s_barrier')
for i in range(4):
    if i: A('v_xor_b32 %s, 0x%x, %s' % (v(vT[1]), 64 * i, v(oK)))
    A('buffer_load_dwordx4 %s, %s, %s offen offset:%d nt lds' % (v(vT[1] if i else oK), srd(SRD_K), sKV, 1024 * i))
A('s_getpc_b64 s[10:11]')
A('L_PC:')
A('s_sub_u32 s10, s10, L_PC-%s_kernel' % NAME)
A('s_subb_u32 s11, s11, 0')
A('v_lshlrev_b32 %s, 4, v0' % v(vT[1]))
A('global_load_dwordx4 %s, %s, s[10:11]' % (v(vPF, 4), v(vT[1])))
A('s_load_dwordx2 s[%d:%d], s[0:1], 32' % (pWO, pWO + 1))
A('s_load_dwordx4 s[%d:%d], s[0:1], 48' % (pWG, pWG + 3))
A('s_load_dwordx2 s[%d:%d], s[0:1], 64' % (SRD_W2, SRD_W2 + 1))
A('s_load_dwordx2 s[20:21], s[0:1], 72')
A('v_lshl_add_u32 %s, %s, 2, %s' % (v(oV), v(vWv), v(vROW)))
A('v_lshlrev_b32 %s, 8, %s' % (v(oV), v(oV)))
A('v_and_b32 %s, 2, %s' % (v(vT[1]), v(vWv)))
A('v_lshl_or_b32 %s, %s, 1, %s' % (v(vT[1]), v(vT[1]), v(vROW)))
A('v_lshlrev_b32 %s, 1, %s' % (v(vT[1]), v(vT[1])))
A('v_xor_b32 %s, %s, %s' % (v(vT[1]), v(vT[1]), v(vL15)))
A('v_lshl_or_b32 %s, %s, 4, %s' % (v(oV), v(vT[1]), v(oV)))
A('s_mov_b32 s%d, 0x4000000' % (SRD_V + 2)); A('s_mov_b32 s%d, 0x20000' % (SRD_V + 3))
A('s_lshl_b32 %s, %s, 10' % (sM0, sW))
A('s_barrier')
def vdma():
    A('s_mov_b32 m0, %s' % sM0)
    A('buffer_load_dwordx4 %s, %s, %s offen nt lds' % (v(oV), srd(SRD_V), sKV))
    A('s_add_u32 %s, %s, 8192' % (sM0, sM0))
    A('s_add_u32 %s, %s, 8192' % (sKV, sKV))
vdma()
A('s_mov_b32 %s, 0x05040100' % sSELLO)
A('s_mov_b32 %s, 0x07060302' % sSELHI)
A('s_mov_b32 %s, 0x%x' % (sONE, ONES))
A('s_mov_b32 s18, 0x%x' % WS_SIZE); A('s_mov_b32 s19, 0x20000')
A('s_mov_b32 s22, 1024'); A('s_mov_b32 s23, 0x20000')
A('s_mov_b32 s%d, 0x1c0000' % (SRD_W2 + 2)); A('s_mov_b32 s%d, 0x20000' % (SRD_W2 + 3))
A('v_lshrrev_b32 %s, 3, %s' % (v(vRG8), v(vL)))
A('v_and_b32 %s, 1, %s' % (v(vPI), v(vL)))
A('s_getreg_b32 %s, hwreg(HW_REG_XCC_ID)' % sXT)
A('s_lshl_b32 %s, %s, 5' % (sJ, sG))
A('s_add_u32 %s, %s, %s' % (sJ, sJ, sR))
A('v_lshlrev_b32 %s, 5, %s' % (v(vT[5]), v(vCC)))
A('v_lshl_or_b32 %s, %s, 3, %s' % (v(vT[5]), v(vROW), v(vT[5])))
A('v_lshl_or_b32 %s, %s, 8, %s' % (v(vT[5]), v(vWv), v(vT[5])))
A('v_add_u32 %s, 0x%x, %s' % (v(vT[5]), L_QACC, v(vT[5])))
A('v_and_b32 %s, 31, %s' % (v(vT[6]), v(vL)))
A('v_lshlrev_b32 %s, 3, %s' % (v(vT[6]), v(vT[6])))
A('v_lshrrev_b32 %s, 5, %s' % (v(vT[7]), v(vL)))
A('v_lshl_or_b32 %s, %s, 10, %s' % (v(vT[6]), v(vT[7]), v(vT[6])))
A('v_add_u32 %s, 0x%x, %s' % (v(vT[6]), L_QACC, v(vT[6])))
A('s_mul_i32 %s, %s, %d' % (sA, sG, E1_G))
A('s_add_u32 %s, %s, 0x%x' % (sA, sA, WS_E1))
A('s_mul_i32 %s, %s, %d' % (sB, sRB, E1_K))
A('s_lshl_b32 %s, %s, 9' % (sC, sE))
A('s_add_u32 %s, %s, %s' % (sB, sB, sC))
A('s_add_u32 %s, %s, %s' % (sB, sB, sA))
A('s_add_u32 %s, %s, 0x%x' % (sC, sB, E1_FS))
A('s_waitcnt vmcnt(9)')
stamp(2)
s0, s1, m_, r_, t_ = vT[0], vT[1], vT[2], vT[3], vT[4]
A('v_dot2_f32_bf16 %s, %s, %s, 0' % (v(s0), v(vXF), sONE))
A('v_dot2_f32_bf16 %s, %s, %s, 0' % (v(s1), v(vXF), v(vXF)))
for j in range(1, 4):
    A('v_dot2_f32_bf16 %s, %s, %s, %s' % (v(s0), v(vXF + j), sONE, v(s0)))
    A('v_dot2_f32_bf16 %s, %s, %s, %s' % (v(s1), v(vXF + j), v(vXF + j), v(s1)))
A('v_permlane32_swap_b32 %s, %s' % (v(s0), v(s1)))
A('v_add_f32 %s, %s, %s' % (v(s0), v(s0), v(s1)))
allred_rows(s0, s1, 'add', (16,))
for ror in (8, 4, 2): dpp_add(s0, ror)
dpp(s1, s0, 'row_ror:1'); dpp(s0, s0, 'row_ror:1')
A('v_permlane32_swap_b32 %s, %s' % (v(s0), v(s1)))
ln_stats(s0, s1, m_, r_, t_)
A('s_waitcnt vmcnt(8)')
A('v_lshlrev_b32 %s, 16, %s' % (v(s0), v(vXR)))
A('v_and_b32 %s, 0xffff0000, %s' % (v(s1), v(vXR)))
A('v_sub_f32 %s, %s, %s' % (v(s0), v(s0), v(m_)))
A('v_sub_f32 %s, %s, %s' % (v(s1), v(s1), v(m_)))
A('v_cvt_pk_bf16_f32 %s, %s, %s' % (v(t_), v(s0), v(s1)))
A('v_lshlrev_b32 %s, 16, %s' % (v(s0), v(t_)))
A('v_and_b32 %s, 0xffff0000, %s' % (v(s1), v(t_)))
A('v_mul_f32 %s, %s, %s' % (v(s0), v(s0), v(r_)))
A('v_mul_f32 %s, %s, %s' % (v(s1), v(s1), v(r_)))
A('v_cvt_pk_bf16_f32 %s, %s, %s' % (v(vXR), v(s0), v(s1)))
A('s_waitcnt vmcnt(6)')
stamp(3)
perm_pairs(vFA, vWQa, vWQb, 4)
for e in range(8): A('v_dot2_f32_bf16 %s, %s, %s, 0' % (v(vY + e), v(vFA + e), v(vXR)))
reduce8(vY)
dpp_add(vY, 8); dpp_add(vY + 1, 8)
A('ds_write_b64 %s, %s' % (v(vT[5]), v(vY, 2)))
vdma()
A('s_waitcnt lgkmcnt(0)')
A('s_add_u32 %s, %s, 1' % (sTA, sTA))
A('s_andn2_b32 %s, %s, 15' % (sTB, sTB))
A('s_and_b32 %s, %s, 15' % (sXT, sXT))
A('s_or_b32 %s, %s, %s' % (sXT, sXT, sTB))
A('s_barrier')
A('v_mov_b32 %s, %s' % (v(vG + 2), sTA))
A('v_mov_b32 %s, %s' % (v(vG + 3), sTB))
A('s_cmp_lg_u32 %s, 0' % sW)
A('s_cbranch_scc1 L_NOPUB1')
for i in range(4): A('ds_read_b64 %s, %s offset:%d' % (v(vY + 2 * i, 2), v(vT[6]), 256 * i))
A('s_waitcnt lgkmcnt(0)')
A('v_pk_add_f32 %s, %s, %s' % (v(vY, 2), v(vY, 2), v(vY + 2, 2)))
A('v_pk_add_f32 %s, %s, %s' % (v(vY + 4, 2), v(vY + 4, 2), v(vY + 6, 2)))
A('v_pk_add_f32 %s, %s, %s' % (v(vG, 2), v(vY, 2), v(vY + 4, 2)))
allred_rows(vG, vY, 'add', (32,)); allred_rows(vG + 1, vY + 1, 'add', (32,))
set_exec(0xffffffff)
st_dual(vG, oX, sB, sC)
set_exec(FULL)
A('L_NOPUB1:')
stamp(4)
A('v_bfe_u32 %s, %s, 2, 2' % (v(vT[1]), v(vL)))
A('v_bfe_u32 %s, %s, 4, 1' % (v(vT[2]), v(vL)))
A('v_lshl_or_b32 %s, %s, 2, %s' % (v(vT[2]), v(vT[2]), v(vT[1])))
A('v_xor_b32 %s, %s, %s' % (v(vT[2]), v(vT[2]), v(vWv)))
A('v_lshlrev_b32 %s, 5, %s' % (v(vT[2]), v(vT[2])))
A('v_and_b32 %s, 3, %s' % (v(vT[3]), v(vL)))
A('v_lshl_or_b32 %s, %s, 3, %s' % (v(vT[2]), v(vT[3]), v(vT[2])))
A('v_lshl_or_b32 %s, %s, 8, %s' % (v(vT[2]), v(vT[1]), v(vT[2])))
A('v_lshl_or_b32 %s, %s, 11, %s' % (v(oTR), v(vROW), v(vT[2])))
A('v_lshlrev_b32 %s, 8, %s' % (v(oFR), v(vT[3])))
A('v_lshl_or_b32 %s, %s, 4, %s' % (v(oFR), v(vROW), v(oFR)))
A('v_add_u32 %s, 0x%x, %s' % (v(oFR), L_Q, v(oFR)))
A('v_lshlrev_b32 %s, 1, %s' % (v(vT[0]), v(vWv)))
A('v_xor_b32 %s, %s, %s' % (v(vT[0]), v(vT[0]), v(vL15)))
A('v_lshl_add_u32 %s, %s, 2, %s' % (v(vT[1]), v(vWv), v(vROW)))
A('v_lshlrev_b32 %s, 7, %s' % (v(oW2), v(vWv)))
A('v_lshl_or_b32 %s, %s, 4, %s' % (v(oW2), v(vCC), v(oW2)))
A('v_lshl_or_b32 %s, %s, 11, %s' % (v(oW2), v(vRG8), v(oW2)))
A('s_cmp_ge_u32 %s, 16' % sR)
A('s_cbranch_scc1 L_AD_G')
A('s_mov_b32 %s, 0' % sROLE)
A('s_lshl_b32 %s, %s, 2' % (sC, sG))
A('s_add_u32 %s, %s, %s' % (sIDX, sE, sC))
A('s_lshl_b32 %s, %s, 17' % (sC, sIDX))
A('s_lshl_b32 %s, %s, 8' % (sD, sRB))
A('s_add_u32 %s, %s, %s' % (sC, sC, sD))
A('s_add_u32 s10, s%d, %s' % (pWO, sC))
A('s_addc_u32 s11, s%d, 0' % (pWO + 1))
A('v_lshlrev_b32 %s, 10, %s' % (v(vT[1]), v(vT[1])))
A('v_lshl_or_b32 %s, %s, 4, %s' % (v(vT[1]), v(vT[0]), v(vT[1])))
A('v_mov_b32 %s, s11' % v(vWA + 1))
A('v_add_co_u32 %s, vcc, s10, %s' % (v(vWA), v(vT[1])))
A('v_addc_co_u32 %s, vcc, 0, %s, vcc' % (v(vWA + 1), v(vWA + 1)))
A('s_mov_b32 %s, 32768' % sSTEP)
A('s_branch L_AD_GO')
A('L_AD_G:')
A('s_sub_u32 %s, %s, 4' % (sD, sE))
A('s_lshl_b32 %s, %s, 2' % (sC, sG))
A('s_mul_i32 %s, %s, 3' % (sIDX, sG))
A('s_add_u32 %s, %s, 4' % (sIDX, sIDX))
A('s_min_u32 %s, %s, %s' % (sC, sC, sIDX))
A('s_add_u32 %s, %s, %s' % (sC, sC, sD))
A('s_lshr_b32 %s, %s, 2' % (sROLE, sG))
A('s_add_u32 %s, %s, %s' % (sROLE, sROLE, sD))
A('s_cmp_eq_u32 %s, 4' % sROLE)
A('s_cselect_b32 %s, 2, 1' % sROLE)
A('s_min_u32 %s, %s, 27' % (sC, sC))
A('s_lshl_b32 %s, %s, 2' % (sIDX, sC))
A('s_add_u32 %s, %s, %s' % (sIDX, sIDX, sRB))
A('s_mul_i32 %s, %s, %d' % (sD, sRB, 128 * 3584))
A('s_lshl_b32 %s, %s, 7' % (sC, sC))
A('s_add_u32 %s, %s, %s' % (sC, sC, sD))
A('v_mul_u32_u24 %s, 3584, %s' % (v(vT[1]), v(vT[1])))
A('v_and_b32 %s, 7, %s' % (v(vT[2]), v(vT[0])))
A('v_lshl_or_b32 %s, %s, 4, %s' % (v(vT[1]), v(vT[2]), v(vT[1])))
A('v_add_u32 %s, %s, %s' % (v(vT[1]), sC, v(vT[1])))
A('v_cmp_lt_u32 vcc, 7, %s' % v(vT[0]))
A('v_mov_b32 %s, s%d' % (v(vT[2]), pWG))
A('v_mov_b32 %s, s%d' % (v(vT[3]), pWU))
A('v_cndmask_b32 %s, %s, %s, vcc' % (v(vWA), v(vT[2]), v(vT[3])))
A('v_mov_b32 %s, s%d' % (v(vT[2]), pWG + 1))
A('v_mov_b32 %s, s%d' % (v(vT[3]), pWU + 1))
A('v_cndmask_b32 %s, %s, %s, vcc' % (v(vWA + 1), v(vT[2]), v(vT[3])))
A('v_add_co_u32 %s, vcc, %s, %s' % (v(vWA), v(vWA), v(vT[1])))
A('v_addc_co_u32 %s, vcc, 0, %s, vcc' % (v(vWA + 1), v(vWA + 1)))
A('s_mov_b32 %s, %d' % (sSTEP, 32 * 3584))
A('L_AD_GO:')
A('s_lshl_b32 %s, %s, 14' % (sO4, sIDX))
A('v_lshrrev_b32 %s, 1, v0' % v(vT[0]))
A('v_lshlrev_b32 %s, 4, %s' % (v(vT[0]), v(vT[0])))
A('v_mul_u32_u24 %s, %d, %s' % (v(vT[1]), 2 * E1_K, v(vPI)))
A('v_add_u32 %s, %s, %s' % (v(vT[0]), v(vT[0]), v(vT[1])))
if NOFAST: A('s_add_u32 %s, %s, 0x%x' % (sA, sA, E1_FS))
A('s_add_u32 %s, %s, %d' % (sB, sA, E1_K))
A('v_and_b32 %s, 0x1fe, v0' % v(vT[1]))
A('v_lshlrev_b32 %s, 1, %s' % (v(vT[1]), v(vT[1])))
A('v_add_u32 %s, 0x%x, %s' % (v(vT[1]), L_Q, v(vT[1])))
A('v_lshl_add_u32 %s, %s, 4, %s' % (v(vT[2]), v(vWv), v(vL15)))
A('v_lshlrev_b32 %s, 8, %s' % (v(vT[2]), v(vT[2])))
A('v_xor_b32 %s, %s, %s' % (v(vT[3]), v(vROW), v(vL15)))
A('v_lshl_or_b32 %s, %s, 4, %s' % (v(vT[2]), v(vT[3]), v(vT[2])))
wait_vm(3, 2)
stamp(5)
A(ldws(vP0, vT[0], sA)); A(ldws(vP0 + 4, vT[0], sB))
vdma()
for j in range(4):
    if j: A('v_xor_b32 %s, 0x%x, %s' % (v(vT[3]), 64 * j, v(vT[2])))
    A('ds_read_b128 %s, %s offset:%d' % (v(vK + 4 * j, 4), v(vT[3] if j else vT[2]), L_K))
wait_vm(4, 2)
A(ldws(vP1, vT[0], sA)); A(ldws(vP1 + 4, vT[0], sB))
vdma()
A('s_waitcnt vmcnt(4)')
tagcheck([vP0, vP0 + 4])
A('s_cbranch_vccz L_E1_OK')
A('s_waitcnt vmcnt(1)')
tagcheck([vP1, vP1 + 4])
for i in (0, 1, 4, 5): A('v_mov_b32 %s, %s' % (v(vP0 + i), v(vP1 + i)))
A('s_cbranch_vccz L_E1_OK')
stamp(15)
A('s_mov_b32 %s, 0x%x' % (sC, (-E1_FS if NOFAST else E1_FS) & 0xffffffff))
def flip():
    A('s_add_u32 %s, %s, %s' % (sA, sA, sC))
    A('s_add_u32 %s, %s, %s' % (sB, sB, sC))
    A('s_sub_u32 %s, 0, %s' % (sC, sC))
poll([ldws(vP0, vT[0], sA), ldws(vP0 + 4, vT[0], sB)], [vP0, vP0 + 4], each=flip)
A('L_E1_OK:')
A('v_add_f32 %s, %s, %s' % (v(vP0), v(vP0), v(vP0 + 4)))
A('v_add_f32 %s, %s, %s' % (v(vP0 + 1), v(vP0 + 1), v(vP0 + 5)))
dpp(vP0, vP0, 'quad_perm:[1,0,3,2]'); dpp(vP0 + 1, vP0 + 1, 'quad_perm:[1,0,3,2]')
A('v_cvt_pk_bf16_f32 %s, %s, %s' % (v(vP0), v(vP0), v(vP0 + 1)))
A('ds_write_b32 %s, %s' % (v(vT[1]), v(vP0)))
A('s_lshl_b32 %s, %s, 10' % (sM0, sW))
A('s_add_u32 %s, %s, %d' % (sM0, sM0, L_W))
A('s_cmp_eq_u32 %s, 2' % sROLE)
A('s_cbranch_scc1 L_T_SKIP')
for i in range(4):
    A('s_mov_b32 m0, %s' % sM0)
    A('global_load_lds_dwordx4 %s, off nt' % v(vWA, 2))
    if i < 3:
        A('v_add_co_u32 %s, vcc, %s, %s' % (v(vWA), sSTEP, v(vWA)))
        A('s_add_u32 %s, %s, 8192' % (sM0, sM0))
        A('v_addc_co_u32 %s, vcc, 0, %s, vcc' % (v(vWA + 1), v(vWA + 1)))
A('s_branch L_T_DONE')
A('L_T_SKIP:')
for i in range(4): A('buffer_load_dword %s, %s, %s, 0 offen' % (v(vPF + i), v(oXR), srd(SRD_X)))
A('L_T_DONE:')
A('s_waitcnt lgkmcnt(0)')
A('s_barrier')
stamp(6)
for j in range(4): A('ds_read_b128 %s, %s offset:%d' % (v(vFB + 4 * j, 4), v(oFR), 64 * j))
A('s_mov_b32 %s, 0x%x' % (sB, LOG2E))
A('v_and_b32 %s, 3, %s' % (v(vT[6]), v(vL)))
A('v_lshlrev_b32 %s, 5, %s' % (v(vT[7]), v(vT[6])))
A('v_add_u32 %s, 0x%x, %s' % (v(vT[7]), L_MAX, v(vT[7])))
A('v_lshl_add_u32 %s, %s, 2, %s' % (v(vT[3]), v(vWv), v(vT[7])))
for j in range(4):
    A('s_waitcnt lgkmcnt(%d)' % (3 - j))
    A('v_mfma_f32_16x16x32_bf16 %s, %s, %s, %s' % (v(vACC, 4), v(vK + 4 * j, 4), v(vFB + 4 * j, 4), '0' if j == 0 else v(vACC, 4)))
A('v_lshlrev_b32 %s, 8, %s' % (v(vT[8]), v(vT[6])))
A('v_lshl_or_b32 %s, %s, 5, %s' % (v(vT[8]), v(vWv), v(vT[8])))
A('v_lshl_or_b32 %s, %s, 3, %s' % (v(vT[8]), v(vROW), v(vT[8])))
A('v_add_u32 %s, 0x%x, %s' % (v(vT[8]), L_P, v(vT[8])))
S = vY
for h in range(2): A('v_cvt_pk_bf16_f32 %s, %s, %s' % (v(vT[4 + h]), v(vACC + 2 * h), v(vACC + 2 * h + 1)))
for h in range(2):
    A('v_lshlrev_b32 %s, 16, %s' % (v(S + 2 * h), v(vT[4 + h])))
    A('v_and_b32 %s, 0xffff0000, %s' % (v(S + 2 * h + 1), v(vT[4 + h])))
for i in range(4): A('v_mul_f32 %s, 0x%x, %s' % (v(S + i), SCALE, v(S + i)))
for h in range(2): A('v_cvt_pk_bf16_f32 %s, %s, %s' % (v(vT[4 + h]), v(S + 2 * h), v(S + 2 * h + 1)))
for h in range(2):
    A('v_lshlrev_b32 %s, 16, %s' % (v(S + 2 * h), v(vT[4 + h])))
    A('v_and_b32 %s, 0xffff0000, %s' % (v(S + 2 * h + 1), v(vT[4 + h])))
A('v_max3_f32 %s, %s, %s, %s' % (v(vT[4]), v(S), v(S + 1), v(S + 2)))
A('v_max_f32 %s, %s, %s' % (v(vT[4]), v(vT[4]), v(S + 3)))
allred_rows(vT[4], vT[5], 'max')
A('ds_write_b32 %s, %s' % (v(vT[3]), v(vT[4])))
A('s_waitcnt lgkmcnt(0)')
A('s_barrier')
A('ds_read_b128 %s, %s' % (v(vFA, 4), v(vT[7])))
A('ds_read_b128 %s, %s offset:16' % (v(vFA + 4, 4), v(vT[7])))
A('s_waitcnt lgkmcnt(0)')
A('v_max3_f32 %s, %s, %s, %s' % (v(vT[4]), v(vFA), v(vFA + 1), v(vFA + 2)))
A('v_max3_f32 %s, %s, %s, %s' % (v(vT[5]), v(vFA + 3), v(vFA + 4), v(vFA + 5)))
A('v_max3_f32 %s, %s, %s, %s' % (v(vT[4]), v(vT[4]), v(vFA + 6), v(vFA + 7)))
A('v_max_f32 %s, %s, %s' % (v(vG2), v(vT[4]), v(vT[5])))
A('v_mul_f32 %s, %s, %s' % (v(vT[5]), sB, v(vG2)))
for i in range(4): A('v_fma_f32 %s, %s, %s, -%s' % (v(S + i), v(S + i), sB, v(vT[5])))
for i in range(4): A('v_exp_f32 %s, %s' % (v(S + i), v(S + i)))
A('v_add_f32 %s, %s, %s' % (v(vT[4]), v(S), v(S + 1)))
A('v_add_f32 %s, %s, %s' % (v(vT[5]), v(S + 2), v(S + 3)))
A('v_cvt_pk_bf16_f32 %s, %s, %s' % (v(S + 4), v(S), v(S + 1)))
A('v_cvt_pk_bf16_f32 %s, %s, %s' % (v(S + 5), v(S + 2), v(S + 3)))
A('v_add_f32 %s, %s, %s' % (v(vT[4]), v(vT[4]), v(vT[5])))
A('ds_write_b64 %s, %s' % (v(vT[8]), v(S + 4, 2)))
allred_rows(vT[4], vT[5], 'add')
A('ds_write_b32 %s, %s offset:128' % (v(vT[3]), v(vT[4])))
A('s_waitcnt lgkmcnt(0)')
A('s_barrier')
stamp(7)
def trread(b):
    A('ds_read_b64_tr_b16 %s, %s offset:%d' % (v(vFA + 4 * b, 2), v(oTR), L_V + 8192 * b))
    A('ds_read_b64_tr_b16 %s, %s offset:%d' % (v(vFA + 4 * b + 2, 2), v(oTR), L_V + 8192 * b + 1024))
def pvm(b):
    A('v_mfma_f32_16x16x32_bf16 %s, %s, %s, %s' % (v(vACC, 4), v(vFA + 4 * b, 4), v(vFB + 4 * b, 4), '0' if b == 0 else v(vACC, 4)))
for b in range(4): A('ds_read_b128 %s, %s offset:%d' % (v(vFB + 4 * b, 4), v(oFR), 1024 + 64 * b))
trread(0); trread(1)
A('s_cmp_lg_u32 %s, 0' % sW)
A('s_cbranch_scc1 L_NOPUB2')
A('ds_read_b128 %s, %s offset:128' % (v(vY, 4), v(vT[7])))
A('ds_read_b128 %s, %s offset:144' % (v(vY + 4, 4), v(vT[7])))
A('s_lshl_b32 %s, %s, 11' % (sB, sG))
A('s_lshl_b32 %s, %s, 4' % (sC, sR))
A('s_add_u32 %s, %s, %s' % (sB, sB, sC))
A('s_add_u32 %s, %s, 0x%x' % (sB, sB, WS_ML))
A('v_lshlrev_b32 %s, 9, %s' % (v(vT[4]), v(vL)))
A('v_mov_b32 %s, %s' % (v(vG2 + 2), sTA))
A('v_mov_b32 %s, %s' % (v(vG2 + 3), sXT))
A('s_waitcnt lgkmcnt(0)')
A('v_pk_add_f32 %s, %s, %s' % (v(vY, 2), v(vY, 2), v(vY + 2, 2)))
A('v_pk_add_f32 %s, %s, %s' % (v(vY + 4, 2), v(vY + 4, 2), v(vY + 6, 2)))
A('v_pk_add_f32 %s, %s, %s' % (v(vY, 2), v(vY, 2), v(vY + 4, 2)))
A('v_add_f32 %s, %s, %s' % (v(vG2 + 1), v(vY), v(vY + 1)))
set_exec(0xf)
stws(vG2, vT[4], sB)
set_exec(FULL)
A('L_NOPUB2:')
A('v_lshlrev_b32 %s, 10, %s' % (v(vT[8]), v(vT[6])))
A('v_lshl_or_b32 %s, %s, 7, %s' % (v(vT[8]), v(vWv), v(vT[8])))
A('v_lshl_or_b32 %s, %s, 5, %s' % (v(vT[8]), v(vROW), v(vT[8])))
A('v_and_b32 %s, 4, %s' % (v(vT[9]), v(vL)))
A('v_lshl_or_b32 %s, %s, 2, %s' % (v(vT[8]), v(vT[9]), v(vT[8])))
A('v_cmp_ne_u32 %s, 0, %s' % (sMSK, v(vT[9])))
A('s_lshl_b32 %s, %s, 12' % (sB, sJ))
A('s_add_u32 %s, %s, 0x%x' % (sB, sB, WS_E2))
A('s_add_u32 %s, %s, 0x%x' % (sC, sB, E2_FS))
A('s_waitcnt lgkmcnt(0)')
pvm(0); pvm(1)
wait_vm(7, 1)
A('s_barrier')
trread(2)
wait_vm(4, 1)
A('s_barrier')
trread(3)
A('s_waitcnt lgkmcnt(2)'); pvm(2)
A('s_waitcnt lgkmcnt(0)'); pvm(3)
set_exec(0x00ff00ff00ff00ff)
A('v_cndmask_b32 %s, %s, %s, %s' % (v(vG), v(vACC), v(vACC + 2), sMSK))
A('v_cndmask_b32 %s, %s, %s, %s' % (v(vG + 1), v(vACC + 1), v(vACC + 3), sMSK))
st_dual(vG, vT[8], sB, sC)
set_exec(FULL)
stamp(8)
A('s_cmp_eq_u32 %s, 2' % sROLE)
A('s_cbranch_scc1 L_FIN')
A('s_and_b32 %s, %s, 1' % (sC, sW))
A('s_lshl_b32 %s, %s, 2' % (sC, sC))
A('s_lshr_b32 %s, %s, 1' % (sD, sW))
A('s_or_b32 %s, %s, %s' % (sC, sC, sD))
A('s_cmp_eq_u32 %s, 1' % sROLE)
A('s_cselect_b32 %s, %s, %s' % (sC, sC, sW))
A('s_cbranch_scc1 L_G_PRE')
A('s_lshl_b32 %s, %s, 9' % (sE, sIDX))
A('s_add_u32 %s, %s, 0x%x' % (sE, sE, WS_ML))
A('v_and_b32 %s, 31, %s' % (v(vT[5]), v(vL)))
A('v_lshlrev_b32 %s, 4, %s' % (v(vT[5]), v(vT[5])))
A(ldws(vFA, vT[5], sE))
A('s_branch L_PRE_GO')
A('L_G_PRE:')
A('buffer_load_dwordx4 %s, %s, %s, %s offen nt' % (v(vW2, 4), v(oW2), srd(SRD_W2), sO4))
A('buffer_load_dwordx4 %s, %s, %s, %s offen offset:1024 nt' % (v(vW2 + 4, 4), v(oW2), srd(SRD_W2), sO4))
A('L_PRE_GO:')
A('v_lshrrev_b32 %s, 1, %s' % (v(vT[0]), v(vL)))
A('v_and_b32 %s, 7, %s' % (v(vT[6]), v(vT[0])))
A('v_xor_b32 %s, %s, %s' % (v(vT[1]), sC, v(vT[6])))
A('v_lshl_or_b32 %s, %s, 1, %s' % (v(vT[1]), v(vT[1]), v(vPI)))
A('v_lshlrev_b32 %s, 4, %s' % (v(vT[1]), v(vT[1])))
A('v_lshl_or_b32 %s, %s, 10, %s' % (v(vT[1]), v(vT[0]), v(vT[1])))
A('v_add_u32 %s, 0x%x, %s' % (v(vT[1]), L_W, v(vT[1])))
A('v_lshlrev_b32 %s, 3, %s' % (v(vT[2]), v(vT[0])))
A('v_add_u32 %s, 0x%x, %s' % (v(vT[2]), L_ACC, v(vT[2])))
A('v_lshlrev_b32 %s, 5, %s' % (v(vT[3]), v(vWv)))
A('v_lshl_or_b32 %s, %s, 2, %s' % (v(vT[3]), v(vCC), v(vT[3])))
A('v_add_u32 %s, 0x%x, %s' % (v(vT[3]), L_ACC, v(vT[3])))
A('v_lshlrev_b32 %s, 6, %s' % (v(vT[4]), v(vPI)))
A('v_lshl_or_b32 %s, %s, 4, %s' % (v(vT[4]), v(vROW), v(vT[4])))
A('s_cmp_eq_u32 %s, 1' % sROLE)
A('s_cbranch_scc1 L_ROLE_G')
A('v_lshl_or_b32 %s, %s, 17, %s' % (v(vT[4]), v(vT[6]), v(vT[4])))
A('v_lshlrev_b32 %s, 12, %s' % (v(oTR), v(vRG8)))
A('v_lshl_or_b32 %s, %s, 4, %s' % (v(oTR), v(vCC), v(oTR)))
A('s_lshl_b32 %s, %s, 17' % (sA, sG))
A('s_lshl_b32 %s, %s, 7' % (sB, sW))
A('s_add_u32 %s, %s, %s' % (sA, sA, sB))
A('s_and_b32 %s, %s, 3' % (sB, sIDX))
A('s_lshl_b32 %s, %s, 10' % (sB, sB))
A('s_add_u32 %s, %s, %s' % (sA, sA, sB))
A('s_add_u32 %s, %s, 0x%x' % (sA, sA, WS_E2))
A('s_add_u32 %s, %s, 0x8000' % (sB, sA))
A('s_add_u32 %s, %s, 0x10000' % (sC, sA))
A('s_add_u32 %s, %s, 0x18000' % (sD, sA))
A('s_lshl_b32 %s, %s, 15' % (sKV, sRB))
A('s_lshl_b32 %s, %s, 10' % (sM0, sIDX))
A('s_add_u32 %s, %s, %s' % (sKV, sKV, sM0))
A('s_lshl_b32 %s, %s, 7' % (sM0, sW))
A('s_add_u32 %s, %s, %s' % (sKV, sKV, sM0))
A('s_add_u32 %s, %s, 0x%x' % (sKV, sKV, WS_E3))
A('v_lshlrev_b32 %s, 2, %s' % (v(vT[7]), v(vRG8)))
poll([ldws(vFA, vT[5], sE)], [vFA], first_in_flight=True, xcc=True)
stamp(9)
A('v_mov_b32 %s, 0x%x' % (v(vT[6]), E2_FS))
A('v_cmp_ne_u32 vcc, %s, %s' % (sXT, v(vFA + 3)))
A('v_cndmask_b32 %s, 0, %s, vcc' % (v(vT[5]), v(vT[6])))
if NOFAST: A('v_mov_b32 %s, %s' % (v(vT[5]), v(vT[6])))
for i in range(4): A('ds_bpermute_b32 %s, %s, %s offset:%d' % (v(vA4 + i), v(vT[7]), v(vT[5]), 32 * i))
A('s_barrier')
A('v_mov_b32 %s, %s' % (v(vT[6]), v(vFA)))
for ror in (8, 4): dpp_add(vT[6], ror, 'max')
A('s_waitcnt lgkmcnt(0)')
for i in range(4): A('v_add_u32 %s, %s, %s' % (v(vA4 + i), v(vA4 + i), v(oTR)))
g4 = [vP0, vP0 + 4, vP1, vP1 + 4]
l4 = [ldws(g4[i], vA4 + i, s) for i, s in enumerate((sA, sB, sC, sD))]
for l in l4: A(l)
for i in range(4): A('ds_read_b128 %s, %s offset:%d' % (v(vW1 + 4 * i, 4), v(vT[1]), 256 * i))
for ror in (2, 1): dpp_add(vT[6], ror, 'max')
allred_rows(vT[6], vT[5], 'max', (16,))
A('v_sub_f32 %s, %s, %s' % (v(vT[6]), v(vFA), v(vT[6])))
A('v_mul_f32 %s, 0x%x, %s' % (v(vT[6]), LOG2E, v(vT[6])))
A('v_exp_f32 %s, %s' % (v(vT[6]), v(vT[6])))
A('v_mul_f32 %s, %s, %s' % (v(vT[0]), v(vT[6]), v(vFA + 1)))
for ror in (8, 4, 2, 1): dpp_add(vT[0], ror)
allred_rows(vT[0], vT[5], 'add', (16,))
A('v_rcp_f32 %s, %s' % (v(vT[0]), v(vT[0])))
A('v_mul_f32 %s, %s, %s' % (v(vT[6]), v(vT[6]), v(vT[0])))
for i in range(4): A('ds_bpermute_b32 %s, %s, %s offset:%d' % (v(vCS + i), v(vT[7]), v(vT[6]), 32 * i))
A('s_waitcnt lgkmcnt(4)')
perm_pairs(vW1p, vW1, vW1 + 4, 4)
perm_pairs(vW1p + 8, vW1 + 8, vW1 + 12, 4)
A('s_waitcnt lgkmcnt(0)')
poll(l4, g4, first_in_flight=True)
stamp(10)
A('v_mul_f32 %s, %s, %s' % (v(vP0), v(vCS), v(vP0)))
A('v_mul_f32 %s, %s, %s' % (v(vP0 + 1), v(vCS), v(vP0 + 1)))
for i in range(1, 4):
    A('v_fmac_f32 %s, %s, %s' % (v(vP0), v(vCS + i), v(g4[i])))
    A('v_fmac_f32 %s, %s, %s' % (v(vP0 + 1), v(vCS + i), v(g4[i] + 1)))
red8both(vP0)
A('v_cvt_pk_bf16_f32 %s, %s, %s' % (v(vP0), v(vP0), v(vP0 + 1)))
A('ds_write_b32 %s, %s' % (v(vT[3]), v(vP0)))
A('s_waitcnt lgkmcnt(0)')
A('s_barrier')
A('ds_read_b64 %s, %s' % (v(vX4, 2), v(vT[2])))
A('s_waitcnt lgkmcnt(0)')
gemv16(v(vX4), v(vX4 + 1))
reduce8(vY)
for ror in (8, 4):
    dpp_add(vY, ror); dpp_add(vY + 1, ror)
dpp(vG, vY, 'row_ror:2'); dpp(vG + 1, vY + 1, 'row_ror:2')
stws(vG, vT[4], sKV)
stamp(11)
A('s_cmp_lg_u32 %s, 0' % sRB)
A('s_cbranch_scc1 L_FIN')
A('v_bfe_u32 %s, v0, 3, 5' % v(vT[0]))
A('v_lshlrev_b32 %s, 10, %s' % (v(vT[0]), v(vT[0])))
A('v_lshl_or_b32 %s, %s, 4, %s' % (v(vT[0]), v(vCC), v(vT[0])))
A('s_lshr_b32 %s, %s, 3' % (sA, sIDX))
A('s_lshl_b32 %s, %s, 15' % (sA, sA))
A('s_and_b32 %s, %s, 7' % (sB, sIDX))
A('s_lshl_b32 %s, %s, 7' % (sB, sB))
A('s_add_u32 %s, %s, %s' % (sA, sA, sB))
A('s_lshl_b32 %s, %s, 17' % (sB, sG))
A('s_add_u32 %s, %s, %s' % (sA, sA, sB))
A('s_add_u32 %s, %s, 0x%x' % (sA, sA, WS_E3))
A('v_lshlrev_b32 %s, 2, %s' % (v(vT[1]), v(vCC)))
A('s_lshl_b32 %s, %s, 5' % (sD, sIDX))
A('buffer_load_dword %s, %s, %s, %s offen' % (v(vX4), v(vT[1]), srd(SRD_X), sD))
A('v_lshrrev_b32 %s, 5, %s' % (v(vT[2]), v(vL)))
A('v_lshl_or_b32 %s, %s, 1, %s' % (v(vT[2]), v(vCC), v(vT[2])))
A('v_lshlrev_b32 %s, 2, %s' % (v(vT[2]), v(vT[2])))
A('v_lshl_or_b32 %s, %s, 6, %s' % (v(vT[2]), v(vWv), v(vT[2])))
A('v_add_u32 %s, 0x%x, %s' % (v(vT[2]), L_R1, v(vT[2])))
A('v_lshlrev_b32 %s, 3, %s' % (v(vT[3]), v(vL)))
A('v_add_u32 %s, 0x%x, %s' % (v(vT[3]), L_R1, v(vT[3])))
A('v_lshrrev_b32 %s, 3, v0' % v(vT[4]))
A('v_cmp_gt_u32 %s, 48, %s' % (sMSK, v(vT[4])))
A('v_mul_u32_u24 %s, %d, %s' % (v(vT[4]), E5_S, v(vT[4])))
A('v_lshl_add_u32 %s, %s, 4, %s' % (v(vT[4]), v(vCC), v(vT[4])))
A('v_add_u32 %s, %d, %s' % (v(vT[5]), 64 * E5_S, v(vT[4])))
A('v_cndmask_b32 %s, %s, %s, %s' % (v(vT[5]), v(vT[4]), v(vT[5]), sMSK))
A('s_lshl_b32 %s, %s, 7' % (sB, sIDX))
A('s_add_u32 %s, %s, 0x%x' % (sB, sB, WS_E5))
poll([ldws(vP0, vT[0], sA)], [vP0])
red8(vP0)
A('ds_write_b32 %s, %s' % (v(vT[2]), v(vP0)))
A('s_waitcnt lgkmcnt(0)')
A('s_barrier')
A('ds_read_b64 %s, %s' % (v(vP1, 2), v(vT[3])))
A('s_waitcnt lgkmcnt(0)')
red8both(vP1)
A('v_mul_f32 %s, 0.5, %s' % (v(vP1), v(vP1)))
A('v_mul_f32 %s, 0.5, %s' % (v(vP1 + 1), v(vP1 + 1)))
resid(vX4, vP1, vX4, vT[6], vT[7])
stamp(12)
poll([ldws(vP0, vT[4], sB), ldws(vP0 + 4, vT[5], sB)], [vP0, vP0 + 4])
stamp(13)
A('v_cndmask_b32 %s, 0, %s, %s' % (v(vP0 + 4), v(vP0 + 4), sMSK))
A('v_cndmask_b32 %s, 0, %s, %s' % (v(vP0 + 5), v(vP0 + 5), sMSK))
A('v_add_f32 %s, %s, %s' % (v(vP0), v(vP0), v(vP0 + 4)))
A('v_add_f32 %s, %s, %s' % (v(vP0 + 1), v(vP0 + 1), v(vP0 + 5)))
red8(vP0)
A('ds_write_b32 %s, %s offset:512' % (v(vT[2]), v(vP0)))
A('s_waitcnt lgkmcnt(0)')
A('s_barrier')
A('s_cmp_lg_u32 %s, 0' % sW)
A('s_cbranch_scc1 L_FIN')
A('ds_read_b64 %s, %s offset:512' % (v(vP0, 2), v(vT[3])))
A('s_waitcnt lgkmcnt(0)')
red8both(vP0)
resid(vX4, vP0, vX4, vT[6], vT[7])
set_exec(0xff)
A('buffer_store_dword %s, %s, %s, %s offen' % (v(vX4), v(vT[1]), SRD_OUT, sD))
A('s_cmp_lg_u32 %s, 0' % sIDX)
A('s_cbranch_scc1 L_NOEP')
set_exec(1)
A('buffer_store_dword %s, %s, %s, 0 offen offset:%d' % (v(vG + 2), v(vT[1]), SRD_WS, WS_EPOCH))
A('L_NOEP:')
set_exec(FULL)
stamp(14)
A('s_branch L_FIN')
A('L_ROLE_G:')
A('v_subrev_u32 %s, 0x%x, %s' % (v(vT[5]), L_ACC, v(vT[3])))
A('s_lshl_b32 %s, %s, 8' % (sC, sRB))
A('buffer_load_dword %s, %s, %s, %s offen' % (v(vXR), v(vT[5]), srd(SRD_X), sC))
A('s_andn2_b32 %s, %s, 3' % (sA, sIDX))
A('s_lshr_b32 %s, %s, 1' % (sB, sW))
A('s_add_u32 %s, %s, %s' % (sA, sA, sB))
A('s_lshl_b32 %s, %s, 2' % (sA, sA))
A('s_add_u32 %s, %s, %s' % (sA, sA, sRB))
A('s_and_b32 %s, %s, 1' % (sB, sW))
A('s_lshl_b32 %s, %s, 7' % (sB, sB))
A('s_lshl_b32 %s, %s, 8' % (sC, sA))
A('s_add_u32 %s, %s, %s' % (sC, sC, sB))
A('s_add_u32 %s, %s, 0x%x' % (sC, sC, WS_CS))
A('s_lshl_b32 %s, %s, 9' % (sKV, sA))
A('s_add_u32 %s, %s, %s' % (sKV, sKV, sB))
A('s_add_u32 %s, %s, 0x%x' % (sKV, sKV, WS_E4))
A('s_add_u32 %s, %s, 0x%x' % (sE, sKV, E4_FS))
A('v_mov_b32 %s, %s' % (v(vG2 + 2), sTA))
A('v_mov_b32 %s, %s' % (v(vG2 + 3), sXT))
A('s_waitcnt vmcnt(3)')
A('s_barrier')
stamp(9)
for i in range(4): A('ds_read_b128 %s, %s offset:%d' % (v(vW1 + 4 * i, 4), v(vT[1]), 256 * i))
A('s_waitcnt lgkmcnt(0)')
perm_pairs(vW1p, vW1, vW1 + 4, 4)
perm_pairs(vW1p + 8, vW1 + 8, vW1 + 12, 4)
gemv16(sONE, sONE)
reduce8(vY)
for ror in (8, 4):
    dpp_add(vY, ror); dpp_add(vY + 1, ror)
dpp(vG2, vY, 'row_ror:2'); dpp(vG2 + 1, vY + 1, 'row_ror:2')
set_exec(0x0003000300030003)
stws(vG2, vT[4], sC)
set_exec(FULL)
A('v_and_b32 %s, 3, %s' % (v(vT[5]), v(vL)))
A('v_bfe_u32 %s, %s, 2, 1' % (v(vT[6]), v(vL)))
A('v_lshlrev_b32 %s, 4, %s' % (v(vT[7]), v(vRG8)))
A('v_lshl_or_b32 %s, %s, 7, %s' % (v(vT[7]), v(vT[6]), v(vT[7])))
A('v_lshl_or_b32 %s, %s, 8, %s' % (v(oK), v(vT[5]), v(vT[7])))
A('v_lshl_or_b32 %s, %s, 9, %s' % (v(oV), v(vT[5]), v(vT[7])))
A('v_lshlrev_b32 %s, 9, %s' % (v(oWQ), v(vT[5])))
A('v_cmp_ne_u32 %s, 0, %s' % (sMSK, v(vT[6])))
A('v_cmp_eq_u32 vcc, 2, %s' % v(vL))
A('v_mov_b32 %s, 256' % v(vT[5]))
A('v_cndmask_b32 %s, %s, %s, vcc' % (v(vT[4]), v(vT[4]), v(vT[5])))
A('s_mov_b64 s[10:11], vcc')
A('s_lshl_b32 %s, %s, 10' % (sC, sIDX))
A('s_add_u32 %s, %s, 0x%x' % (sC, sC, WS_CS))
poll([ldws(vCS, oK, sC)], [vCS], xcc=True)
A('v_mov_b32 %s, 0x%x' % (v(vT[6]), E4_FS))
A('v_cmp_ne_u32 vcc, %s, %s' % (sXT, v(vCS + 3)))
A('v_cndmask_b32 %s, 0, %s, vcc' % (v(vT[5]), v(vT[6])))
if NOFAST: A('v_mov_b32 %s, %s' % (v(vT[5]), v(vT[6])))
A('v_add_u32 %s, %s, %s' % (v(oV), v(oV), v(vT[5])))
A('v_add_u32 %s, %s, %s' % (v(oWQ), v(oWQ), v(vT[5])))
dpp(vCS, vCS, 'quad_perm:[1,0,3,2]'); dpp(vCS + 1, vCS + 1, 'quad_perm:[1,0,3,2]')
dpp(vCS, vCS, 'quad_perm:[2,3,0,1]'); dpp(vCS + 1, vCS + 1, 'quad_perm:[2,3,0,1]')
perm_pairs(vW2p, vW2, vW2 + 4, 4)
A('v_lshlrev_b32 %s, 10, %s' % (v(oTR), v(vRG8)))
A('v_lshl_or_b32 %s, %s, 4, %s' % (v(oTR), v(vCC), v(oTR)))
A('s_lshl_b32 %s, %s, 15' % (sA, sRB))
A('s_lshl_b32 %s, %s, 7' % (sB, sW))
A('s_add_u32 %s, %s, %s' % (sA, sA, sB))
A('s_lshl_b32 %s, %s, 17' % (sB, sG))
A('s_add_u32 %s, %s, %s' % (sA, sA, sB))
A('s_add_u32 %s, %s, 0x%x' % (sA, sA, WS_E3))
A('s_add_u32 %s, %s, 0x2000' % (sB, sA))
A('s_add_u32 %s, %s, 0x4000' % (sC, sA))
A('s_add_u32 %s, %s, 0x6000' % (sD, sA))
A('s_bitcmp1_b32 %s, 0' % sW)
A('s_cselect_b32 %s, 0, 4' % sM0)
A('s_or_b32 %s, %s, 0x00030003' % (sM0, sM0))
A('s_lshl_b32 %s, %s, 11' % (sJ, sIDX))
A('s_add_u32 %s, %s, 0x%x' % (sJ, sJ, WS_E4))
A('s_mul_i32 %s, %s, %d' % (sSTEP, sIDX, E5_S))
A('s_add_u32 %s, %s, 0x%x' % (sSTEP, sSTEP, WS_E5))
A('v_lshlrev_b32 %s, 9, %s' % (v(oW2), v(vWv)))
A('v_lshl_or_b32 %s, %s, 6, %s' % (v(oW2), v(vCC), v(oW2)))
A('v_lshl_or_b32 %s, %s, 4, %s' % (v(oW2), v(vROW), v(oW2)))
stamp(10)
l4g = [ldws(g4[i], oTR, s) for i, s in enumerate((sA, sB, sC, sD))]
poll(l4g, g4)
stamp(11)
A('v_pk_add_f32 %s, %s, %s' % (v(vP0, 2), v(vP0, 2), v(vP0 + 4, 2)))
A('v_pk_add_f32 %s, %s, %s' % (v(vP1, 2), v(vP1, 2), v(vP1 + 4, 2)))
A('v_pk_add_f32 %s, %s, %s' % (v(vP0, 2), v(vP0, 2), v(vP1, 2)))
red8both(vP0)
resid(vP0, vP0, vXR, vT[5], vT[6])
A('ds_write_b32 %s, %s' % (v(vT[3]), v(vP0)))
A('s_waitcnt lgkmcnt(0)')
A('s_barrier')
A('ds_read_b64 %s, %s' % (v(vX4, 2), v(vT[2])))
A('s_waitcnt lgkmcnt(0)')
h01, h23 = vX4, vX4 + 1
A('v_dot2_f32_bf16 %s, %s, %s, 0' % (v(vP1), v(h01), sONE))
A('v_dot2_f32_bf16 %s, %s, %s, 0' % (v(vP1 + 1), v(h01), v(h01)))
A('v_dot2_f32_bf16 %s, %s, %s, %s' % (v(vP1), v(h23), sONE, v(vP1)))
A('v_dot2_f32_bf16 %s, %s, %s, %s' % (v(vP1 + 1), v(h23), v(h23), v(vP1 + 1)))
gemv16(v(h01), v(h23))
A('v_permlane32_swap_b32 %s, %s' % (v(vP1), v(vP1 + 1)))
A('v_add_f32 %s, %s, %s' % (v(vP1), v(vP1), v(vP1 + 1)))
allred_rows(vP1, vP1 + 1, 'add', (16,))
reduce8(vY)
for ror in (8, 4):
    dpp_add(vP1, ror); dpp_add(vY, ror); dpp_add(vY + 1, ror)
dpp(vP1 + 1, vP1, 'row_ror:2'); dpp_add(vP1, 2)
dpp(vG, vY, 'row_ror:2'); dpp(vG + 1, vY + 1, 'row_ror:2')
A('v_permlane32_swap_b32 %s, %s' % (v(vP1), v(vP1 + 1)))
A('s_mov_b32 exec_lo, %s' % sM0)
A('s_mov_b32 exec_hi, 0x00030003')
A('v_cndmask_b32 %s, %s, %s, s[10:11]' % (v(vG), v(vG), v(vP1)))
A('v_cndmask_b32 %s, %s, %s, s[10:11]' % (v(vG + 1), v(vG + 1), v(vP1 + 1)))
st_dual(vG, vT[4], sKV, sE)
set_exec(FULL)
stamp(12)
poll([ldws(vP0, oV, sJ), ldws(vP0 + 4, oWQ, sJ, 256)], [vP0, vP0 + 4])
stamp(13)
for qp in ('quad_perm:[1,0,3,2]', 'quad_perm:[2,3,0,1]'):
    dpp(vP0 + 4, vP0 + 4, qp); dpp(vP0 + 5, vP0 + 5, qp); dpp(vP0, vP0, qp); dpp(vP0 + 1, vP0 + 1, qp)
ln_stats(vP0 + 4, vP0 + 5, vT[5], vT[6], vT[7])
for i in range(2): A('v_fma_f32 %s, -%s, %s, %s' % (v(vP0 + i), v(vT[5]), v(vCS + i), v(vP0 + i)))
for i in range(2): A('v_mul_f32 %s, %s, %s' % (v(vP0 + i), v(vP0 + i), v(vT[6])))
A('v_cvt_pk_bf16_f32 %s, %s, %s' % (v(vT[7]), v(vP0), v(vP0 + 1)))
A('v_lshlrev_b32 %s, 16, %s' % (v(vP0), v(vT[7])))
A('v_and_b32 %s, 0xffff0000, %s' % (v(vP0 + 1), v(vT[7])))
A('v_max_f32 %s, 0, %s' % (v(vP0 + 2), v(vP0)))
A('v_max_f32 %s, 0, %s' % (v(vP0 + 3), v(vP0 + 1)))
A('v_cndmask_b32 %s, %s, %s, %s' % (v(vP0), v(vP0 + 2), v(vP0), sMSK))
A('v_cndmask_b32 %s, %s, %s, %s' % (v(vP0 + 1), v(vP0 + 3), v(vP0 + 1), sMSK))
dpp(vP0, vP0, 'row_half_mirror', 'mul'); dpp(vP0 + 1, vP0 + 1, 'row_half_mirror', 'mul')
A('v_cvt_pk_bf16_f32 %s, %s, %s' % (v(vT[7]), v(vP0), v(vP0 + 1)))
for e in range(8): A('v_dot2_f32_bf16 %s, %s, %s, 0' % (v(vY + e), v(vW2p + e), v(vT[7])))
reduce8(vY)
dpp(vG, vY, 'row_ror:8'); dpp(vG + 1, vY + 1, 'row_ror:8')
set_exec(0x00ff00ff00ff00ff)
stws(vG, oW2, sSTEP)
set_exec(FULL)
stamp(14)
A('L_FIN:')
if STAMPS:
    A('s_waitcnt lgkmcnt(0)')
    A('v_mov_b32 %s, 0' % v(vSTAMP))
    for i in range(16): A('v_writelane_b32 %s, s%d, %d' % (v(vSTAMP), 64 + 2 * i, i))
    A('s_lshl_b32 %s, s2, 9' % sB)
    A('s_lshl_b32 %s, %s, 6' % (sC, sW))
    A('s_add_u32 %s, %s, %s' % (sB, sB, sC))
    A('s_add_u32 %s, %s, 0x%x' % (sB, sB, WS_ST))
    A('v_lshlrev_b32 %s, 2, %s' % (v(vT[9]), v(vL)))
    set_exec(0xffff)
    A('buffer_store_dword %s, %s, %s, %s offen' % (v(vSTAMP), v(vT[9]), SRD_WS, sB))
A('L_END:')
A('s_endpgm')
a.raw('.fill 64, 4, 0xbf800000')
a.raw('.p2align 13, 0')
nv = (NVGPR + 7) // 8 * 8
a.raw('''.section .rodata,"a"
.p2align 6
.amdhsa_kernel %s_kernel
  .amdhsa_next_free_vgpr %d
  .amdhsa_next_free_sgpr 102
  .amdhsa_accum_offset %d
  .amdhsa_group_segment_fixed_size 0
  .amdhsa_kernarg_size 96
  .amdhsa_user_sgpr_count 2
  .amdhsa_user_sgpr_kernarg_segment_ptr 1
  .amdhsa_system_sgpr_workgroup_id_x 1
  .amdhsa_float_denorm_mode_32 3
.end_amdhsa_kernel''' % (NAME, nv, nv))
open(OUT, 'w').write(a.text())
print('wrote', OUT, 'vgprs', NVGPR)
```

```python
import sys
from asmlib import Asm

NAME = 'sequential_preLN__sliding_block_cached__glu_gated_reglu__decode'
STAMPS = '--stamps' in sys.argv
NOFAST = '--nofast' in sys.argv
def OPT(name, d=0):
    for a_ in sys.argv:
        if a_.startswith('--%s=' % name): return int(a_.split('=')[1])
    return d
SLEEP = OPT('sleep', 0)
def SOPT(name, d):
    for a_ in sys.argv:
        if a_.startswith('--%s=' % name): return a_.split('=')[1].split(',')
    return d.split(',')
S1 = SOPT('s1', 'K0,K1,K2,K3')
S2 = SOPT('s2', 'w:K2,P0,V0,V1,TT')
S3 = SOPT('s3', 'V2,V3')
Q = []
def issued(tag, w0=False): Q.append((tag, w0))
def wait_tag(tag):
    i = max(k for k, (t_, _) in enumerate(Q) if t_ == tag)
    young = Q[i + 1:]
    wait_vm(sum(1 for _, w in young if not w), sum(1 for _, w in young if w))
GT = OPT('gt', 0)
NOPF = OPT('nopf', 0)
OUT = [a for a in sys.argv[1:] if not a.startswith('--')]
OUT = OUT[0] if OUT else 'cdna_kernels/%s.s' % NAME

WS_EPOCH = 0
WS_ML = 0x8000
WS_E1 = 0x10000; E1_K = 4352; E1_G = 4 * E1_K; E1_FS = 0x24000
WS_E4 = 0x80000
WS_E2 = 0x100000
WS_E3 = 0x200000
WS_E5 = 0x300000; E5_S = 4352
WS_ST = 0x500000
WS_SIZE = 0x600000
L_V = 0; L_K = 32768; L_W = 65536
QS = 272
L_Q = 98304; L_P = L_Q + 4 * QS; L_M = L_P + 4 * QS
L_QACC = L_M
L_MAX = L_M + 2048
L_LS = L_MAX + 128
L_R1 = L_LS + 128
L_R2 = L_R1 + 512
L_ACC = L_R2 + 512
L_FLG = L_ACC + 256
LDS_BYTES = L_FLG + 64

LOG2E = 0x3fb8aa3b; SCALE = 0x3db504f3; EPS = 0x3727c5ac; INV512 = 0x3b000000; ONES = 0x3f803f80
SPIN = 1 << 16

a = Asm(); A = a
sW, sG, sR = 's3', 's4', 's5'
sTAG = 's[6:7]'; sTA, sTB = 's6', 's7'
sMSK = 's[8:9]'
sSELLO, sSELHI = 's12', 's13'
sCNT = 's14'; sONE = 's15'
SRD_WS = 's[16:19]'; SRD_OUT = 's[20:23]'
sA, sB, sC, sD = 's24', 's25', 's26', 's27'
sKV = 's28'; sJ = 's29'; sSTEP = 's30'; sIDX = 's31'; sRB = 's32'; sM0 = 's33'
sXT = 's34'
sROLE = 's35'
SRD_X, SRD_WQ, SRD_K, SRD_V, SRD_W2 = 36, 40, 44, 48, 52
pWO, pWG, pWU = 56, 60, 62
sO4 = 's58'; sE = 's59'; sFAST = 's96'; sKB = 's97'; sKM = 's94'; sVM = 's95'
def srd(n): return 's[%d:%d]' % (n, n + 3)

class V:
    n = 0
    @classmethod
    def alloc(cls, k=1, align=1):
        cls.n = (cls.n + align - 1) // align * align
        r = cls.n; cls.n += k
        return r
def v(r, k=1):
    return 'v%d' % r if k == 1 else 'v[%d:%d]' % (r, r + k - 1)

vTID = V.alloc(); vL = V.alloc(); vSTAMP = V.alloc()
vWv = V.alloc(); vPI = V.alloc(); vL15 = V.alloc(); vROW = V.alloc(); vRG8 = V.alloc(); vCC = V.alloc()
vT = [V.alloc() for _ in range(11)]
vXF = V.alloc(4, 4)
vWQa = V.alloc(4, 4); vWQb = V.alloc(4, 4)
vK = V.alloc(16, 4)
vW1 = V.alloc(16, 4); vW2 = V.alloc(8, 4)
vW1p = V.alloc(16, 4); vW2p = V.alloc(8, 4)
vY = V.alloc(8, 4)
vFB = V.alloc(16, 4); vFA = V.alloc(16, 4)
vACC = V.alloc(4, 4)
vG = V.alloc(4, 4); vG2 = V.alloc(4, 4)
vP0 = V.alloc(8, 4); vP1 = V.alloc(8, 4)
vXR = V.alloc(2, 2)
vOFF = [V.alloc() for _ in range(8)]
vPF = V.alloc(4, 4)
vCS = V.alloc(4, 4)
vA4 = V.alloc(4, 4)
vWA = V.alloc(2, 2)
vX4 = V.alloc(2, 2)
NVGPR = V.n

def stamp(i):
    if i == 1: return
    if i == 15: i = 1
    if STAMPS: A('s_memrealtime s[%d:%d]' % (64 + 2 * i, 65 + 2 * i))
lab = [0]
def newlab(p='L'):
    lab[0] += 1
    return '%s%d' % (p, lab[0])
def wait_vm(n, extra0=0):
    if extra0 == 0:
        A('s_waitcnt vmcnt(%d)' % n); return
    l = newlab('W')
    A('s_cmp_eq_u32 %s, 0' % sW)
    A('s_waitcnt vmcnt(%d)' % (n + extra0))
    A('s_cbranch_scc1 %s' % l)
    A('s_waitcnt vmcnt(%d)' % n)
    A('%s:' % l)
def dpp(d, s, mod, op='add'):
    A('v_%s_f32_dpp %s, %s, %s %s row_mask:0xf bank_mask:0xf' % (op, v(d), v(s), v(s), mod))
def dpp_add(d, ror, op='add'): dpp(d, d, 'row_ror:%d' % ror, op)
def reduce8(y):
    for i in range(4): A('v_permlane32_swap_b32 %s, %s' % (v(y + i), v(y + 4 + i)))
    for i in range(4): A('v_add_f32 %s, %s, %s' % (v(y + i), v(y + i), v(y + 4 + i)))
    for i in range(2): A('v_permlane16_swap_b32 %s, %s' % (v(y + i), v(y + 2 + i)))
    for i in range(2): A('v_add_f32 %s, %s, %s' % (v(y + i), v(y + i), v(y + 2 + i)))
def allred_rows(x, t, op='add', which=(16, 32)):
    for wdt in which:
        A('v_mov_b32 %s, %s' % (v(t), v(x)))
        A('v_permlane%d_swap_b32 %s, %s' % (wdt, v(x), v(t)))
        A('v_%s_f32 %s, %s, %s' % (op, v(x), v(x), v(t)))
def bf16r(d, s):
    A('v_cvt_pk_bf16_f32 %s, %s, %s' % (v(d), v(s), v(s)))
    A('v_and_b32 %s, 0xffff0000, %s' % (v(d), v(d)))
def ln_stats(vsum, vsq, vm, vr, t):
    A('v_mul_f32 %s, 0x%x, %s' % (v(vsum), INV512, v(vsum)))
    A('v_mul_f32 %s, 0x%x, %s' % (v(vsq), INV512, v(vsq)))
    A('v_fma_f32 %s, -%s, %s, %s' % (v(vsq), v(vsum), v(vsum), v(vsq)))
    A('v_max_f32 %s, 0, %s' % (v(vsq), v(vsq)))
    A('v_cvt_pk_bf16_f32 %s, %s, %s' % (v(t), v(vsum), v(vsq)))
    A('v_lshlrev_b32 %s, 16, %s' % (v(vm), v(t)))
    A('v_and_b32 %s, 0xffff0000, %s' % (v(vr), v(t)))
    A('v_add_f32 %s, 0x%x, %s' % (v(vr), EPS, v(vr)))
    bf16r(vr, vr)
    A('v_sqrt_f32 %s, %s' % (v(vr), v(vr)))
    bf16r(vr, vr)
    A('v_rcp_f32 %s, %s' % (v(vr), v(vr)))
def perm_pairs(dst, ra, rb, n):
    for j in range(n):
        A('v_perm_b32 %s, %s, %s, %s' % (v(dst + 2 * j), v(rb + j), v(ra + j), sSELLO))
        A('v_perm_b32 %s, %s, %s, %s' % (v(dst + 2 * j + 1), v(rb + j), v(ra + j), sSELHI))
FULL = (1 << 64) - 1
def set_exec(mask):
    lo, hi = mask & 0xffffffff, mask >> 32
    if mask == FULL: A('s_mov_b64 exec, -1')
    elif hi == 0 and lo <= 64: A('s_mov_b64 exec, %d' % lo)
    else:
        A('s_mov_b32 exec_lo, 0x%x' % lo); A('s_mov_b32 exec_hi, 0x%x' % hi)
def tagcheck(grans, xcc=False):
    t, u = vT[10], vT[9]
    for i, gq in enumerate(grans):
        if i == 0:
            A('v_xor_b32 %s, %s, %s' % (v(t), sTA, v(gq + 2)))
            A('v_xor_b32 %s, %s, %s' % (v(u), sTB, v(gq + 3)))
            if xcc: A('v_and_b32 %s, -16, %s' % (v(u), v(u)))
            A('v_or_b32 %s, %s, %s' % (v(t), v(t), v(u)))
        else:
            A('v_xor_b32 %s, %s, %s' % (v(u), sTA, v(gq + 2)))
            A('v_xor_b32 %s, %s, %s' % (v(vT[8]), sTB, v(gq + 3)))
            if xcc: A('v_and_b32 %s, -16, %s' % (v(vT[8]), v(vT[8])))
            A('v_or3_b32 %s, %s, %s, %s' % (v(t), v(t), v(u), v(vT[8])))
    A('v_cmp_ne_u32 vcc, 0, %s' % v(t))
def poll(loads, grans, first_in_flight=False, xcc=False, each=None):
    top = newlab('P'); done = newlab('D'); chk = newlab('C')
    A('s_mov_b32 %s, %d' % (sCNT, SPIN))
    if first_in_flight: A('s_branch %s' % chk)
    A('%s:' % top)
    if each: each()
    for l in loads: A(l)
    A('%s:' % chk)
    A('s_waitcnt vmcnt(0)')
    tagcheck(grans, xcc)
    A('s_sub_u32 %s, %s, 1' % (sCNT, sCNT))
    A('s_cbranch_scc1 %s' % done)
    A('s_cbranch_vccnz %s' % top)
    A('%s:' % done)
MS = ['s[40:41]', 's[42:43]', 's[44:45]', 's[46:47]']
def mpoll(loads, grans, check, first_in_flight=False, extra=None, sleep=0):
    top = newlab('P'); done = newlab('D'); chk = newlab('C')
    A('s_mov_b32 %s, %d' % (sCNT, SPIN))
    if not first_in_flight:
        for l in loads: A(l)
    A('s_branch %s' % chk)
    A('%s:' % top)
    if sleep: A('s_sleep %d' % sleep)
    for i, l in enumerate(loads):
        sk = newlab('K')
        A('s_mov_b64 exec, %s' % MS[i])
        A('s_cbranch_execz %s' % sk)
        A(l)
        A('%s:' % sk)
    A('s_mov_b64 exec, -1')
    A('%s:' % chk)
    A('s_waitcnt vmcnt(0)')
    for i, gq in enumerate(grans): check(i, gq, vT[7 + (i & 3)] if False else vY + i)
    for i, gq in enumerate(grans): A('v_cmp_ne_u32 %s, 0, %s' % (MS[i], v(vY + i)))
    if extra: extra()
    A('s_sub_u32 %s, %s, 1' % (sCNT, sCNT))
    A('s_cbranch_scc1 %s' % done)
    if len(grans) == 1: A('s_or_b64 vcc, %s, %s' % (MS[0], MS[0]))
    else: A('s_or_b64 vcc, %s, %s' % (MS[0], MS[1]))
    for i in range(2, len(grans)): A('s_or_b64 vcc, vcc, %s' % MS[i])
    A('s_cbranch_scc1 %s' % top)
    A('%s:' % done)
def chk_tags(i, gq, t):
    A('v_xor_b32 %s, %s, %s' % (v(t), sTA, v(gq + 2)))
    A('v_xor_b32 %s, %s, %s' % (v(t + 4), sTB, v(gq + 3)))
    A('v_or_b32 %s, %s, %s' % (v(t), v(t), v(t + 4)))
def chk_lam(i, gq, t):
    A('v_xor_b32 %s, %s, %s' % (v(t), sTA, v(gq + 3)))
    A('v_xor_b32_dpp %s, %s, %s quad_perm:[1,0,3,2] row_mask:0xf bank_mask:0xf' % (v(t + 4), v(gq + 2), v(gq + 2)))
    A('v_or_b32 %s, %s, %s' % (v(t), v(t), v(t + 4)))
def ldws(dst, voff, soff, imm=0):
    return 'buffer_load_dwordx4 %s, %s, %s, %s offen%s sc1' % (v(dst, 4), v(voff), SRD_WS, soff, (' offset:%d' % imm) if imm else '')
def stws(src, voff, soff, sc1=True):
    A('buffer_store_dwordx4 %s, %s, %s, %s offen%s' % (v(src, 4), v(voff), SRD_WS, soff, ' sc1' if sc1 else ''))
def st_dual(src, voff, sfast, sslow):
    stws(src, voff, sfast, False); stws(src, voff, sslow, True)
def st_grp(src, voff, soff):
    l1 = newlab('S'); l2 = newlab('S')
    A('s_cmp_eq_u32 %s, 0' % sFAST)
    A('s_cbranch_scc1 %s' % l1)
    stws(src, voff, soff, False)
    A('s_branch %s' % l2)
    A('%s:' % l1)
    stws(src, voff, soff, True)
    A('%s:' % l2)
def red8both(x):
    A('v_permlane32_swap_b32 %s, %s' % (v(x), v(x + 1)))
    A('v_add_f32 %s, %s, %s' % (v(x), v(x), v(x + 1)))
    allred_rows(x, x + 1, 'add', (16,))
    dpp(x + 1, x, 'row_ror:8'); dpp(x, x, 'row_ror:8')
    A('v_permlane32_swap_b32 %s, %s' % (v(x), v(x + 1)))
def red8(x):
    A('v_permlane32_swap_b32 %s, %s' % (v(x), v(x + 1)))
    A('v_add_f32 %s, %s, %s' % (v(x), v(x), v(x + 1)))
    allred_rows(x, x + 1, 'add', (16,))
    dpp_add(x, 8)
def resid(dst, x, base, t0, t1):
    A('v_cvt_pk_bf16_f32 %s, %s, %s' % (v(t0), v(x), v(x + 1)))
    A('v_lshlrev_b32 %s, 16, %s' % (v(x), v(t0)))
    A('v_and_b32 %s, 0xffff0000, %s' % (v(x + 1), v(t0)))
    A('v_lshlrev_b32 %s, 16, %s' % (v(t0), v(base)))
    A('v_and_b32 %s, 0xffff0000, %s' % (v(t1), v(base)))
    A('v_add_f32 %s, %s, %s' % (v(x), v(x), v(t0)))
    A('v_add_f32 %s, %s, %s' % (v(x + 1), v(x + 1), v(t1)))
    A('v_cvt_pk_bf16_f32 %s, %s, %s' % (v(dst), v(x), v(x + 1)))
def gemv16(lo, hi):
    for e in range(8): A('v_dot2_f32_bf16 %s, %s, %s, 0' % (v(vY + e), v(vW1p + e), lo))
    for e in range(8): A('v_dot2_f32_bf16 %s, %s, %s, %s' % (v(vY + e), v(vW1p + 8 + e), hi, v(vY + e)))

head = []
for l in open('cdna_kernels/%s.s.ref' % NAME).read().split('\n'):
    if not l.startswith(';'): break
    head.append('; @launch grid=(256,1,1) block=(512,1,1) lds=%d' % LDS_BYTES if l.startswith('; @launch') else l)
a.raw('\n'.join(head))
a.raw('.amdgcn_target "amdgcn-amd-amdhsa--gfx950"\n.text\n.globl %s_kernel\n.p2align 8\n.type %s_kernel,@function\n%s_kernel:' % (NAME, NAME, NAME))

oX, oXR, oWQ, oK, oV, oW2, oTR, oFR = vOFF
A('s_cmp_ge_u32 s2, 256')
A('s_cbranch_scc1 L_END')
A('s_load_dwordx2 s[%d:%d], s[0:1], 24' % (SRD_WQ, SRD_WQ + 1))
A('s_load_dwordx2 s[%d:%d], s[0:1], 0' % (SRD_X, SRD_X + 1))
A('s_load_dwordx2 s[16:17], s[0:1], 88')
A('s_load_dwordx2 s[%d:%d], s[0:1], 8' % (SRD_K, SRD_K + 1))
A('s_load_dwordx2 s[%d:%d], s[0:1], 16' % (SRD_V, SRD_V + 1))
if STAMPS:
    for i in range(15): A('s_mov_b64 s[%d:%d], 0' % (64 + 2 * i, 65 + 2 * i))
stamp(0)
A('v_lshrrev_b32 %s, 3, v0' % v(vT[0]))
A('v_and_b32 %s, 7, v0' % v(vCC))
A('s_and_b32 %s, s2, 7' % sG)
A('s_lshr_b32 %s, s2, 3' % sR)
A('v_lshlrev_b32 %s, 14, %s' % (v(oWQ), v(vT[0])))
A('v_lshl_or_b32 %s, %s, 4, %s' % (v(oWQ), v(vCC), v(oWQ)))
A('s_and_b32 %s, %s, 3' % (sRB, sR))
A('s_lshl_b32 %s, %s, 20' % (sA, sRB))
A('s_lshl_b32 %s, %s, 10' % (sC, sG))
A('s_add_u32 %s, %s, %s' % (sA, sA, sC))
A('s_lshr_b32 %s, %s, 2' % (sE, sR))
A('s_lshl_b32 %s, %s, 7' % (sC, sE))
A('s_add_u32 %s, %s, %s' % (sA, sA, sC))
A('s_add_u32 %s, %s, 8192' % (sB, sA))
A('s_mov_b32 s%d, 0x400000' % (SRD_WQ + 2)); A('s_mov_b32 s%d, 0x20000' % (SRD_WQ + 3))
A('s_mov_b32 s%d, 1024' % (SRD_X + 2)); A('s_mov_b32 s%d, 0x20000' % (SRD_X + 3))
A('v_and_b32 %s, 63, v0' % v(vL))
A('v_lshlrev_b32 %s, 4, %s' % (v(oX), v(vL)))
A('v_lshlrev_b32 %s, 2, %s' % (v(oXR), v(vT[0])))
A('s_lshl_b32 %s, %s, 8' % (sD, sRB))
A('v_lshrrev_b32 %s, 6, v0' % v(vWv))
A('v_and_b32 %s, 15, %s' % (v(vL15), v(vL)))
A('v_readfirstlane_b32 %s, %s' % (sW, v(vWv)))
A('v_lshrrev_b32 %s, 4, %s' % (v(vROW), v(vL)))
A('s_lshl_b32 %s, %s, 23' % (sKV, sG))
A('s_lshl_b32 %s, %s, 15' % (sC, sR))
A('s_add_u32 %s, %s, %s' % (sKV, sKV, sC))
A('s_add_u32 %s, %s, 0x700000' % (sKV, sKV))
A('v_lshl_add_u32 %s, %s, 4, %s' % (v(oK), v(vWv), v(vROW)))
A('v_lshlrev_b32 %s, 8, %s' % (v(oK), v(oK)))
A('v_xor_b32 %s, %s, %s' % (v(vT[1]), v(vL15), v(vROW)))
A('v_lshl_or_b32 %s, %s, 4, %s' % (v(oK), v(vT[1]), v(oK)))
A('s_mov_b32 s%d, 0x4000000' % (SRD_K + 2)); A('s_mov_b32 s%d, 0x20000' % (SRD_K + 3))
A('s_lshl_b32 %s, %s, 12' % (sKM, sW))
A('s_add_u32 %s, %s, %d' % (sKM, sKM, L_K))
A('s_mov_b32 %s, %s' % (sKB, sKV))
A('s_waitcnt lgkmcnt(0)')
stamp(1)
A('buffer_load_dwordx4 %s, %s, %s, 0 offen' % (v(vXF, 4), v(oX), srd(SRD_X)))
A('buffer_load_dword %s, %s, %s, %s offen' % (v(vXR), v(oXR), srd(SRD_X), sD))
A('buffer_load_dwordx4 %s, %s, %s, %s offen nt' % (v(vWQa, 4), v(oWQ), srd(SRD_WQ), sA))
A('buffer_load_dwordx4 %s, %s, %s, %s offen nt' % (v(vWQb, 4), v(oWQ), srd(SRD_WQ), sB))
for t_ in ('x', 'xr', 'wqa', 'wq', 'e'): issued(t_)
A('s_load_dwordx2 %s, s[16:17], %d' % (sTAG, WS_EPOCH))
A('s_mov_b32 s18, 0x%x' % WS_SIZE); A('s_mov_b32 s19, 0x20000')
A('s_mul_i32 %s, %s, %d' % (sA, sG, E1_G))
A('s_add_u32 %s, %s, 0x%x' % (sA, sA, WS_E1))
A('s_mul_i32 %s, %s, %d' % (sB, sRB, E1_K))
A('s_lshl_b32 %s, %s, 9' % (sC, sE))
A('s_add_u32 %s, %s, %s' % (sB, sB, sC))
A('s_add_u32 %s, %s, %s' % (sB, sB, sA))
A('v_lshlrev_b32 %s, 6, %s' % (v(vT[1]), v(vWv)))
A('buffer_load_dword %s, %s, %s, %s offen sc1' % (v(vA4 + 2), v(vT[1]), SRD_WS, sB))
A('v_lshl_add_u32 %s, %s, 2, %s' % (v(oV), v(vWv), v(vROW)))
A('v_lshlrev_b32 %s, 8, %s' % (v(oV), v(oV)))
A('v_and_b32 %s, 2, %s' % (v(vT[1]), v(vWv)))
A('v_lshl_or_b32 %s, %s, 1, %s' % (v(vT[1]), v(vT[1]), v(vROW)))
A('v_lshlrev_b32 %s, 1, %s' % (v(vT[1]), v(vT[1])))
A('v_xor_b32 %s, %s, %s' % (v(vT[1]), v(vT[1]), v(vL15)))
A('v_lshl_or_b32 %s, %s, 4, %s' % (v(oV), v(vT[1]), v(oV)))
A('s_mov_b32 s%d, 0x4000000' % (SRD_V + 2)); A('s_mov_b32 s%d, 0x20000' % (SRD_V + 3))
A('s_lshl_b32 %s, %s, 10' % (sVM, sW))
A('s_barrier')
def op(o, track=True):
    if o.startswith('w:'): wait_tag(o[2:]); return
    if o == 'B': A('s_barrier'); return
    if o == '': return
    if o[0] == 'K':
        i = int(o[1])
        A('s_mov_b32 m0, %s' % sKM)
        A('v_xor_b32 %s, 0x%x, %s' % (v(vT[9]), 64 * i, v(oK)))
        A('buffer_load_dwordx4 %s, %s, %s offen offset:%d nt lds' % (v(vT[9]), srd(SRD_K), sKB, 1024 * i))
        if track: issued(o)
    elif o[0] == 'V':
        A('s_mov_b32 m0, %s' % sVM)
        A('s_add_u32 %s, %s, 8192' % (sVM, sVM))
        A('buffer_load_dwordx4 %s, %s, %s offen nt lds' % (v(oV), srd(SRD_V), sKV))
        A('s_add_u32 %s, %s, 8192' % (sKV, sKV))
        if track: issued(o)
    elif o == 'P0':
        stamp(5)
        A(ldws(vP0, vT[0], sA)); A(ldws(vP0 + 4, vT[0], sB))
        if track: issued('p0a'); issued('P0')
    elif o == 'TT':
        set_exec(0x101)
        A('global_load_dword %s, %s, off nt' % (v(vA4), v(vWA, 2)))
        A('s_min_u32 %s, %s, 0x1bffc0' % (sC, sO4))
        A('buffer_load_dword %s, %s, %s, %s offen nt' % (v(vA4 + 1), v(vA4 + 3), srd(SRD_W2), sC))
        set_exec(FULL)
        if track: issued('t'); issued('TT')
    else: raise ValueError(o)
for o in S1: op(o)
A('s_getpc_b64 s[10:11]')
A('L_PC:')
A('s_sub_u32 s10, s10, L_PC-%s_kernel' % NAME)
A('s_subb_u32 s11, s11, 0')
A('s_and_b32 %s, %s, 7' % (sC, sR))
A('s_lshl_b32 %s, %s, 3' % (sC, sC))
A('s_add_u32 %s, %s, %s' % (sC, sC, sW))
A('s_lshl_b32 %s, %s, %d' % (sC, sC, 0 if NOPF else 7))
A('v_mov_b32 %s, %s' % (v(vT[1]), sC))
A('global_load_dword %s, %s, s[10:11]' % (v(vPF), v(vT[1])))
issued('pf')
A('s_load_dwordx2 s[%d:%d], s[0:1], 32' % (pWO, pWO + 1))
A('s_load_dwordx4 s[%d:%d], s[0:1], 48' % (pWG, pWG + 3))
A('s_load_dwordx2 s[%d:%d], s[0:1], 64' % (SRD_W2, SRD_W2 + 1))
A('s_load_dwordx2 s[20:21], s[0:1], 72')
A('s_mov_b32 %s, 0x05040100' % sSELLO)
A('s_mov_b32 %s, 0x07060302' % sSELHI)
A('s_mov_b32 %s, 0x%x' % (sONE, ONES))
A('s_mov_b32 s22, 1024'); A('s_mov_b32 s23, 0x20000')
A('s_mov_b32 s%d, 0x1c0000' % (SRD_W2 + 2)); A('s_mov_b32 s%d, 0x20000' % (SRD_W2 + 3))
A('v_lshrrev_b32 %s, 3, %s' % (v(vRG8), v(vL)))
A('v_and_b32 %s, 1, %s' % (v(vPI), v(vL)))
A('s_getreg_b32 %s, hwreg(HW_REG_XCC_ID)' % sXT)
A('s_lshl_b32 %s, %s, 5' % (sJ, sG))
A('s_add_u32 %s, %s, %s' % (sJ, sJ, sR))
A('v_lshlrev_b32 %s, 5, %s' % (v(vT[5]), v(vCC)))
A('v_lshl_or_b32 %s, %s, 3, %s' % (v(vT[5]), v(vROW), v(vT[5])))
A('v_lshl_or_b32 %s, %s, 8, %s' % (v(vT[5]), v(vWv), v(vT[5])))
A('v_add_u32 %s, 0x%x, %s' % (v(vT[5]), L_QACC, v(vT[5])))
A('v_and_b32 %s, 31, %s' % (v(vT[6]), v(vL)))
A('v_lshlrev_b32 %s, 3, %s' % (v(vT[6]), v(vT[6])))
A('v_lshrrev_b32 %s, 5, %s' % (v(vT[7]), v(vL)))
A('v_lshl_or_b32 %s, %s, 10, %s' % (v(vT[6]), v(vT[7]), v(vT[6])))
A('v_add_u32 %s, 0x%x, %s' % (v(vT[6]), L_QACC, v(vT[6])))
A('s_add_u32 %s, %s, 0x%x' % (sC, sB, E1_FS))
wait_tag('x')
stamp(2)
s0, s1, m_, r_, t_ = vT[0], vT[1], vT[2], vT[3], vT[4]
A('v_dot2_f32_bf16 %s, %s, %s, 0' % (v(s0), v(vXF), sONE))
A('v_dot2_f32_bf16 %s, %s, %s, 0' % (v(s1), v(vXF), v(vXF)))
for j in range(1, 4):
    A('v_dot2_f32_bf16 %s, %s, %s, %s' % (v(s0), v(vXF + j), sONE, v(s0)))
    A('v_dot2_f32_bf16 %s, %s, %s, %s' % (v(s1), v(vXF + j), v(vXF + j), v(s1)))
A('v_permlane32_swap_b32 %s, %s' % (v(s0), v(s1)))
A('v_add_f32 %s, %s, %s' % (v(s0), v(s0), v(s1)))
allred_rows(s0, s1, 'add', (16,))
for ror in (8, 4, 2): dpp_add(s0, ror)
dpp(s1, s0, 'row_ror:1'); dpp(s0, s0, 'row_ror:1')
A('v_permlane32_swap_b32 %s, %s' % (v(s0), v(s1)))
ln_stats(s0, s1, m_, r_, t_)
wait_tag('xr')
A('v_lshlrev_b32 %s, 16, %s' % (v(s0), v(vXR)))
A('v_and_b32 %s, 0xffff0000, %s' % (v(s1), v(vXR)))
A('v_sub_f32 %s, %s, %s' % (v(s0), v(s0), v(m_)))
A('v_sub_f32 %s, %s, %s' % (v(s1), v(s1), v(m_)))
A('v_cvt_pk_bf16_f32 %s, %s, %s' % (v(t_), v(s0), v(s1)))
A('v_lshlrev_b32 %s, 16, %s' % (v(s0), v(t_)))
A('v_and_b32 %s, 0xffff0000, %s' % (v(s1), v(t_)))
A('v_mul_f32 %s, %s, %s' % (v(s0), v(s0), v(r_)))
A('v_mul_f32 %s, %s, %s' % (v(s1), v(s1), v(r_)))
A('v_cvt_pk_bf16_f32 %s, %s, %s' % (v(vXR), v(s0), v(s1)))
wait_tag('wq')
stamp(3)
perm_pairs(vFA, vWQa, vWQb, 4)
for e in range(8): A('v_dot2_f32_bf16 %s, %s, %s, 0' % (v(vY + e), v(vFA + e), v(vXR)))
reduce8(vY)
dpp_add(vY, 8); dpp_add(vY + 1, 8)
A('ds_write_b64 %s, %s' % (v(vT[5]), v(vY, 2)))
A('s_waitcnt lgkmcnt(0)')
A('s_add_u32 %s, %s, 1' % (sTA, sTA))
A('s_andn2_b32 %s, %s, 15' % (sTB, sTB))
A('s_and_b32 %s, %s, 15' % (sXT, sXT))
A('s_or_b32 %s, %s, %s' % (sXT, sXT, sTB))
A('s_barrier')
A('v_mov_b32 %s, %s' % (v(vG + 2), sTA))
A('v_mov_b32 %s, %s' % (v(vG + 3), sTB))
A('s_cmp_lg_u32 %s, 0' % sW)
A('s_cbranch_scc1 L_NOPUB1')
for i in range(4): A('ds_read_b64 %s, %s offset:%d' % (v(vY + 2 * i, 2), v(vT[6]), 256 * i))
A('s_waitcnt lgkmcnt(0)')
A('v_pk_add_f32 %s, %s, %s' % (v(vY, 2), v(vY, 2), v(vY + 2, 2)))
A('v_pk_add_f32 %s, %s, %s' % (v(vY + 4, 2), v(vY + 4, 2), v(vY + 6, 2)))
A('v_pk_add_f32 %s, %s, %s' % (v(vG, 2), v(vY, 2), v(vY + 4, 2)))
allred_rows(vG, vY, 'add', (32,)); allred_rows(vG + 1, vY + 1, 'add', (32,))
A('v_mov_b32 %s, %s' % (v(vG + 3), sXT))
set_exec(0xffffffff)
st_dual(vG, oX, sB, sC)
set_exec(FULL)
A('v_mov_b32 %s, %s' % (v(vG + 3), sTB))
A('L_NOPUB1:')
issued('st', True); issued('st', True)
stamp(4)
A('v_bfe_u32 %s, %s, 2, 2' % (v(vT[1]), v(vL)))
A('v_bfe_u32 %s, %s, 4, 1' % (v(vT[2]), v(vL)))
A('v_lshl_or_b32 %s, %s, 2, %s' % (v(vT[2]), v(vT[2]), v(vT[1])))
A('v_xor_b32 %s, %s, %s' % (v(vT[2]), v(vT[2]), v(vWv)))
A('v_lshlrev_b32 %s, 5, %s' % (v(vT[2]), v(vT[2])))
A('v_and_b32 %s, 3, %s' % (v(vT[3]), v(vL)))
A('v_lshl_or_b32 %s, %s, 3, %s' % (v(vT[2]), v(vT[3]), v(vT[2])))
A('v_lshl_or_b32 %s, %s, 8, %s' % (v(vT[2]), v(vT[1]), v(vT[2])))
A('v_lshl_or_b32 %s, %s, 11, %s' % (v(oTR), v(vROW), v(vT[2])))
A('v_mul_u32_u24 %s, %d, %s' % (v(oFR), QS, v(vT[3])))
A('v_lshl_add_u32 %s, %s, 4, %s' % (v(oFR), v(vROW), v(oFR)))
A('v_add_u32 %s, 0x%x, %s' % (v(oFR), L_Q, v(oFR)))
A('v_bfe_u32 %s, %s, 4, 4' % (v(vT[0]), v(oV)))
A('v_lshl_add_u32 %s, %s, 2, %s' % (v(vT[1]), v(vWv), v(vROW)))
A('s_cmp_ge_u32 %s, 16' % sR)
A('s_cbranch_scc1 L_AD_G')
A('s_mov_b32 %s, 0' % sROLE)
A('s_lshl_b32 %s, %s, 2' % (sC, sG))
A('s_add_u32 %s, %s, %s' % (sIDX, sE, sC))
A('s_lshl_b32 %s, %s, 17' % (sC, sIDX))
A('s_lshl_b32 %s, %s, 8' % (sD, sRB))
A('s_add_u32 %s, %s, %s' % (sC, sC, sD))
A('s_add_u32 s10, s%d, %s' % (pWO, sC))
A('s_addc_u32 s11, s%d, 0' % (pWO + 1))
A('v_lshlrev_b32 %s, 10, %s' % (v(vT[1]), v(vT[1])))
A('v_lshl_or_b32 %s, %s, 4, %s' % (v(vT[1]), v(vT[0]), v(vT[1])))
A('v_mov_b32 %s, s11' % v(vWA + 1))
A('v_add_co_u32 %s, vcc, s10, %s' % (v(vWA), v(vT[1])))
A('v_addc_co_u32 %s, vcc, 0, %s, vcc' % (v(vWA + 1), v(vWA + 1)))
A('s_mov_b32 %s, 32768' % sSTEP)
A('s_branch L_AD_GO')
A('L_AD_G:')
A('s_sub_u32 %s, %s, 4' % (sD, sE))
A('s_lshl_b32 %s, %s, 2' % (sC, sG))
A('s_mul_i32 %s, %s, 3' % (sIDX, sG))
A('s_add_u32 %s, %s, 4' % (sIDX, sIDX))
A('s_min_u32 %s, %s, %s' % (sC, sC, sIDX))
A('s_add_u32 %s, %s, %s' % (sC, sC, sD))
A('s_lshr_b32 %s, %s, 2' % (sROLE, sG))
A('s_add_u32 %s, %s, %s' % (sROLE, sROLE, sD))
A('s_cmp_eq_u32 %s, 4' % sROLE)
A('s_cselect_b32 %s, 2, 1' % sROLE)
A('s_min_u32 %s, %s, 27' % (sC, sC))
A('s_lshl_b32 %s, %s, 2' % (sIDX, sC))
A('s_add_u32 %s, %s, %s' % (sIDX, sIDX, sRB))
A('s_mul_i32 %s, %s, %d' % (sD, sRB, 128 * 3584))
A('s_lshl_b32 %s, %s, 7' % (sC, sC))
A('s_add_u32 %s, %s, %s' % (sC, sC, sD))
A('v_mul_u32_u24 %s, 3584, %s' % (v(vT[1]), v(vT[1])))
A('v_and_b32 %s, 7, %s' % (v(vT[2]), v(vT[0])))
A('v_lshl_or_b32 %s, %s, 4, %s' % (v(vT[1]), v(vT[2]), v(vT[1])))
A('v_add_u32 %s, %s, %s' % (v(vT[1]), sC, v(vT[1])))
A('v_cmp_lt_u32 vcc, 7, %s' % v(vT[0]))
A('v_mov_b32 %s, s%d' % (v(vT[2]), pWG))
A('v_mov_b32 %s, s%d' % (v(vT[3]), pWU))
A('v_cndmask_b32 %s, %s, %s, vcc' % (v(vWA), v(vT[2]), v(vT[3])))
A('v_mov_b32 %s, s%d' % (v(vT[2]), pWG + 1))
A('v_mov_b32 %s, s%d' % (v(vT[3]), pWU + 1))
A('v_cndmask_b32 %s, %s, %s, vcc' % (v(vWA + 1), v(vT[2]), v(vT[3])))
A('v_add_co_u32 %s, vcc, %s, %s' % (v(vWA), v(vWA), v(vT[1])))
A('v_addc_co_u32 %s, vcc, 0, %s, vcc' % (v(vWA + 1), v(vWA + 1)))
A('s_mov_b32 %s, %d' % (sSTEP, 32 * 3584))
A('L_AD_GO:')
A('s_lshl_b32 %s, %s, 14' % (sO4, sIDX))
A('v_lshrrev_b32 %s, 5, %s' % (v(vPI), v(vL)))
A('v_and_b32 %s, 31, %s' % (v(vT[2]), v(vL)))
A('v_lshl_or_b32 %s, %s, 5, %s' % (v(vT[2]), v(vWv), v(vT[2])))
A('v_mul_u32_u24 %s, %d, %s' % (v(vT[1]), 2 * E1_K, v(vPI)))
A('v_lshl_add_u32 %s, %s, 4, %s' % (v(vT[0]), v(vT[2]), v(vT[1])))
if NOFAST: A('s_add_u32 %s, %s, 0x%x' % (sA, sA, E1_FS))
A('s_add_u32 %s, %s, %d' % (sB, sA, E1_K))
A('v_lshlrev_b32 %s, 2, %s' % (v(vT[1]), v(vT[2])))
A('v_lshl_or_b32 %s, %s, 1, %s' % (v(vT[1]), v(vPI), v(vT[1])))
A('v_lshrrev_b32 %s, 1, %s' % (v(vT[2]), v(vWv)))
A('v_lshl_add_u32 %s, %s, 4, %s' % (v(vT[1]), v(vT[2]), v(vT[1])))
A('v_add_u32 %s, 0x%x, %s' % (v(vT[1]), L_Q, v(vT[1])))
A('v_lshlrev_b32 %s, 2, %s' % (v(vT[4]), v(vWv)))
A('v_add_u32 %s, 0x%x, %s' % (v(vT[4]), L_FLG, v(vT[4])))
A('v_mov_b32 %s, 0x%x' % (v(vT[5]), L_FLG))
A('v_lshl_add_u32 %s, %s, 4, %s' % (v(vT[2]), v(vWv), v(vL15)))
A('v_lshlrev_b32 %s, 8, %s' % (v(vT[2]), v(vT[2])))
A('v_xor_b32 %s, %s, %s' % (v(vT[3]), v(vROW), v(vL15)))
A('v_lshl_or_b32 %s, %s, 4, %s' % (v(vT[2]), v(vT[3]), v(vT[2])))
A('v_mov_b32 %s, 0' % v(vA4 + 3))
A('s_barrier')
for o in S2: op(o)
wait_tag('K3')
for j in range(4):
    if j: A('v_xor_b32 %s, 0x%x, %s' % (v(vT[3]), 64 * j, v(vT[2])))
    A('ds_read_b128 %s, %s offset:%d' % (v(vK + 4 * j, 4), v(vT[3] if j else vT[2]), L_K))
def tdma():
    A('s_lshl_b32 %s, %s, 10' % (sM0, sW))
    A('s_add_u32 %s, %s, %d' % (sM0, sM0, L_W))
    for i in range(4):
        A('s_mov_b32 m0, %s' % sM0)
        A('global_load_lds_dwordx4 %s, off nt' % v(vWA, 2))
        if i < 3:
            A('v_add_co_u32 %s, vcc, %s, %s' % (v(vWA), sSTEP, v(vWA)))
            A('s_add_u32 %s, %s, 8192' % (sM0, sM0))
            A('v_addc_co_u32 %s, vcc, 0, %s, vcc' % (v(vWA + 1), v(vWA + 1)))
wait_tag('P0')
tagcheck([vP0, vP0 + 4], True)
A('s_cbranch_vccz L_E1_OK0')
stamp(15)
for _ in range(OPT('retry', 0)):
    A(ldws(vP0, vT[0], sA)); A(ldws(vP0 + 4, vT[0], sB))
    A('s_waitcnt vmcnt(0)')
    tagcheck([vP0, vP0 + 4], True)
    A('s_cbranch_vccz L_E1_OK0')
A(ldws(vP0, vT[0], sA)); A(ldws(vP0 + 4, vT[0], sB))
for o in S3: op(o, False)
A('s_waitcnt vmcnt(%d)' % sum(2 if o == 'TT' else 1 for o in S3 if o))
tagcheck([vP0, vP0 + 4], True)
A('s_cbranch_vccz L_E1_OK')
A('s_mov_b32 %s, 0x%x' % (sC, (-E1_FS if NOFAST else E1_FS) & 0xffffffff))
def flip():
    A('s_add_u32 %s, %s, %s' % (sA, sA, sC))
    A('s_add_u32 %s, %s, %s' % (sB, sB, sC))
    A('s_sub_u32 %s, 0, %s' % (sC, sC))
poll([ldws(vP0, vT[0], sA), ldws(vP0 + 4, vT[0], sB)], [vP0, vP0 + 4], each=flip, xcc=True)
A('s_branch L_E1_OK')
A('L_E1_OK0:')
for o in S3: op(o)
A('L_E1_OK:')
A('v_pk_add_f32 %s, %s, %s' % (v(vP0, 2), v(vP0, 2), v(vP0 + 4, 2)))
A('v_xor_b32 %s, %s, %s' % (v(vP0 + 3), sXT, v(vP0 + 3)))
A('v_xor_b32 %s, %s, %s' % (v(vP0 + 7), sXT, v(vP0 + 7)))
A('v_permlane32_swap_b32 %s, %s' % (v(vP0), v(vP0 + 1)))
A('v_or_b32 %s, %s, %s' % (v(vP0 + 3), v(vP0 + 3), v(vP0 + 7)))
A('v_add_f32 %s, %s, %s' % (v(vP0), v(vP0), v(vP0 + 1)))
A('v_cmp_ne_u32 vcc, 0, %s' % v(vP0 + 3))
A('v_cvt_pk_bf16_f32 %s, %s, %s' % (v(vP0), v(vP0), v(vP0)))
A('s_or_b32 %s, vcc_lo, vcc_hi' % sC)
A('ds_write_b16 %s, %s' % (v(vT[1]), v(vP0)))
A('v_mov_b32 %s, %s' % (v(vP0 + 1), sC))
A('ds_write_b32 %s, %s' % (v(vT[4]), v(vP0 + 1)))
A('s_waitcnt lgkmcnt(0)')
A('s_barrier')
stamp(6)
for j in range(4): A('ds_read_b128 %s, %s offset:%d' % (v(vFB + 4 * j, 4), v(oFR), 64 * j))
A('ds_read_b128 %s, %s' % (v(vFA + 8, 4), v(vT[5])))
A('ds_read_b128 %s, %s offset:16' % (v(vFA + 12, 4), v(vT[5])))
A('s_mov_b32 %s, 0x%x' % (sB, LOG2E))
A('v_and_b32 %s, 3, %s' % (v(vT[6]), v(vL)))
A('v_lshlrev_b32 %s, 5, %s' % (v(vT[7]), v(vT[6])))
A('v_add_u32 %s, 0x%x, %s' % (v(vT[7]), L_MAX, v(vT[7])))
A('v_lshl_add_u32 %s, %s, 2, %s' % (v(vT[3]), v(vWv), v(vT[7])))
for j in range(4):
    A('s_waitcnt lgkmcnt(%d)' % (5 - j))
    A('v_mfma_f32_16x16x32_bf16 %s, %s, %s, %s' % (v(vACC, 4), v(vK + 4 * j, 4), v(vFB + 4 * j, 4), '0' if j == 0 else v(vACC, 4)))
A('v_lshlrev_b32 %s, 4, v0' % v(vT[0]))
if GT == 1:
    A('s_cmp_lg_u32 %s, 1' % sROLE)
    A('s_cbranch_scc1 L_T_NG')
    tdma()
    A('v_and_b32 %s, 0xff0, %s' % (v(vT[0]), v(vT[0])))
    A('s_lshl_b32 %s, %s, 12' % (sC, sIDX))
    A('s_add_u32 %s, %s, 0x%x' % (sC, sC, WS_E4))
    A(ldws(vPF, vT[0], sC))
    A('s_branch L_T_DONE')
    A('L_T_NG:')
A('s_cmp_lg_u32 %s, 0' % sROLE)
A('s_cbranch_scc1 L_T_SKIP')
tdma()
A('s_lshl_b32 %s, %s, 17' % (sC, sG))
A('s_lshl_b32 %s, %s, 13' % (sD, sR))
A('s_add_u32 %s, %s, %s' % (sC, sC, sD))
A('s_add_u32 %s, %s, 0x%x' % (sC, sC, WS_E2))
A(ldws(vPF, vT[0], sC))
A('s_branch L_T_DONE')
A('L_T_SKIP:')
A('v_and_b32 %s, 0xff0, %s' % (v(vT[0]), v(vT[0])))
A('s_lshl_b32 %s, %s, 12' % (sC, sIDX))
A('s_add_u32 %s, %s, 0x%x' % (sC, sC, WS_E4))
A(ldws(vPF, vT[0], sC))
for i in range(4): A('buffer_load_dword %s, %s, %s, 0 offen' % (v(vA4 + i), v(oXR), srd(SRD_X)))
A('L_T_DONE:')
for i in range(5): issued('T')
A('v_mul_u32_u24 %s, %d, %s' % (v(vT[8]), QS, v(vT[6])))
A('v_lshl_add_u32 %s, %s, 5, %s' % (v(vT[8]), v(vWv), v(vT[8])))
A('v_lshl_add_u32 %s, %s, 3, %s' % (v(vT[8]), v(vROW), v(vT[8])))
A('v_add_u32 %s, 0x%x, %s' % (v(vT[8]), L_P, v(vT[8])))
A('s_waitcnt lgkmcnt(0)')
A('v_or3_b32 %s, %s, %s, %s' % (v(vFA + 8), v(vFA + 8), v(vFA + 9), v(vFA + 10)))
A('v_or3_b32 %s, %s, %s, %s' % (v(vFA + 11), v(vFA + 11), v(vFA + 12), v(vFA + 13)))
A('v_or3_b32 %s, %s, %s, %s' % (v(vFA + 8), v(vFA + 8), v(vFA + 14), v(vFA + 15)))
A('v_or_b32 %s, %s, %s' % (v(vFA + 8), v(vFA + 8), v(vFA + 11)))
A('v_readfirstlane_b32 %s, %s' % (sFAST, v(vFA + 8)))
A('s_cmp_eq_u32 %s, 0' % sFAST)
A('s_cselect_b32 %s, %d, 0' % (sFAST, 0 if NOFAST else 1))
S = vY
for h in range(2): A('v_cvt_pk_bf16_f32 %s, %s, %s' % (v(vT[4 + h]), v(vACC + 2 * h), v(vACC + 2 * h + 1)))
for h in range(2):
    A('v_lshlrev_b32 %s, 16, %s' % (v(S + 2 * h), v(vT[4 + h])))
    A('v_and_b32 %s, 0xffff0000, %s' % (v(S + 2 * h + 1), v(vT[4 + h])))
for i in range(4): A('v_mul_f32 %s, 0x%x, %s' % (v(S + i), SCALE, v(S + i)))
for h in range(2): A('v_cvt_pk_bf16_f32 %s, %s, %s' % (v(vT[4 + h]), v(S + 2 * h), v(S + 2 * h + 1)))
for h in range(2):
    A('v_lshlrev_b32 %s, 16, %s' % (v(S + 2 * h), v(vT[4 + h])))
    A('v_and_b32 %s, 0xffff0000, %s' % (v(S + 2 * h + 1), v(vT[4 + h])))
A('v_max3_f32 %s, %s, %s, %s' % (v(vT[4]), v(S), v(S + 1), v(S + 2)))
A('v_max_f32 %s, %s, %s' % (v(vT[4]), v(vT[4]), v(S + 3)))
allred_rows(vT[4], vT[5], 'max')
A('ds_write_b32 %s, %s' % (v(vT[3]), v(vT[4])))
A('s_waitcnt lgkmcnt(0)')
A('s_barrier')
A('ds_read_b128 %s, %s' % (v(vFA, 4), v(vT[7])))
A('ds_read_b128 %s, %s offset:16' % (v(vFA + 4, 4), v(vT[7])))
A('s_waitcnt lgkmcnt(0)')
A('v_max3_f32 %s, %s, %s, %s' % (v(vT[4]), v(vFA), v(vFA + 1), v(vFA + 2)))
A('v_max3_f32 %s, %s, %s, %s' % (v(vT[5]), v(vFA + 3), v(vFA + 4), v(vFA + 5)))
A('v_max3_f32 %s, %s, %s, %s' % (v(vT[4]), v(vT[4]), v(vFA + 6), v(vFA + 7)))
A('v_max_f32 %s, %s, %s' % (v(vG2), v(vT[4]), v(vT[5])))
A('v_mul_f32 %s, %s, %s' % (v(vT[5]), sB, v(vG2)))
for i in range(4): A('v_fma_f32 %s, %s, %s, -%s' % (v(S + i), v(S + i), sB, v(vT[5])))
for i in range(4): A('v_exp_f32 %s, %s' % (v(S + i), v(S + i)))
A('v_add_f32 %s, %s, %s' % (v(vT[4]), v(S), v(S + 1)))
A('v_add_f32 %s, %s, %s' % (v(vT[5]), v(S + 2), v(S + 3)))
A('v_cvt_pk_bf16_f32 %s, %s, %s' % (v(S + 4), v(S), v(S + 1)))
A('v_cvt_pk_bf16_f32 %s, %s, %s' % (v(S + 5), v(S + 2), v(S + 3)))
A('v_add_f32 %s, %s, %s' % (v(vT[4]), v(vT[4]), v(vT[5])))
A('ds_write_b64 %s, %s' % (v(vT[8]), v(S + 4, 2)))
allred_rows(vT[4], vT[5], 'add')
A('ds_write_b32 %s, %s offset:128' % (v(vT[3]), v(vT[4])))
A('s_waitcnt lgkmcnt(0)')
A('s_barrier')
stamp(7)
def trread(b):
    A('ds_read_b64_tr_b16 %s, %s offset:%d' % (v(vFA + 4 * b, 2), v(oTR), L_V + 8192 * b))
    A('ds_read_b64_tr_b16 %s, %s offset:%d' % (v(vFA + 4 * b + 2, 2), v(oTR), L_V + 8192 * b + 1024))
def pvm(b):
    A('v_mfma_f32_16x16x32_bf16 %s, %s, %s, %s' % (v(vACC, 4), v(vFB + 4 * b, 4), v(vFA + 4 * b, 4), '0' if b == 0 else v(vACC, 4)))
A('v_bfe_u32 %s, %s, 2, 2' % (v(vT[4]), v(vL)))
A('v_mul_u32_u24 %s, %d, %s' % (v(vT[4]), QS, v(vT[4])))
A('v_lshl_add_u32 %s, %s, 4, %s' % (v(vT[4]), v(vROW), v(vT[4])))
A('v_add_u32 %s, 0x%x, %s' % (v(vT[4]), L_P, v(vT[4])))
A('v_lshlrev_b32 %s, 5, %s' % (v(vT[7]), v(vROW)))
A('v_add_u32 %s, 0x%x, %s' % (v(vT[7]), L_MAX, v(vT[7])))
for b in range(4): A('ds_read_b128 %s, %s offset:%d' % (v(vFB + 4 * b, 4), v(vT[4]), 64 * b))
A('ds_read_b128 %s, %s offset:128' % (v(vY, 4), v(vT[7])))
A('ds_read_b128 %s, %s offset:144' % (v(vY + 4, 4), v(vT[7])))
A('ds_read_b128 %s, %s' % (v(vW1p, 4), v(vT[7])))
A('ds_read_b128 %s, %s offset:16' % (v(vW1p + 4, 4), v(vT[7])))
A('v_lshlrev_b32 %s, 4, %s' % (v(oW2), v(vCC)))
A('v_lshl_or_b32 %s, %s, 7, %s' % (v(vT[8]), v(vWv), v(oW2)))
A('v_lshl_or_b32 %s, %s, 10, %s' % (v(vT[8]), v(vROW), v(vT[8])))
A('s_lshl_b32 %s, %s, 12' % (sB, sJ))
A('s_add_u32 %s, %s, 0x%x' % (sB, sB, WS_E2))
A('s_waitcnt lgkmcnt(0)')
A('v_pk_add_f32 %s, %s, %s' % (v(vY, 2), v(vY, 2), v(vY + 2, 2)))
A('v_pk_add_f32 %s, %s, %s' % (v(vY + 4, 2), v(vY + 4, 2), v(vY + 6, 2)))
A('v_max3_f32 %s, %s, %s, %s' % (v(vW1p), v(vW1p), v(vW1p + 1), v(vW1p + 2)))
A('v_pk_add_f32 %s, %s, %s' % (v(vY, 2), v(vY, 2), v(vY + 4, 2)))
A('v_max3_f32 %s, %s, %s, %s' % (v(vW1p + 3), v(vW1p + 3), v(vW1p + 4), v(vW1p + 5)))
A('v_add_f32 %s, %s, %s' % (v(vY), v(vY), v(vY + 1)))
A('v_max3_f32 %s, %s, %s, %s' % (v(vW1p), v(vW1p), v(vW1p + 6), v(vW1p + 7)))
A('v_log_f32 %s, %s' % (v(vG2 + 2), v(vY)))
A('v_rcp_f32 %s, %s' % (v(vY), v(vY)))
A('v_max_f32 %s, %s, %s' % (v(vW1p), v(vW1p), v(vW1p + 3)))
A('v_mov_b32 %s, %s' % (v(vG2 + 3), sTA))
A('v_fmac_f32 %s, 0x%x, %s' % (v(vG2 + 2), LOG2E, v(vW1p)))
wait_tag('V2')
A('s_barrier')
trread(0); trread(1); trread(2)
A('s_waitcnt lgkmcnt(4)'); pvm(0)
A('s_waitcnt lgkmcnt(2)'); pvm(1)
A('s_waitcnt lgkmcnt(0)'); pvm(2)
wait_tag('V3')
A('s_barrier')
trread(3)
A('s_waitcnt lgkmcnt(0)'); pvm(3)
A('s_cmp_eq_u32 %s, 0' % sFAST)
A('v_mul_f32 %s, %s, %s' % (v(vG2), v(vACC), v(vY)))
A('v_mov_b32_dpp %s, %s row_ror:8 row_mask:0xf bank_mask:0xf' % (v(vG2 + 1), v(vG2)))
set_exec(0x00ff00ff00ff00ff)
st_grp(vG2, vT[8], sB)
set_exec(FULL)
stamp(8)
A('s_cmp_eq_u32 %s, 2' % sROLE)
A('s_cbranch_scc1 L_FIN')
A('s_cmp_eq_u32 %s, 1' % sROLE)
A('s_cbranch_scc0 L_PRE_GO')
if GT == 0: tdma()
A('s_lshl_b32 %s, %s, 11' % (sM0, sW))
A('s_add_u32 %s, %s, %s' % (sO4, sO4, sM0))
A('s_add_u32 %s, %s, %d' % (sM0, sM0, L_K))
A('s_mov_b32 m0, %s' % sM0)
A('s_lshl_b32 %s, %s, 1' % (sC, sW))
A('s_and_b32 %s, %s, 2' % (sC, sC))
A('s_and_b32 %s, %s, 4' % (sD, sW))
A('s_or_b32 %s, %s, %s' % (sC, sC, sD))
A('s_lshl_b32 %s, %s, 5' % (sC, sC))
A('v_xor_b32 %s, %s, %s' % (v(vT[3]), sC, v(oX)))
A('buffer_load_dwordx4 %s, %s, %s offen nt lds' % (v(vT[3]), srd(SRD_W2), sO4))
A('v_xor_b32 %s, 32, %s' % (v(vT[3]), v(vT[3])))
A('buffer_load_dwordx4 %s, %s, %s offen offset:1024 nt lds' % (v(vT[3]), srd(SRD_W2), sO4))
A('L_PRE_GO:')
A('s_lshl_b32 %s, %s, 7' % (sB, sW))
A('s_lshl_b32 %s, %s, 17' % (sA, sG))
A('s_add_u32 %s, %s, %s' % (sA, sA, sB))
A('v_lshl_or_b32 %s, %s, 3, %s' % (v(vT[3]), v(vPI), v(vCC)))
A('v_lshl_or_b32 %s, %s, 4, %s' % (v(vT[3]), v(vWv), v(vT[3])))
A('v_lshlrev_b32 %s, 1, %s' % (v(vT[5]), v(vT[3])))
A('v_add_u32 %s, 0x%x, %s' % (v(vT[3]), L_ACC, v(vT[5])))
A('v_lshlrev_b32 %s, 4, %s' % (v(vT[2]), v(vROW)))
A('v_add_u32 %s, 0x%x, %s' % (v(vT[2]), L_ACC, v(vT[2])))
g4 = [vP0, vP0 + 4, vP1, vP1 + 4]
l4 = [ldws(g4[i], vT[0], s) for i, s in enumerate((sA, sB, sC, sD))]
def wtr():
    for b in range(4):
        A('ds_read_b64_tr_b16 %s, %s offset:%d' % (v(vW1 + 4 * b, 2), v(vT[1]), 8192 * b))
        A('ds_read_b64_tr_b16 %s, %s offset:%d' % (v(vW1 + 4 * b + 2, 2), v(vT[1]), 8192 * b + 1024))
def bfrag():
    for b in range(4): A('ds_read_b128 %s, %s offset:%d' % (v(vFB + 4 * b, 4), v(vT[2]), 64 * b))
def wmfma(acc, afn, bfn, waits=True):
    for b in range(4):
        if waits: A('s_waitcnt lgkmcnt(%d)' % (3 - b))
        A('v_mfma_f32_16x16x32_bf16 %s, %s, %s, %s' % (v(acc, 4), v(afn(b), 4), v(bfn(b), 4), '0' if b == 0 else v(acc, 4)))
def resid1(x, base, t0):
    A('v_cvt_pk_bf16_f32 %s, %s, %s' % (v(x), v(x), v(x)))
    A('v_and_b32 %s, 0xffff0000, %s' % (v(x), v(x)))
    A('v_add_f32 %s, %s, %s' % (v(x), v(x), v(base)))
    A('v_cvt_pk_bf16_f32 %s, %s, %s' % (v(x), v(x), v(x)))
A('s_cmp_eq_u32 %s, 1' % sROLE)
A('s_cbranch_scc1 L_ROLE_G')
A('v_lshl_or_b32 %s, %s, 12, %s' % (v(vT[0]), v(vRG8), v(oW2)))
A('s_and_b32 %s, %s, 3' % (sB, sIDX))
A('s_lshl_b32 %s, %s, 10' % (sB, sB))
A('s_add_u32 %s, %s, %s' % (sA, sA, sB))
A('s_add_u32 %s, %s, 0x%x' % (sA, sA, WS_E2))
A('s_add_u32 %s, %s, 0x8000' % (sB, sA))
A('s_add_u32 %s, %s, 0x10000' % (sC, sA))
A('s_add_u32 %s, %s, 0x18000' % (sD, sA))
A('v_add_u32 %s, 0x%x, %s' % (v(vT[1]), L_W, v(oTR)))
A('v_lshl_or_b32 %s, %s, 17, %s' % (v(vT[4]), v(vRG8), v(oW2)))
A('v_and_b32 %s, 8, %s' % (v(vT[6]), v(vL)))
A('v_cmp_ne_u32 %s, 0, %s' % (sMSK, v(vT[6])))
A('s_lshl_b32 %s, %s, 15' % (sKV, sRB))
A('s_lshl_b32 %s, %s, 10' % (sM0, sIDX))
A('s_add_u32 %s, %s, %s' % (sKV, sKV, sM0))
A('s_lshl_b32 %s, %s, 7' % (sM0, sW))
A('s_add_u32 %s, %s, %s' % (sKV, sKV, sM0))
A('s_add_u32 %s, %s, 0x%x' % (sKV, sKV, WS_E3))
A('s_waitcnt vmcnt(0)')
for l in l4: A(l)
A('s_barrier')
stamp(9)
wtr()
def lammax():
    A('v_max3_f32 %s, %s, %s, %s' % (v(vT[5]), v(g4[0] + 2), v(g4[1] + 2), v(g4[2] + 2)))
    A('v_max_f32 %s, %s, %s' % (v(vT[5]), v(vT[5]), v(g4[3] + 2)))
mpoll(l4, g4, chk_lam, first_in_flight=True, extra=lammax)
stamp(10)
dpp_add(vT[5], 8, 'max')
allred_rows(vT[5], vT[6], 'max')
for i in range(4): A('v_sub_f32 %s, %s, %s' % (v(g4[i] + 2), v(g4[i] + 2), v(vT[5])))
for i in range(4): A('v_exp_f32 %s, %s' % (v(g4[i] + 2), v(g4[i] + 2)))
A('v_mul_f32 %s, %s, %s' % (v(vP0), v(vP0 + 2), v(vP0)))
A('v_mul_f32 %s, %s, %s' % (v(vP0 + 1), v(vP0 + 2), v(vP0 + 1)))
for i in range(1, 4):
    A('v_fmac_f32 %s, %s, %s' % (v(vP0), v(g4[i] + 2), v(g4[i])))
    A('v_fmac_f32 %s, %s, %s' % (v(vP0 + 1), v(g4[i] + 2), v(g4[i] + 1)))
    A('v_add_f32 %s, %s, %s' % (v(vP0 + 2), v(vP0 + 2), v(g4[i] + 2)))
A('v_mov_b32 %s, %s' % (v(vP0 + 3), v(vP0 + 2)))
A('v_permlane32_swap_b32 %s, %s' % (v(vP0), v(vP0 + 1)))
A('v_permlane32_swap_b32 %s, %s' % (v(vP0 + 2), v(vP0 + 3)))
A('v_add_f32 %s, %s, %s' % (v(vP0), v(vP0), v(vP0 + 1)))
A('v_add_f32 %s, %s, %s' % (v(vP0 + 2), v(vP0 + 2), v(vP0 + 3)))
A('v_mov_b32 %s, %s' % (v(vP0 + 1), v(vP0)))
A('v_mov_b32 %s, %s' % (v(vP0 + 3), v(vP0 + 2)))
A('v_permlane16_swap_b32 %s, %s' % (v(vP0), v(vP0 + 1)))
A('v_permlane16_swap_b32 %s, %s' % (v(vP0 + 2), v(vP0 + 3)))
A('v_add_f32 %s, %s, %s' % (v(vP0 + 2), v(vP0 + 2), v(vP0 + 3)))
A('v_add_f32 %s, %s, %s' % (v(vP0), v(vP0), v(vP0 + 1)))
dpp_add(vP0 + 2, 8); dpp_add(vP0, 8)
A('v_rcp_f32 %s, %s' % (v(vP0 + 2), v(vP0 + 2)))
A('v_mul_f32 %s, %s, %s' % (v(vP0), v(vP0), v(vP0 + 2)))
A('v_cvt_pk_bf16_f32 %s, %s, %s' % (v(vP0), v(vP0), v(vP0)))
A('ds_write_b16 %s, %s' % (v(vT[3]), v(vP0)))
A('s_waitcnt lgkmcnt(0)')
A('s_barrier')
bfrag()
wmfma(vACC, lambda b: vFB + 4 * b, lambda b: vW1 + 4 * b)
A('v_mov_b32_dpp %s, %s row_ror:8 row_mask:0xf bank_mask:0xf' % (v(vT[6]), v(vACC)))
A('v_cndmask_b32 %s, %s, %s, %s' % (v(vG), v(vACC + 1), v(vT[6]), sMSK))
A('v_cndmask_b32 %s, %s, %s, %s' % (v(vG + 1), v(vT[6]), v(vACC + 1), sMSK))
stws(vG, vT[4], sKV)
stamp(11)
A('s_cmp_lg_u32 %s, 0' % sRB)
A('s_cbranch_scc1 L_FIN')
A('v_bfe_u32 %s, v0, 3, 5' % v(vT[0]))
A('v_lshl_or_b32 %s, %s, 10, %s' % (v(vT[0]), v(vT[0]), v(oW2)))
A('s_lshr_b32 %s, %s, 3' % (sA, sIDX))
A('s_lshl_b32 %s, %s, 15' % (sA, sA))
A('s_and_b32 %s, %s, 7' % (sB, sIDX))
A('s_lshl_b32 %s, %s, 7' % (sB, sB))
A('s_add_u32 %s, %s, %s' % (sA, sA, sB))
A('s_lshl_b32 %s, %s, 17' % (sB, sG))
A('s_add_u32 %s, %s, %s' % (sA, sA, sB))
A('s_add_u32 %s, %s, 0x%x' % (sA, sA, WS_E3))
A('v_lshlrev_b32 %s, 1, %s' % (v(vT[1]), v(vL15)))
A('s_lshl_b32 %s, %s, 5' % (sD, sIDX))
A('buffer_load_ushort %s, %s, %s, %s offen' % (v(vX4), v(vT[1]), srd(SRD_X), sD))
A('v_lshl_or_b32 %s, %s, 3, %s' % (v(vT[2]), v(vPI), v(vCC)))
A('v_lshl_or_b32 %s, %s, 3, %s' % (v(vT[2]), v(vT[2]), v(vWv)))
A('v_lshlrev_b32 %s, 2, %s' % (v(vT[2]), v(vT[2])))
A('v_add_u32 %s, 0x%x, %s' % (v(vT[2]), L_R1, v(vT[2])))
A('v_lshlrev_b32 %s, 5, %s' % (v(vT[3]), v(vL15)))
A('v_lshl_or_b32 %s, %s, 3, %s' % (v(vT[3]), v(vROW), v(vT[3])))
A('v_add_u32 %s, 0x%x, %s' % (v(vT[3]), L_R1, v(vT[3])))
A('v_lshrrev_b32 %s, 3, v0' % v(vT[4]))
A('v_cmp_gt_u32 %s, 48, %s' % (sMSK, v(vT[4])))
A('v_mul_u32_u24 %s, %d, %s' % (v(vT[4]), E5_S, v(vT[4])))
A('v_add_u32 %s, %s, %s' % (v(vT[4]), v(oW2), v(vT[4])))
A('v_add_u32 %s, %d, %s' % (v(vT[5]), 64 * E5_S, v(vT[4])))
A('v_cndmask_b32 %s, %s, %s, %s' % (v(vT[5]), v(vT[4]), v(vT[5]), sMSK))
A('s_lshl_b32 %s, %s, 7' % (sB, sIDX))
A('s_add_u32 %s, %s, 0x%x' % (sB, sB, WS_E5))
poll([ldws(vP0, vT[0], sA)], [vP0])
red8(vP0)
A('ds_write_b32 %s, %s' % (v(vT[2]), v(vP0)))
A('v_lshlrev_b32 %s, 16, %s' % (v(vX4), v(vX4)))
A('s_waitcnt lgkmcnt(0)')
A('s_barrier')
A('ds_read_b64 %s, %s' % (v(vP1, 2), v(vT[3])))
A('s_waitcnt lgkmcnt(0)')
A('v_add_f32 %s, %s, %s' % (v(vP1), v(vP1), v(vP1 + 1)))
allred_rows(vP1, vP1 + 1, 'add', (16,))
resid1(vP1, vX4, vT[6])
A('v_lshlrev_b32 %s, 16, %s' % (v(vX4), v(vP1)))
stamp(12)
mpoll([ldws(vP0, vT[4], sB), ldws(vP0 + 4, vT[5], sB)], [vP0, vP0 + 4], chk_tags, sleep=SLEEP)
stamp(13)
A('v_cndmask_b32 %s, 0, %s, %s' % (v(vP0 + 4), v(vP0 + 4), sMSK))
A('v_cndmask_b32 %s, 0, %s, %s' % (v(vP0 + 5), v(vP0 + 5), sMSK))
A('v_pk_add_f32 %s, %s, %s' % (v(vP0, 2), v(vP0, 2), v(vP0 + 4, 2)))
red8(vP0)
A('ds_write_b32 %s, %s offset:512' % (v(vT[2]), v(vP0)))
A('s_waitcnt lgkmcnt(0)')
A('s_barrier')
A('s_cmp_lg_u32 %s, 0' % sW)
A('s_cbranch_scc1 L_FIN')
A('ds_read_b64 %s, %s offset:512' % (v(vP0, 2), v(vT[3])))
A('s_waitcnt lgkmcnt(0)')
A('v_add_f32 %s, %s, %s' % (v(vP0), v(vP0), v(vP0 + 1)))
allred_rows(vP0, vP0 + 1, 'add')
resid1(vP0, vX4, vT[6])
set_exec(0xffff)
A('buffer_store_short %s, %s, %s, %s offen' % (v(vP0), v(vT[1]), SRD_OUT, sD))
A('s_cmp_lg_u32 %s, 0' % sIDX)
A('s_cbranch_scc1 L_NOEP')
set_exec(1)
A('buffer_store_dword %s, %s, %s, 0 offen offset:%d' % (v(vG + 2), v(vT[1]), SRD_WS, WS_EPOCH))
A('L_NOEP:')
set_exec(FULL)
stamp(14)
A('s_branch L_FIN')
A('L_ROLE_G:')
A('s_lshl_b32 %s, %s, 8' % (sC, sRB))
A('buffer_load_ushort %s, %s, %s, %s offen' % (v(vXR), v(vT[5]), srd(SRD_X), sC))
A('v_lshl_or_b32 %s, %s, 10, %s' % (v(vT[0]), v(vRG8), v(oW2)))
A('s_and_b32 %s, %s, 1' % (sE, sW))
A('s_lshl_b32 %s, %s, 2' % (sE, sE))
A('s_lshr_b32 %s, %s, 1' % (sD, sW))
A('s_or_b32 %s, %s, %s' % (sC, sE, sD))
A('s_xor_b32 %s, %s, %s' % (sC, sC, sW))
A('s_lshl_b32 %s, %s, 5' % (sC, sC))
A('v_xor_b32 %s, %s, %s' % (v(vT[1]), sC, v(oTR)))
A('v_add_u32 %s, 0x%x, %s' % (v(vT[1]), L_W, v(vT[1])))
A('s_andn2_b32 %s, %s, 3' % (sKV, sIDX))
A('s_add_u32 %s, %s, %s' % (sKV, sKV, sD))
A('s_lshl_b32 %s, %s, 12' % (sKV, sKV))
A('s_add_u32 %s, %s, 0x%x' % (sKV, sKV, WS_E4))
A('s_add_u32 %s, %s, %s' % (sE, sE, sRB))
A('v_lshrrev_b32 %s, 1, %s' % (v(vT[4]), v(vCC)))
A('v_lshlrev_b32 %s, 8, %s' % (v(vT[4]), v(vT[4])))
A('v_and_b32 %s, 1, %s' % (v(vT[6]), v(vL)))
A('v_lshl_or_b32 %s, %s, 4, %s' % (v(vT[4]), v(vT[6]), v(vT[4])))
A('v_lshl_add_u32 %s, %s, 5, %s' % (v(vT[4]), sE, v(vT[4])))
A('s_lshl_b32 %s, %s, 4' % (sE, sE))
A('s_add_u32 %s, %s, 2048' % (sE, sE))
A('v_mov_b32 %s, %s' % (v(vT[7]), sE))
A('v_cmp_eq_u32 s[10:11], 8, %s' % v(vL))
A('v_cmp_ne_u32 s[98:99], 0, %s' % v(vT[6]))
A('v_cndmask_b32 %s, %s, %s, s[10:11]' % (v(oFR), v(vT[4]), v(vT[7])))
A('s_add_u32 %s, %s, 1024' % (sE, sKV))
A('v_and_b32 %s, 8, %s' % (v(vT[6]), v(vL)))
A('v_cmp_ne_u32 %s, 0, %s' % (sMSK, v(vT[6])))
A('v_and_b32 %s, 14, %s' % (v(oWQ), v(vL)))
A('v_lshlrev_b32 %s, 3, %s' % (v(oWQ), v(oWQ)))
A('s_lshl_b32 %s, %s, 15' % (sB, sRB))
A('s_add_u32 %s, %s, %s' % (sA, sA, sB))
A('s_add_u32 %s, %s, 0x%x' % (sA, sA, WS_E3))
A('s_add_u32 %s, %s, 0x2000' % (sB, sA))
A('s_add_u32 %s, %s, 0x4000' % (sC, sA))
A('s_add_u32 %s, %s, 0x6000' % (sD, sA))
A('s_lshl_b32 %s, %s, 12' % (sJ, sIDX))
A('s_add_u32 %s, %s, 0x%x' % (sJ, sJ, WS_E4))
A('s_mul_i32 %s, %s, %d' % (sSTEP, sIDX, E5_S))
A('s_add_u32 %s, %s, 0x%x' % (sSTEP, sSTEP, WS_E5))
A('v_bfe_u32 %s, %s, 3, 1' % (v(vT[6]), v(vL)))
A('v_lshl_or_b32 %s, %s, 1, %s' % (v(vT[6]), v(vROW), v(vT[6])))
A('v_bfe_u32 %s, %s, 2, 1' % (v(vT[7]), v(vL)))
A('v_and_b32 %s, 3, %s' % (v(oK), v(vT[6])))
A('v_lshl_or_b32 %s, %s, 2, %s' % (v(oK), v(vT[7]), v(oK)))
A('v_lshl_or_b32 %s, %s, 3, %s' % (v(vT[6]), v(vT[7]), v(vT[6])))
A('v_lshlrev_b32 %s, 2, %s' % (v(vT[7]), v(vWv)))
A('v_xor_b32 %s, %s, %s' % (v(oK), v(oK), v(vT[7])))
A('v_lshlrev_b32 %s, 5, %s' % (v(oK), v(oK)))
A('v_lshl_or_b32 %s, %s, 10, %s' % (v(oK), v(vT[6]), v(oK)))
A('v_and_b32 %s, 3, %s' % (v(vT[6]), v(vL)))
A('v_lshl_or_b32 %s, %s, 3, %s' % (v(oK), v(vT[6]), v(oK)))
A('v_lshl_or_b32 %s, %s, 7, %s' % (v(oV), v(vROW), v(oW2)))
A('v_lshl_or_b32 %s, %s, 9, %s' % (v(oV), v(vWv), v(oV)))
A('v_cmp_eq_u32 s[100:101], 1, %s' % v(vROW))
A('s_waitcnt vmcnt(0)')
A('s_barrier')
stamp(9)
wtr()
for t4 in range(4):
    if t4: A('v_xor_b32 %s, %d, %s' % (v(vT[6]), 32 * t4, v(oK)))
    A('ds_read_b64_tr_b16 %s, %s offset:%d' % (v(vW2 + 2 * t4, 2), v(vT[6] if t4 else oK), L_K))
for i in range(4): A('v_mov_b32 %s, %s' % (v(vA4 + i), sONE))
A('v_lshlrev_b32 %s, 16, %s' % (v(vXR), v(vXR)))
A('s_waitcnt lgkmcnt(0)')
wmfma(vACC, lambda b: vA4, lambda b: vW1 + 4 * b, waits=False)
A('v_mov_b32 %s, %s' % (v(vG), v(vACC)))
A('v_mov_b32_dpp %s, %s row_ror:8 row_mask:0xf bank_mask:0xf' % (v(vG + 1), v(vACC)))
set_exec(0xff)
st_grp(vG, vT[4], sE)
set_exec(FULL)
stamp(10)
mpoll(l4, g4, chk_tags, sleep=SLEEP)
stamp(11)
A('v_pk_add_f32 %s, %s, %s' % (v(vP0, 2), v(vP0, 2), v(vP0 + 4, 2)))
A('v_pk_add_f32 %s, %s, %s' % (v(vP1, 2), v(vP1, 2), v(vP1 + 4, 2)))
A('v_pk_add_f32 %s, %s, %s' % (v(vP0, 2), v(vP0, 2), v(vP1, 2)))
red8(vP0)
resid1(vP0, vXR, vT[5])
A('ds_write_b16 %s, %s' % (v(vT[3]), v(vP0)))
A('s_waitcnt lgkmcnt(0)')
A('s_barrier')
bfrag()
A('s_bitcmp1_b32 %s, 0' % sW)
A('s_cbranch_scc1 L_ST_UP')
for b in range(4):
    A('s_waitcnt lgkmcnt(%d)' % (3 - b))
    A('v_mfma_f32_16x16x32_bf16 %s, %s, %s, %s' % (v(vACC, 4), v(vFB + 4 * b, 4), v(vW1 + 4 * b, 4), '0' if b == 0 else v(vACC, 4)))
    A('v_mfma_f32_16x16x32_bf16 %s, %s, %s, %s' % (v(vY, 4), v(vFB + 4 * b, 4), v(vFB + 4 * b, 4), '0' if b == 0 else v(vY, 4)))
A('s_branch L_ST_GO')
A('L_ST_UP:')
for b in range(4):
    A('s_waitcnt lgkmcnt(%d)' % (3 - b))
    A('v_mfma_f32_16x16x32_bf16 %s, %s, %s, %s' % (v(vACC, 4), v(vFB + 4 * b, 4), v(vW1 + 4 * b, 4), '0' if b == 0 else v(vACC, 4)))
    A('v_mfma_f32_16x16x32_bf16 %s, %s, %s, %s' % (v(vY, 4), v(vFB + 4 * b, 4), v(vA4, 4), '0' if b == 0 else v(vY, 4)))
A('L_ST_GO:')
A('v_mov_b32_dpp %s, %s row_ror:8 row_mask:0xf bank_mask:0xf' % (v(vG + 1), v(vACC)))
A('v_cndmask_b32 %s, %s, %s, s[10:11]' % (v(vG), v(vACC + 1), v(vY)))
set_exec(0x1ff)
st_grp(vG, oFR, sKV)
set_exec(FULL)
stamp(12)
mpoll([ldws(vP0, oX, sJ), ldws(vP0 + 4, oWQ, sJ, 2048), ldws(vCS, oX, sJ, 1024)], [vP0, vP0 + 4, vCS], chk_tags)
stamp(13)
PR = ((vP0 + 4, vP0 + 5), (vP0, vP0 + 2), (vP0 + 1, vP0 + 3), (vCS, vCS + 2), (vCS + 1, vCS + 3))
for r, d in PR: dpp(r, r, 'quad_perm:[2,3,0,1]')
for r, d in PR: A('v_add_f32_dpp %s, %s, %s row_shr:4 row_mask:0xf bank_mask:0xa' % (v(d), v(r), v(r)))
for r, d in PR: A('v_add_f32_dpp %s, %s, %s row_shl:4 row_mask:0xf bank_mask:0x5' % (v(d), v(r), v(r)))
A('v_mov_b32_dpp %s, %s row_ror:8 row_mask:0xf bank_mask:0xf' % (v(vP0 + 4), v(vP0 + 5)))
A('v_cndmask_b32 %s, %s, %s, %s' % (v(vP0 + 6), v(vP0 + 4), v(vP0 + 5), sMSK))
A('v_cndmask_b32 %s, %s, %s, %s' % (v(vP0 + 7), v(vP0 + 5), v(vP0 + 4), sMSK))
ln_stats(vP0 + 6, vP0 + 7, vT[5], vT[6], vT[7])
for i in range(2): A('v_fma_f32 %s, -%s, %s, %s' % (v(vP0 + i), v(vT[5]), v(vCS + 2 + i), v(vP0 + 2 + i)))
for i in range(2): A('v_mul_f32 %s, %s, %s' % (v(vP0 + i), v(vP0 + i), v(vT[6])))
A('v_cvt_pk_bf16_f32 %s, %s, %s' % (v(vT[7]), v(vP0), v(vP0 + 1)))
A('v_lshlrev_b32 %s, 16, %s' % (v(vP0), v(vT[7])))
A('v_and_b32 %s, 0xffff0000, %s' % (v(vP0 + 1), v(vT[7])))
A('v_max_f32 %s, 0, %s' % (v(vP0 + 2), v(vP0)))
A('v_max_f32 %s, 0, %s' % (v(vP0 + 3), v(vP0 + 1)))
A('v_cndmask_b32 %s, %s, %s, %s' % (v(vP0), v(vP0 + 2), v(vP0), sMSK))
A('v_cndmask_b32 %s, %s, %s, %s' % (v(vP0 + 1), v(vP0 + 3), v(vP0 + 1), sMSK))
dpp(vP0, vP0, 'row_ror:8', 'mul'); dpp(vP0 + 1, vP0 + 1, 'row_ror:8', 'mul')
A('v_cvt_pk_bf16_f32 %s, %s, %s' % (v(vT[7]), v(vP0), v(vP0 + 1)))
A('v_mov_b32_dpp %s, %s quad_perm:[0,0,2,2] row_mask:0xf bank_mask:0xf' % (v(vX4), v(vT[7])))
A('v_mov_b32_dpp %s, %s quad_perm:[1,1,3,3] row_mask:0xf bank_mask:0xf' % (v(vX4 + 1), v(vT[7])))
for t4 in range(4):
    A('v_mfma_f32_16x16x16_bf16 %s, %s, %s, 0' % (v(vFA + 4 * t4, 4), v(vX4, 2), v(vW2 + 2 * t4, 2)))
A('v_cndmask_b32 %s, %s, %s, s[100:101]' % (v(vG), v(vFA), v(vFA + 4)))
A('s_mov_b32 exec_lo, 0')
A('v_mov_b32 %s, %s' % (v(vG), v(vFA + 8)))
A('s_mov_b32 exec_hi, 0xffff0000')
A('v_mov_b32 %s, %s' % (v(vG), v(vFA + 12)))
set_exec(FULL)
A('v_mov_b32_dpp %s, %s row_ror:8 row_mask:0xf bank_mask:0xf' % (v(vG + 1), v(vG)))
set_exec(0x00ff00ff00ff00ff)
stws(vG, oV, sSTEP)
set_exec(FULL)
stamp(14)
A('L_FIN:')
if STAMPS:
    A('s_waitcnt lgkmcnt(0)')
    A('v_mov_b32 %s, 0' % v(vSTAMP))
    for i in range(15): A('v_writelane_b32 %s, s%d, %d' % (v(vSTAMP), 64 + 2 * i, 15 if i == 1 else i))
    A('s_lshl_b32 %s, s2, 9' % sB)
    A('s_lshl_b32 %s, %s, 6' % (sC, sW))
    A('s_add_u32 %s, %s, %s' % (sB, sB, sC))
    A('s_add_u32 %s, %s, 0x%x' % (sB, sB, WS_ST))
    A('v_lshlrev_b32 %s, 2, %s' % (v(vT[9]), v(vL)))
    set_exec(0xffff)
    A('buffer_store_dword %s, %s, %s, %s offen' % (v(vSTAMP), v(vT[9]), SRD_WS, sB))
A('L_END:')
A('s_endpgm')
a.raw('.fill 64, 4, 0xbf800000')
a.raw('.p2align 13, 0')
nv = (NVGPR + 7) // 8 * 8
a.raw('''.section .rodata,"a"
.p2align 6
.amdhsa_kernel %s_kernel
  .amdhsa_next_free_vgpr %d
  .amdhsa_next_free_sgpr 102
  .amdhsa_accum_offset %d
  .amdhsa_group_segment_fixed_size 0
  .amdhsa_kernarg_size 96
  .amdhsa_user_sgpr_count 2
  .amdhsa_user_sgpr_kernarg_segment_ptr 1
  .amdhsa_system_sgpr_workgroup_id_x 1
  .amdhsa_float_denorm_mode_32 3
.end_amdhsa_kernel''' % (NAME, nv, nv))
open(OUT, 'w').write(a.text())
print('wrote', OUT, 'vgprs', NVGPR)
```

```python
import sys
from asmlib import Asm

NAME = 'sequential_preLN__sliding_block_cached__glu_gated_reglu__decode'
STAMPS = '--stamps' in sys.argv
NOFAST = '--nofast' in sys.argv
def OPT(name, d=0):
    for a_ in sys.argv:
        if a_.startswith('--%s=' % name): return int(a_.split('=')[1])
    return d
THIN = OPT('thin', 16); FULLD = OPT('full', 36); SLEEP = OPT('sleep', 0)
LSLEEP = OPT('lsleep', 0)
KD = OPT('kd', 0)
PSTART = OPT('pstart', 1)
GWAIT = OPT('gwait', 0)
OUT = [a for a in sys.argv[1:] if not a.startswith('--')]
OUT = OUT[0] if OUT else 'cdna_kernels/%s.s' % NAME

WS_EPOCH = 0
WS_E1 = 0x10000; E1_K = 4352; E1_G = 4 * E1_K; E1_FS = 0x24000
WS_FL = 0x8000
def SOPT(name, d):
    for a_ in sys.argv:
        if a_.startswith('--%s=' % name): d = a_.split('=')[1]
    return [x for x in d.split(',') if x]
S1 = SOPT('s1', 'K0,K1,K2'); SW = SOPT('sw', ''); S2 = SOPT('s2', 'K3,V0,V1'); S3 = SOPT('s3', 'V2,V3,PT')
S4 = SOPT('s4', 'T0,T1'); S5 = SOPT('s5', ''); S6 = SOPT('s6', 'T2,T3'); S7 = SOPT('s7', '')
WARM = OPT('warm', 1)
GEARLY = OPT('gearly', 0)
NREP = OPT('nrep', 8); FSLEEP = OPT('fsleep', 2); TPOS = OPT('tpos', 1)
WS_E4 = 0x80000
WS_E2 = 0x100000
WS_E3 = 0x200000
WS_E5 = 0x300000; E5_S = 4352
WS_ST = 0x500000
WS_SIZE = 0x600000
QS = 272
L_Q = 0; L_P = L_Q + 4 * QS; L_QACC = L_P + 4 * QS
L_MAX = L_QACC + 2048; L_LS = L_MAX + 128
L_R1 = L_LS + 128; L_R2 = L_R1 + 512; L_ACC = L_R2 + 512
L_FLG = L_ACC + 256
L_CNT = L_FLG + 32
L_V = 8192; L_K = L_V + 32768; L_W = L_K + 32768
LDS_BYTES = L_W + 32768
assert L_CNT + 32 <= L_V and L_CNT % 16 == 0

LOG2E = 0x3fb8aa3b; SCALE = 0x3db504f3; EPS = 0x3727c5ac; INV512 = 0x3b000000; ONES = 0x3f803f80
SPIN = 1 << 16

a = Asm(); A = a
sW, sG, sR = 's3', 's4', 's5'
sTAG = 's[6:7]'; sTA, sTB = 's6', 's7'
sMSK = 's[8:9]'
sSELLO, sSELHI = 's12', 's13'
sCNT = 's14'; sONE = 's15'
SRD_WS = 's[16:19]'; SRD_OUT = 's[20:23]'
sA, sB, sC, sD = 's24', 's25', 's26', 's27'
sKV = 's28'; sJ = 's29'; sSTEP = 's30'; sIDX = 's31'; sRB = 's32'; sM0 = 's33'
sXT = 's34'; sROLE = 's35'
SRD_X, SRD_WQ, SRD_K, SRD_V, SRD_W2 = 36, 40, 44, 48, 52
pWO, pWG, pWU = 56, 60, 62
sO4 = 's58'; sE = 's59'; sFAST = 's96'; sF = 's97'; sVM = 's98'; sVS = 's99'; sKM = 's100'; sKS = 's101'; sTM = 's11'; sTN = 's10'
MS = ['s[40:41]', 's[42:43]', 's[44:45]', 's[46:47]']
def srd(n): return 's[%d:%d]' % (n, n + 3)

class V:
    n = 0
    @classmethod
    def alloc(cls, k=1, align=1):
        cls.n = (cls.n + align - 1) // align * align
        r = cls.n; cls.n += k
        return r
def v(r, k=1): return 'v%d' % r if k == 1 else 'v[%d:%d]' % (r, r + k - 1)
vTID = V.alloc(); vL = V.alloc(); vZ = V.alloc()
vWv = V.alloc(); vPI = V.alloc(); vL15 = V.alloc(); vROW = V.alloc(); vRG8 = V.alloc(); vCC = V.alloc()
vT = [V.alloc() for _ in range(11)]
vOFF = [V.alloc() for _ in range(8)]
vK = V.alloc(16, 4); vW1 = vK
vFB = V.alloc(16, 4); vFA = V.alloc(16, 4)
vXF = vFB; vWQa = vFB + 4; vWQb = vFB + 8
vW2 = V.alloc(8, 4)
vY = V.alloc(8, 4)
vACC = V.alloc(4, 4)
vG = V.alloc(4, 4); vG2 = V.alloc(4, 4)
vP0 = V.alloc(8, 4); vP1 = V.alloc(8, 4)
vCS = V.alloc(4, 4); vA4 = V.alloc(4, 4); vCN = V.alloc(8, 4)
oVD = V.alloc(); oPT = V.alloc()
vXR = V.alloc(2, 2); vX4 = V.alloc(2, 2); vWA = V.alloc(2, 2); vWB = V.alloc(2, 2)
NVGPR = V.n
oX, oXR, oWQ, oK, oV, oW2, oTR, oFR = vOFF

def stamp(i):
    if STAMPS: A('s_memrealtime s[%d:%d]' % (64 + 2 * i, 65 + 2 * i))
lab = [0]
def newlab(p='L'):
    lab[0] += 1
    return '%s%d' % (p, lab[0])
def dpp(d, s, mod, op='add'):
    A('v_%s_f32_dpp %s, %s, %s %s row_mask:0xf bank_mask:0xf' % (op, v(d), v(s), v(s), mod))
def dpp_add(d, ror, op='add'): dpp(d, d, 'row_ror:%d' % ror, op)
def reduce8(y):
    for i in range(4): A('v_permlane32_swap_b32 %s, %s' % (v(y + i), v(y + 4 + i)))
    for i in range(4): A('v_add_f32 %s, %s, %s' % (v(y + i), v(y + i), v(y + 4 + i)))
    for i in range(2): A('v_permlane16_swap_b32 %s, %s' % (v(y + i), v(y + 2 + i)))
    for i in range(2): A('v_add_f32 %s, %s, %s' % (v(y + i), v(y + i), v(y + 2 + i)))
def allred_rows(x, t, op='add', which=(16, 32)):
    for wdt in which:
        A('v_mov_b32 %s, %s' % (v(t), v(x)))
        A('v_permlane%d_swap_b32 %s, %s' % (wdt, v(x), v(t)))
        A('v_%s_f32 %s, %s, %s' % (op, v(x), v(x), v(t)))
def bf16r(d, s):
    A('v_cvt_pk_bf16_f32 %s, %s, %s' % (v(d), v(s), v(s)))
    A('v_and_b32 %s, 0xffff0000, %s' % (v(d), v(d)))
def ln_stats(vsum, vsq, vm, vr, t):
    A('v_mul_f32 %s, 0x%x, %s' % (v(vsum), INV512, v(vsum)))
    A('v_mul_f32 %s, 0x%x, %s' % (v(vsq), INV512, v(vsq)))
    A('v_fma_f32 %s, -%s, %s, %s' % (v(vsq), v(vsum), v(vsum), v(vsq)))
    A('v_max_f32 %s, 0, %s' % (v(vsq), v(vsq)))
    A('v_cvt_pk_bf16_f32 %s, %s, %s' % (v(t), v(vsum), v(vsq)))
    A('v_lshlrev_b32 %s, 16, %s' % (v(vm), v(t)))
    A('v_and_b32 %s, 0xffff0000, %s' % (v(vr), v(t)))
    A('v_add_f32 %s, 0x%x, %s' % (v(vr), EPS, v(vr)))
    bf16r(vr, vr)
    A('v_sqrt_f32 %s, %s' % (v(vr), v(vr)))
    bf16r(vr, vr)
    A('v_rcp_f32 %s, %s' % (v(vr), v(vr)))
def perm_pairs(dst, ra, rb, n):
    for j in range(n):
        A('v_perm_b32 %s, %s, %s, %s' % (v(dst + 2 * j), v(rb + j), v(ra + j), sSELLO))
        A('v_perm_b32 %s, %s, %s, %s' % (v(dst + 2 * j + 1), v(rb + j), v(ra + j), sSELHI))
FULL = (1 << 64) - 1
def set_exec(mask):
    lo, hi = mask & 0xffffffff, mask >> 32
    if mask == FULL: A('s_mov_b64 exec, -1')
    elif hi == 0 and lo <= 64: A('s_mov_b64 exec, %d' % lo)
    elif hi == 0 and lo < 0x80000000: A('s_mov_b64 exec, 0x%x' % lo)
    else:
        A('s_mov_b32 exec_lo, 0x%x' % lo); A('s_mov_b32 exec_hi, 0x%x' % hi)
def mpoll(loads, grans, check, first_in_flight=False, extra=None, sleep=0, each=None):
    top = newlab('P'); done = newlab('D'); chk = newlab('C')
    A('s_mov_b32 %s, %d' % (sCNT, SPIN))
    if not first_in_flight:
        for l in loads: A(l)
    A('s_branch %s' % chk)
    A('%s:' % top)
    if sleep: A('s_sleep %d' % sleep)
    if each: each()
    for i, l in enumerate(loads):
        sk = newlab('K')
        A('s_mov_b64 exec, %s' % MS[i])
        A('s_cbranch_execz %s' % sk)
        A(l)
        A('%s:' % sk)
    A('s_mov_b64 exec, -1')
    A('%s:' % chk)
    A('s_waitcnt vmcnt(0)')
    for i, gq in enumerate(grans): check(i, gq, vY + i)
    for i, gq in enumerate(grans): A('v_cmp_ne_u32 %s, 0, %s' % (MS[i], v(vY + i)))
    if extra: extra()
    A('s_sub_u32 %s, %s, 1' % (sCNT, sCNT))
    A('s_cbranch_scc1 %s' % done)
    A('s_or_b64 vcc, %s, %s' % (MS[0], MS[1 if len(grans) > 1 else 0]))
    for i in range(2, len(grans)): A('s_or_b64 vcc, vcc, %s' % MS[i])
    A('s_cbranch_scc1 %s' % top)
    A('%s:' % done)
def chk_tags(i, gq, t):
    A('v_xor_b32 %s, %s, %s' % (v(t), sTA, v(gq + 2)))
    A('v_xor_b32 %s, %s, %s' % (v(t + 4), sTB, v(gq + 3)))
    A('v_or_b32 %s, %s, %s' % (v(t), v(t), v(t + 4)))
def chk_tagx(i, gq, t):
    A('v_xor_b32 %s, %s, %s' % (v(t), sTA, v(gq + 2)))
    A('v_xor_b32 %s, %s, %s' % (v(t + 4), sTB, v(gq + 3)))
    A('v_and_or_b32 %s, %s, -16, %s' % (v(t), v(t + 4), v(t)))
def chk_lam(i, gq, t):
    A('v_xor_b32 %s, %s, %s' % (v(t), sTA, v(gq + 3)))
    A('v_xor_b32_dpp %s, %s, %s quad_perm:[1,0,3,2] row_mask:0xf bank_mask:0xf' % (v(t + 4), v(gq + 2), v(gq + 2)))
    A('v_or_b32 %s, %s, %s' % (v(t), v(t), v(t + 4)))
def ldws(dst, voff, soff, imm=0):
    return 'buffer_load_dwordx4 %s, %s, %s, %s offen%s sc1' % (v(dst, 4), v(voff), SRD_WS, soff, (' offset:%d' % imm) if imm else '')
def stws(src, voff, soff, sc1=True):
    A('buffer_store_dwordx4 %s, %s, %s, %s offen%s' % (v(src, 4), v(voff), SRD_WS, soff, ' sc1' if sc1 else ''))
def st_grp(src, voff, soff):
    l1 = newlab('S'); l2 = newlab('S')
    A('s_cmp_eq_u32 %s, 0' % sFAST)
    A('s_cbranch_scc1 %s' % l1)
    stws(src, voff, soff, False)
    A('s_branch %s' % l2)
    A('%s:' % l1)
    stws(src, voff, soff, True)
    A('%s:' % l2)
def red8(x):
    A('v_permlane32_swap_b32 %s, %s' % (v(x), v(x + 1)))
    A('v_add_f32 %s, %s, %s' % (v(x), v(x), v(x + 1)))
    allred_rows(x, x + 1, 'add', (16,))
    dpp_add(x, 8)
def resid1(x, base):
    A('v_cvt_pk_bf16_f32 %s, %s, %s' % (v(x), v(x), v(x)))
    A('v_and_b32 %s, 0xffff0000, %s' % (v(x), v(x)))
    A('v_add_f32 %s, %s, %s' % (v(x), v(x), v(base)))
    A('v_cvt_pk_bf16_f32 %s, %s, %s' % (v(x), v(x), v(x)))
def bar():
    A('s_waitcnt lgkmcnt(0)')
    A('s_barrier')
Q = []
def issued(tag, w0=False): Q.append((tag, w0))
def wait_tag(tag):
    i = max(k for k, (t_, _) in enumerate(Q) if t_ == tag)
    young = Q[i + 1:]
    n = sum(1 for _, w in young if not w); e = sum(1 for _, w in young if w)
    if e == 0:
        A('s_waitcnt vmcnt(%d)' % n); return
    l = newlab('W')
    A('s_cmp_eq_u32 %s, 0' % sW)
    A('s_waitcnt vmcnt(%d)' % (n + e))
    A('s_cbranch_scc1 %s' % l)
    A('s_waitcnt vmcnt(%d)' % n)
    A('%s:' % l)
def roles():
    lg = newlab('R'); ld = newlab('R')
    A('s_lshl_b32 %s, %s, 2' % (sC, sG))
    A('s_mov_b32 %s, 0' % sROLE)
    A('s_add_u32 %s, %s, %s' % (sIDX, sE, sC))
    A('s_cmp_lt_u32 %s, 16' % sR)
    A('s_cbranch_scc1 %s' % ld)
    A('s_sub_u32 %s, %s, 4' % (sD, sE))
    A('s_mul_i32 %s, %s, 3' % (sIDX, sG))
    A('s_add_u32 %s, %s, 4' % (sIDX, sIDX))
    A('s_min_u32 %s, %s, %s' % (sC, sC, sIDX))
    A('s_add_u32 %s, %s, %s' % (sC, sC, sD))
    A('s_lshr_b32 %s, %s, 2' % (sROLE, sG))
    A('s_add_u32 %s, %s, %s' % (sROLE, sROLE, sD))
    A('s_cmp_eq_u32 %s, 4' % sROLE)
    A('s_cselect_b32 %s, 2, 1' % sROLE)
    A('s_min_u32 %s, %s, 27' % (sC, sC))
    A('s_lshl_b32 %s, %s, 2' % (sIDX, sC))
    A('s_add_u32 %s, %s, %s' % (sIDX, sIDX, sRB))
    A('%s:' % ld)

head = []
for l in open('cdna_kernels/%s.s.ref' % NAME).read().split('\n'):
    if not l.startswith(';'): break
    head.append('; @launch grid=(256,1,1) block=(512,1,1) lds=%d' % LDS_BYTES if l.startswith('; @launch') else l)
a.raw('\n'.join(head))
a.raw('.amdgcn_target "amdgcn-amd-amdhsa--gfx950"\n.text\n.globl %s_kernel\n.p2align 8\n.type %s_kernel,@function\n%s_kernel:' % (NAME, NAME, NAME))

A('s_cmp_ge_u32 s2, 256')
A('s_cbranch_scc1 L_END')
A('s_load_dwordx2 s[%d:%d], s[0:1], 24' % (SRD_WQ, SRD_WQ + 1))
A('s_load_dwordx2 s[%d:%d], s[0:1], 0' % (SRD_X, SRD_X + 1))
A('s_load_dwordx2 s[16:17], s[0:1], 88')
A('s_load_dwordx2 s[%d:%d], s[0:1], 8' % (SRD_K, SRD_K + 1))
A('v_readfirstlane_b32 %s, v0' % sW)
A('v_and_b32 %s, 63, v0' % v(vL))
A('s_and_b32 %s, s2, 7' % sG)
A('s_lshr_b32 %s, s2, 3' % sR)
A('s_lshr_b32 %s, %s, 6' % (sW, sW))
A('s_and_b32 %s, %s, 3' % (sRB, sR))
A('s_lshr_b32 %s, %s, 2' % (sE, sR))
if STAMPS:
    for i in range(16): A('s_mov_b64 s[%d:%d], 0' % (64 + 2 * i, 65 + 2 * i))
stamp(0)
A('v_lshrrev_b32 %s, 3, v0' % v(vT[0]))
A('v_and_b32 %s, 7, v0' % v(vCC))
A('v_lshlrev_b32 %s, 14, %s' % (v(oWQ), v(vT[0])))
A('v_lshl_or_b32 %s, %s, 4, %s' % (v(oWQ), v(vCC), v(oWQ)))
A('s_lshl_b32 %s, %s, 20' % (sA, sRB))
A('s_lshl_b32 %s, %s, 10' % (sC, sG))
A('s_add_u32 %s, %s, %s' % (sA, sA, sC))
A('s_lshl_b32 %s, %s, 7' % (sC, sE))
A('s_add_u32 %s, %s, %s' % (sA, sA, sC))
A('s_add_u32 %s, %s, 8192' % (sB, sA))
A('s_mov_b32 s%d, 0x400000' % (SRD_WQ + 2)); A('s_mov_b32 s%d, 0x20000' % (SRD_WQ + 3))
A('s_movk_i32 s%d, 1024' % (SRD_X + 2)); A('s_mov_b32 s%d, 0x20000' % (SRD_X + 3))
A('v_lshlrev_b32 %s, 4, %s' % (v(oX), v(vL)))
A('v_lshlrev_b32 %s, 2, %s' % (v(oXR), v(vT[0])))
A('s_lshl_b32 %s, %s, 8' % (sD, sRB))
A('s_waitcnt lgkmcnt(0)')
A('buffer_load_dwordx4 %s, %s, %s, 0 offen' % (v(vXF, 4), v(oX), srd(SRD_X)))
A('buffer_load_dword %s, %s, %s, %s offen' % (v(vXR), v(oXR), srd(SRD_X), sD))
A('buffer_load_dwordx4 %s, %s, %s, %s offen nt' % (v(vWQa, 4), v(oWQ), srd(SRD_WQ), sA))
A('buffer_load_dwordx4 %s, %s, %s, %s offen nt' % (v(vWQb, 4), v(oWQ), srd(SRD_WQ), sB))
for t_ in ('x', 'xr', 'wqa', 'wq', 'fl'): issued(t_)
A('v_lshrrev_b32 %s, 6, v0' % v(vWv))
A('s_mov_b32 s18, 0x%x' % WS_SIZE); A('s_mov_b32 s19, 0x20000')
A('s_lshl_b32 %s, %s, 10' % (sD, sG))
A('s_add_u32 %s, %s, 0x%x' % (sD, sD, WS_FL))
A('v_lshlrev_b32 %s, 7, %s' % (v(vT[1]), v(vWv)))
A('buffer_load_dword %s, %s, %s, %s offen sc1' % (v(vCS), v(vT[1]), SRD_WS, sD))
A('v_and_b32 %s, 15, %s' % (v(vL15), v(vL)))
A('v_lshrrev_b32 %s, 4, %s' % (v(vROW), v(vL)))
A('s_lshl_b32 %s, %s, 23' % (sVS, sG))
A('s_lshl_b32 %s, %s, 15' % (sC, sR))
A('s_add_u32 %s, %s, %s' % (sVS, sVS, sC))
A('s_add_u32 %s, %s, 0x700000' % (sVS, sVS))
A('v_lshl_add_u32 %s, %s, 4, %s' % (v(oK), v(vWv), v(vROW)))
A('v_lshlrev_b32 %s, 8, %s' % (v(oK), v(oK)))
A('v_xor_b32 %s, %s, %s' % (v(vT[1]), v(vL15), v(vROW)))
A('v_lshl_or_b32 %s, %s, 4, %s' % (v(oK), v(vT[1]), v(oK)))
A('s_mov_b32 s%d, 0x4000000' % (SRD_K + 2)); A('s_mov_b32 s%d, 0x20000' % (SRD_K + 3))
A('s_lshl_b32 %s, %s, 12' % (sKM, sW))
A('s_add_u32 %s, %s, %d' % (sKM, sKM, L_K))
A('s_mov_b32 %s, %s' % (sKS, sVS))
A('s_barrier')
def op(o):
    if o.startswith('w:'): wait_tag(o[2:]); return
    if o == 'B': A('s_barrier'); return
    if o[0] == 'K':
        i = int(o[1])
        A('s_mov_b32 m0, %s' % sKM)
        A('v_xor_b32 %s, 0x%x, %s' % (v(vCN + 4), 64 * i, v(oK)))
        A('buffer_load_dwordx4 %s, %s, %s offen offset:%d nt lds' % (v(vCN + 4), srd(SRD_K), sKS, 1024 * i))
    elif o[0] == 'V':
        A('s_mov_b32 m0, %s' % sVM)
        A('s_add_u32 %s, %s, 8192' % (sVM, sVM))
        A('buffer_load_dwordx4 %s, %s, %s offen nt lds' % (v(oVD), srd(SRD_V), sVS))
        A('s_add_u32 %s, %s, 8192' % (sVS, sVS))
    elif o[0] == 'T':
        l1 = newlab('T'); l2 = newlab('T')
        A('s_cmp_gt_u32 %s, %d' % (sROLE, GEARLY))
        A('s_cbranch_scc1 %s' % l1)
        tone()
        A('s_branch %s' % l2)
        A('%s:' % l1)
        A('buffer_load_dword %s, %s, %s, 0 offen' % (v(vCN + 5), v(vZ), srd(SRD_X)))
        A('%s:' % l2)
    elif o == 'PT':
        A(ldws(vCS, oPT, sPT))
    else: raise ValueError(o)
    issued(o)
def tone():
    A('s_mov_b32 m0, %s' % sM0)
    A('s_add_u32 %s, %s, 8192' % (sM0, sM0))
    A('global_load_lds_dwordx4 %s, off nt' % v(vWA, 2))
    A('v_add_co_u32 %s, vcc, %s, %s' % (v(vWA), sSTEP, v(vWA)))
    A('v_addc_co_u32 %s, vcc, 0, %s, vcc' % (v(vWA + 1), v(vWA + 1)))
sPT = 's57'
for o in S1: op(o)
stamp(1)
A('s_load_dwordx2 s[%d:%d], s[0:1], 16' % (SRD_V, SRD_V + 1))
A('s_load_dwordx2 s[%d:%d], s[0:1], 32' % (pWO, pWO + 1))
A('s_load_dwordx4 s[%d:%d], s[0:1], 48' % (pWG, pWG + 3))
A('s_load_dwordx2 s[%d:%d], s[0:1], 64' % (SRD_W2, SRD_W2 + 1))
A('s_load_dwordx2 s[20:21], s[0:1], 72')
A('s_movk_i32 s22, 1024'); A('s_mov_b32 s23, 0x20000')
A('s_mov_b32 %s, 0x05040100' % sSELLO)
A('s_mov_b32 %s, 0x07060302' % sSELHI)
A('s_mov_b32 %s, 0x%x' % (sONE, ONES))
A('s_mov_b32 s%d, 0x4000000' % (SRD_V + 2)); A('s_mov_b32 s%d, 0x20000' % (SRD_V + 3))
A('s_mov_b32 s%d, 0x1c0000' % (SRD_W2 + 2)); A('s_mov_b32 s%d, 0x20000' % (SRD_W2 + 3))
A('v_lshrrev_b32 %s, 3, %s' % (v(vRG8), v(vL)))
A('v_lshrrev_b32 %s, 5, %s' % (v(vPI), v(vL)))
A('v_mov_b32 %s, 0' % v(vZ))
A('s_getreg_b32 %s, hwreg(HW_REG_XCC_ID)' % sXT)
A('s_lshl_b32 %s, %s, 5' % (sJ, sG))
A('s_add_u32 %s, %s, %s' % (sJ, sJ, sR))
A('v_lshlrev_b32 %s, 5, %s' % (v(vT[5]), v(vCC)))
A('v_lshl_or_b32 %s, %s, 3, %s' % (v(vT[5]), v(vROW), v(vT[5])))
A('v_lshl_or_b32 %s, %s, 8, %s' % (v(vT[5]), v(vWv), v(vT[5])))
A('v_and_b32 %s, 31, %s' % (v(vT[7]), v(vL)))
A('v_lshlrev_b32 %s, 3, %s' % (v(vT[6]), v(vT[7])))
A('v_lshl_or_b32 %s, %s, 10, %s' % (v(vT[6]), v(vPI), v(vT[6])))
roles()
A('v_lshl_add_u32 %s, %s, 2, %s' % (v(vT[2]), v(vWv), v(vROW)))
A('v_and_b32 %s, 2, %s' % (v(vT[3]), v(vWv)))
A('v_lshl_or_b32 %s, %s, 1, %s' % (v(vT[3]), v(vT[3]), v(vROW)))
A('v_lshlrev_b32 %s, 1, %s' % (v(vT[3]), v(vT[3])))
A('v_xor_b32 %s, %s, %s' % (v(vT[3]), v(vT[3]), v(vL15)))
A('v_lshlrev_b32 %s, 4, %s' % (v(vCN), v(vT[3])))
A('v_lshl_or_b32 %s, %s, 8, %s' % (v(oVD), v(vT[2]), v(vCN)))
A('s_lshl_b32 %s, %s, 10' % (sVM, sW))
A('s_add_u32 %s, %s, %d' % (sVM, sVM, L_V))
A('s_waitcnt lgkmcnt(0)')
A('s_load_dwordx2 %s, s[16:17], %d' % (sTAG, WS_EPOCH))
A('s_cmp_lg_u32 %s, 0' % sROLE)
A('s_cbranch_scc1 L_LA_G')
A('s_lshl_b32 %s, %s, 17' % (sF, sIDX))
A('s_lshl_b32 %s, %s, 8' % (sD, sRB))
A('s_add_u32 %s, %s, %s' % (sF, sF, sD))
A('s_add_u32 s%d, s%d, %s' % (pWO, pWO, sF))
A('s_addc_u32 s%d, s%d, 0' % (pWO + 1, pWO + 1))
A('v_lshl_or_b32 %s, %s, 10, %s' % (v(vT[2]), v(vT[2]), v(vCN)))
A('v_mov_b32 %s, s%d' % (v(vWA + 1), pWO + 1))
A('v_add_co_u32 %s, vcc, s%d, %s' % (v(vWA), pWO, v(vT[2])))
A('v_addc_co_u32 %s, vcc, 0, %s, vcc' % (v(vWA + 1), v(vWA + 1)))
A('s_mov_b32 %s, 32768' % sSTEP)
A('s_branch L_LA_GO')
A('L_LA_G:')
A('s_mul_i32 %s, %s, %d' % (sD, sRB, 128 * 3584))
A('s_lshr_b32 %s, %s, 2' % (sF, sIDX))
A('s_lshl_b32 %s, %s, 7' % (sF, sF))
A('s_add_u32 %s, %s, %s' % (sF, sF, sD))
A('v_mul_u32_u24 %s, 3584, %s' % (v(vT[2]), v(vT[2])))
A('v_and_b32 %s, 0x70, %s' % (v(vCN), v(vCN)))
A('v_add3_u32 %s, %s, %s, %s' % (v(vT[2]), v(vT[2]), v(vCN), sF))
A('v_cmp_lt_u32 vcc, 7, %s' % v(vT[3]))
A('v_mov_b32 %s, s%d' % (v(vCN), pWG)); A('v_mov_b32 %s, s%d' % (v(vCN + 1), pWU))
A('v_mov_b32 %s, s%d' % (v(vCN + 2), pWG + 1)); A('v_mov_b32 %s, s%d' % (v(vCN + 3), pWU + 1))
A('v_cndmask_b32 %s, %s, %s, vcc' % (v(vWA), v(vCN), v(vCN + 1)))
A('v_cndmask_b32 %s, %s, %s, vcc' % (v(vWA + 1), v(vCN + 2), v(vCN + 3)))
A('v_add_co_u32 %s, vcc, %s, %s' % (v(vWA), v(vWA), v(vT[2])))
A('v_addc_co_u32 %s, vcc, 0, %s, vcc' % (v(vWA + 1), v(vWA + 1)))
A('s_mov_b32 %s, %d' % (sSTEP, 32 * 3584))
A('L_LA_GO:')
A('s_lshl_b32 %s, %s, 14' % (sO4, sIDX))
if WARM:
    A('s_cmp_lg_u32 %s, 6' % sW)
    A('s_cbranch_scc1 L_NOWARM')
    A('s_load_dword s8, s[%d:%d], %s' % (SRD_V, SRD_V + 1, sVS))
    A('s_load_dword s8, s[%d:%d], 0' % (pWO, pWO + 1))
    A('s_min_u32 %s, %s, 0x1bff00' % (sF, sF))
    A('s_load_dword s8, s[%d:%d], %s' % (pWG, pWG + 1, sF))
    A('s_load_dword s8, s[%d:%d], %s' % (pWU, pWU + 1, sF))
    A('s_min_u32 %s, %s, 0x1bff00' % (sF, sO4))
    A('s_load_dword s8, s[%d:%d], %s' % (SRD_W2, SRD_W2 + 1, sF))
    A('s_load_dword s8, s[20:21], 0')
    for off in (WS_E4 + 0x70000, WS_E2 + 0xff000 + 0xf80 if False else 0xff000, ):
        A('s_load_dword s8, s[16:17], 0x%x' % off)
    for off in (0x1fff80, 0x2fff80, 0x3fff80):
        A('s_mov_b32 %s, 0x%x' % (sF, off))
        A('s_load_dword s8, s[16:17], %s' % sF)
    A('L_NOWARM:')
A('s_lshl_b32 %s, %s, 10' % (sM0, sW))
A('s_add_u32 %s, %s, %d' % (sM0, sM0, L_W))
A('v_lshlrev_b32 %s, 4, v0' % v(oPT))
A('s_lshl_b32 %s, %s, 17' % (sC, sG))
A('s_lshl_b32 %s, %s, 13' % (sD, sR))
A('s_add_u32 %s, %s, %s' % (sC, sC, sD))
A('s_add_u32 %s, %s, 0x%x' % (sC, sC, WS_E2))
A('s_lshl_b32 %s, %s, 12' % (sD, sIDX))
A('s_add_u32 %s, %s, 0x%x' % (sD, sD, WS_E4))
A('s_cmp_eq_u32 %s, 0' % sROLE)
A('s_cselect_b32 %s, %s, %s' % (sPT, sC, sD))
A('s_cselect_b32 %s, -1, 0xff0' % sD)
A('v_and_b32 %s, %s, %s' % (v(oPT), sD, v(oPT)))
A('s_mul_i32 %s, %s, %d' % (sA, sG, E1_G))
A('s_add_u32 %s, %s, 0x%x' % (sA, sA, WS_E1))
A('s_mul_i32 %s, %s, %d' % (sB, sRB, E1_K))
A('s_lshl_b32 %s, %s, 9' % (sC, sE))
A('s_add_u32 %s, %s, %s' % (sB, sB, sC))
A('s_add_u32 %s, %s, %s' % (sB, sB, sA))
A('s_add_u32 %s, %s, 0x%x' % (sC, sB, E1_FS))
wait_tag('x')
stamp(2)
s0, s1, m_, r_, t_ = vT[0], vT[1], vT[2], vT[3], vT[4]
A('v_dot2_f32_bf16 %s, %s, %s, 0' % (v(s0), v(vXF), sONE))
A('v_dot2_f32_bf16 %s, %s, %s, 0' % (v(s1), v(vXF), v(vXF)))
for j in range(1, 4):
    A('v_dot2_f32_bf16 %s, %s, %s, %s' % (v(s0), v(vXF + j), sONE, v(s0)))
    A('v_dot2_f32_bf16 %s, %s, %s, %s' % (v(s1), v(vXF + j), v(vXF + j), v(s1)))
A('v_permlane32_swap_b32 %s, %s' % (v(s0), v(s1)))
A('v_add_f32 %s, %s, %s' % (v(s0), v(s0), v(s1)))
allred_rows(s0, s1, 'add', (16,))
for ror in (8, 4, 2): dpp_add(s0, ror)
dpp(s1, s0, 'row_ror:1'); dpp(s0, s0, 'row_ror:1')
A('v_permlane32_swap_b32 %s, %s' % (v(s0), v(s1)))
ln_stats(s0, s1, m_, r_, t_)
wait_tag('xr')
A('v_lshlrev_b32 %s, 16, %s' % (v(s0), v(vXR)))
A('v_and_b32 %s, 0xffff0000, %s' % (v(s1), v(vXR)))
A('v_sub_f32 %s, %s, %s' % (v(s0), v(s0), v(m_)))
A('v_sub_f32 %s, %s, %s' % (v(s1), v(s1), v(m_)))
A('v_cvt_pk_bf16_f32 %s, %s, %s' % (v(t_), v(s0), v(s1)))
A('v_lshlrev_b32 %s, 16, %s' % (v(s0), v(t_)))
A('v_and_b32 %s, 0xffff0000, %s' % (v(s1), v(t_)))
A('v_mul_f32 %s, %s, %s' % (v(s0), v(s0), v(r_)))
A('v_mul_f32 %s, %s, %s' % (v(s1), v(s1), v(r_)))
A('v_cvt_pk_bf16_f32 %s, %s, %s' % (v(vXR), v(s0), v(s1)))
A('s_waitcnt lgkmcnt(0)')
A('s_add_u32 %s, %s, 1' % (sTA, sTA))
A('s_andn2_b32 %s, %s, 15' % (sTB, sTB))
A('s_and_b32 %s, %s, 15' % (sXT, sXT))
A('s_or_b32 %s, %s, %s' % (sXT, sXT, sTB))
A('v_mov_b32 %s, %s' % (v(vG + 2), sTA))
A('v_mov_b32 %s, %s' % (v(vG + 3), sXT))
A('s_lshl_b32 %s, %s, 10' % (sD, sG))
A('s_add_u32 %s, %s, 0x%x' % (sD, sD, WS_FL))
A('s_add_u32 s10, s16, %s' % sD)
A('s_addc_u32 s11, s17, 0')
A('s_lshl_b32 %s, %s, 2' % (sF, sR))
A('s_add_u32 %s, %s, %s' % (sD, sD, sF))
A('v_lshlrev_b32 %s, 7, %s' % (v(vT[8]), v(vL)))
wait_tag('wq')
stamp(3)
for o in SW: op(o)
perm_pairs(vFA, vWQa, vWQb, 4)
for e in range(8): A('v_dot2_f32_bf16 %s, %s, %s, 0' % (v(vY + e), v(vFA + e), v(vXR)))
reduce8(vY)
dpp_add(vY, 8); dpp_add(vY + 1, 8)
A('ds_write_b64 %s, %s offset:%d' % (v(vT[5]), v(vY, 2), L_QACC))
bar()
A('s_cmp_lg_u32 %s, 0' % sW)
A('s_cbranch_scc1 L_NOPUB1')
for i in range(4): A('ds_read_b64 %s, %s offset:%d' % (v(vY + 2 * i, 2), v(vT[6]), L_QACC + 256 * i))
A('s_waitcnt lgkmcnt(0)')
A('v_pk_add_f32 %s, %s, %s' % (v(vY, 2), v(vY, 2), v(vY + 2, 2)))
A('v_pk_add_f32 %s, %s, %s' % (v(vY + 4, 2), v(vY + 4, 2), v(vY + 6, 2)))
A('v_pk_add_f32 %s, %s, %s' % (v(vG, 2), v(vY, 2), v(vY + 4, 2)))
A('v_mov_b32 %s, %s' % (v(vY), v(vG))); A('v_mov_b32 %s, %s' % (v(vY + 1), v(vG + 1)))
A('v_permlane32_swap_b32 %s, %s' % (v(vG), v(vY)))
A('v_permlane32_swap_b32 %s, %s' % (v(vG + 1), v(vY + 1)))
A('v_pk_add_f32 %s, %s, %s' % (v(vG, 2), v(vG, 2), v(vY, 2)))
set_exec(0xffffffff)
stws(vG, oX, sB, False)
set_exec((1 << NREP) - 1)
A('buffer_store_dword %s, %s, %s, %s offen' % (v(vG + 2), v(vT[8]), SRD_WS, sD))
set_exec(0xffffffff)
stws(vG, oX, sC, True)
set_exec(FULL)
A('L_NOPUB1:')
for _ in range(3): issued('st', True)
stamp(4)
if S2:
    A('s_barrier')
    for o in S2: op(o)
A('v_mov_b32 %s, %s' % (v(vG + 3), sTB))
A('v_bfe_u32 %s, %s, 2, 2' % (v(vT[1]), v(vL)))
A('v_bfe_u32 %s, %s, 4, 1' % (v(vT[2]), v(vL)))
A('v_lshl_or_b32 %s, %s, 2, %s' % (v(vT[2]), v(vT[2]), v(vT[1])))
A('v_xor_b32 %s, %s, %s' % (v(vT[2]), v(vT[2]), v(vWv)))
A('v_lshlrev_b32 %s, 5, %s' % (v(vT[2]), v(vT[2])))
A('v_and_b32 %s, 3, %s' % (v(vT[6]), v(vL)))
A('v_lshl_or_b32 %s, %s, 3, %s' % (v(vT[2]), v(vT[6]), v(vT[2])))
A('v_lshl_or_b32 %s, %s, 8, %s' % (v(vT[2]), v(vT[1]), v(vT[2])))
A('v_lshl_or_b32 %s, %s, 11, %s' % (v(oTR), v(vROW), v(vT[2])))
A('v_mul_u32_u24 %s, %d, %s' % (v(oFR), QS, v(vT[6])))
A('v_lshl_add_u32 %s, %s, 4, %s' % (v(oFR), v(vROW), v(oFR)))
A('v_mul_u32_u24 %s, %d, %s' % (v(oV), QS, v(vT[1])))
A('v_lshl_add_u32 %s, %s, 4, %s' % (v(oV), v(vROW), v(oV)))
A('v_lshl_or_b32 %s, %s, 5, %s' % (v(vT[2]), v(vWv), v(vT[7])))
A('v_mul_u32_u24 %s, %d, %s' % (v(vT[1]), 2 * E1_K, v(vPI)))
A('v_lshl_add_u32 %s, %s, 4, %s' % (v(vT[0]), v(vT[2]), v(vT[1])))
if NOFAST: A('s_add_u32 %s, %s, 0x%x' % (sA, sA, E1_FS))
A('s_add_u32 %s, %s, %d' % (sB, sA, E1_K))
A('v_lshlrev_b32 %s, 2, %s' % (v(vT[1]), v(vT[2])))
A('v_lshl_or_b32 %s, %s, 1, %s' % (v(vT[1]), v(vPI), v(vT[1])))
A('v_lshrrev_b32 %s, 1, %s' % (v(vT[2]), v(vWv)))
A('v_lshl_add_u32 %s, %s, 4, %s' % (v(vT[1]), v(vT[2]), v(vT[1])))
A('v_lshlrev_b32 %s, 2, %s' % (v(vT[4]), v(vWv)))
A('v_lshl_add_u32 %s, %s, 4, %s' % (v(vT[2]), v(vWv), v(vL15)))
A('v_lshlrev_b32 %s, 8, %s' % (v(vT[2]), v(vT[2])))
A('v_xor_b32 %s, %s, %s' % (v(vT[3]), v(vROW), v(vL15)))
A('v_lshl_or_b32 %s, %s, 4, %s' % (v(vA4), v(vT[3]), v(vT[2])))
for j in range(1, 4): A('v_xor_b32 %s, 0x%x, %s' % (v(vA4 + j), 64 * j, v(vA4)))
A('v_lshlrev_b32 %s, 5, %s' % (v(vT[7]), v(vT[6])))
A('v_add_u32 %s, %s, %s' % (v(vT[3]), v(vT[4]), v(vT[7])))
A('v_mul_u32_u24 %s, %d, %s' % (v(vT[8]), QS, v(vT[6])))
A('v_lshl_add_u32 %s, %s, 5, %s' % (v(vT[8]), v(vWv), v(vT[8])))
A('v_lshl_add_u32 %s, %s, 3, %s' % (v(vT[8]), v(vROW), v(vT[8])))
A('v_lshlrev_b32 %s, 5, %s' % (v(vT[9]), v(vROW)))
A('v_lshlrev_b32 %s, 4, %s' % (v(oW2), v(vCC)))
A('v_lshl_or_b32 %s, %s, 7, %s' % (v(vT[10]), v(vWv), v(oW2)))
A('v_lshl_or_b32 %s, %s, 10, %s' % (v(vT[10]), v(vROW), v(vT[10])))
A('s_mov_b32 %s, 0x%x' % (sC, (-E1_FS if NOFAST else E1_FS) & 0xffffffff))
A('s_lshl_b32 %s, %s, 12' % (sKV, sJ))
A('s_add_u32 %s, %s, 0x%x' % (sKV, sKV, WS_E2))
A('s_cmp_lg_u32 %s, 7' % sW)
A('s_cbranch_scc1 L_FL_DONE')
FB = 64 if not STAMPS else None
A('s_mov_b32 %s, 0' % sCNT)
A('s_mov_b32 s8, %s' % sTA); A('s_mov_b32 s9, %s' % sTA)
A('L_FL:')
if FSLEEP: A('s_sleep %d' % FSLEEP)
if STAMPS:
    for pc in range(4):
        A('s_load_dwordx8 s[40:47], s[10:11], %s' % sCNT) if pc == 0 else A('s_load_dwordx8 s[40:47], s[10:11], %s' % sF)
        A('s_add_u32 %s, %s, %d' % (sF, sCNT, 32 * (pc + 1)))
        A('s_waitcnt lgkmcnt(0)')
        for k in range(4):
            A('s_cmp_eq_u64 s[%d:%d], s[8:9]' % (40 + 2 * k, 41 + 2 * k))
            A('s_cbranch_scc0 L_FL_NO')
else:
    A('s_load_dwordx16 s[64:79], s[10:11], %s' % sCNT)
    A('s_add_u32 %s, %s, 64' % (sF, sCNT))
    A('s_load_dwordx16 s[80:95], s[10:11], %s' % sF)
    A('s_waitcnt lgkmcnt(0)')
    for k in range(16):
        A('s_cmp_eq_u64 s[%d:%d], s[8:9]' % (64 + 2 * k, 65 + 2 * k))
        A('s_cbranch_scc0 L_FL_NO')
A('s_branch L_FL_DONE')
A('L_FL_NO:')
A('s_add_u32 %s, %s, 128' % (sCNT, sCNT))
A('s_cmp_lt_u32 %s, %d' % (sCNT, 128 * NREP))
A('s_cbranch_scc1 L_FL')
A('L_FL_DONE:')
A('s_barrier')
stamp(5)
e1l = [ldws(vP0, vT[0], sA), ldws(vP0 + 4, vT[0], sB)]
for l in e1l: A(l)
issued('p'); issued('P0')
A('s_barrier')
for o in S3: op(o)
wait_tag('P0')
for j in range(4): A('ds_read_b128 %s, %s offset:%d' % (v(vK + 4 * j, 4), v(vA4 + j), L_K))
for i, gq in enumerate((vP0, vP0 + 4)): chk_tagx(i, gq, vY + i)
A('v_or_b32 %s, %s, %s' % (v(vY), v(vY), v(vY + 1)))
A('v_cmp_ne_u32 vcc, 0, %s' % v(vY))
A('s_cbranch_vccz L_E1_OK')
def flip():
    A('s_add_u32 %s, %s, %s' % (sA, sA, sC))
    A('s_add_u32 %s, %s, %s' % (sB, sB, sC))
    A('s_sub_u32 %s, 0, %s' % (sC, sC))
mpoll(e1l, [vP0, vP0 + 4], chk_tagx, each=flip)
A('L_E1_OK:')
stamp(15)
A('v_pk_add_f32 %s, %s, %s' % (v(vP0, 2), v(vP0, 2), v(vP0 + 4, 2)))
A('v_xor_b32 %s, %s, %s' % (v(vP0 + 3), sXT, v(vP0 + 3)))
A('v_xor_b32 %s, %s, %s' % (v(vP0 + 7), sXT, v(vP0 + 7)))
A('v_permlane32_swap_b32 %s, %s' % (v(vP0), v(vP0 + 1)))
A('v_or_b32 %s, %s, %s' % (v(vP0 + 3), v(vP0 + 3), v(vP0 + 7)))
A('v_add_f32 %s, %s, %s' % (v(vP0), v(vP0), v(vP0 + 1)))
A('v_cmp_ne_u32 vcc, 0, %s' % v(vP0 + 3))
A('v_cvt_pk_bf16_f32 %s, %s, %s' % (v(vP0), v(vP0), v(vP0)))
A('s_or_b32 %s, vcc_lo, vcc_hi' % sC)
A('ds_write_b16 %s, %s offset:%d' % (v(vT[1]), v(vP0), L_Q))
A('v_mov_b32 %s, %s' % (v(vP0 + 1), sC))
A('ds_write_b32 %s, %s offset:%d' % (v(vT[4]), v(vP0 + 1), L_FLG))
A('s_mov_b32 %s, 0x%x' % (sB, LOG2E))
for o in S4: op(o)
bar()
for j in range(4): A('ds_read_b128 %s, %s offset:%d' % (v(vFB + 4 * j, 4), v(oFR), L_Q + 64 * j))
A('ds_read_b128 %s, %s offset:%d' % (v(vFA + 8, 4), v(vZ), L_FLG))
A('ds_read_b128 %s, %s offset:%d' % (v(vFA + 12, 4), v(vZ), L_FLG + 16))
stamp(6)
for j in range(4):
    A('s_waitcnt lgkmcnt(%d)' % (5 - j))
    A('v_mfma_f32_16x16x32_bf16 %s, %s, %s, %s' % (v(vACC, 4), v(vK + 4 * j, 4), v(vFB + 4 * j, 4), '0' if j == 0 else v(vACC, 4)))
for o in S5: op(o)
A('s_waitcnt lgkmcnt(0)')
A('v_or3_b32 %s, %s, %s, %s' % (v(vFA + 8), v(vFA + 8), v(vFA + 9), v(vFA + 10)))
A('v_or3_b32 %s, %s, %s, %s' % (v(vFA + 11), v(vFA + 11), v(vFA + 12), v(vFA + 13)))
A('v_or3_b32 %s, %s, %s, %s' % (v(vFA + 8), v(vFA + 8), v(vFA + 14), v(vFA + 15)))
A('v_or_b32 %s, %s, %s' % (v(vFA + 8), v(vFA + 8), v(vFA + 11)))
A('v_readfirstlane_b32 %s, %s' % (sFAST, v(vFA + 8)))
A('s_cmp_eq_u32 %s, 0' % sFAST)
A('s_cselect_b32 %s, %d, 0' % (sFAST, 0 if NOFAST else 1))
S = vY
for h in range(2): A('v_cvt_pk_bf16_f32 %s, %s, %s' % (v(vT[4 + h]), v(vACC + 2 * h), v(vACC + 2 * h + 1)))
for h in range(2):
    A('v_lshlrev_b32 %s, 16, %s' % (v(S + 2 * h), v(vT[4 + h])))
    A('v_and_b32 %s, 0xffff0000, %s' % (v(S + 2 * h + 1), v(vT[4 + h])))
for i in range(4): A('v_mul_f32 %s, 0x%x, %s' % (v(S + i), SCALE, v(S + i)))
for h in range(2): A('v_cvt_pk_bf16_f32 %s, %s, %s' % (v(vT[4 + h]), v(S + 2 * h), v(S + 2 * h + 1)))
for h in range(2):
    A('v_lshlrev_b32 %s, 16, %s' % (v(S + 2 * h), v(vT[4 + h])))
    A('v_and_b32 %s, 0xffff0000, %s' % (v(S + 2 * h + 1), v(vT[4 + h])))
A('v_max3_f32 %s, %s, %s, %s' % (v(vT[4]), v(S), v(S + 1), v(S + 2)))
A('v_max_f32 %s, %s, %s' % (v(vT[4]), v(vT[4]), v(S + 3)))
allred_rows(vT[4], vT[5], 'max')
A('ds_write_b32 %s, %s offset:%d' % (v(vT[3]), v(vT[4]), L_MAX))
bar()
A('ds_read_b128 %s, %s offset:%d' % (v(vFA, 4), v(vT[7]), L_MAX))
A('ds_read_b128 %s, %s offset:%d' % (v(vFA + 4, 4), v(vT[7]), L_MAX + 16))
for o in S6: op(o)
A('s_waitcnt lgkmcnt(0)')
A('v_max3_f32 %s, %s, %s, %s' % (v(vT[4]), v(vFA), v(vFA + 1), v(vFA + 2)))
A('v_max3_f32 %s, %s, %s, %s' % (v(vT[5]), v(vFA + 3), v(vFA + 4), v(vFA + 5)))
A('v_max3_f32 %s, %s, %s, %s' % (v(vT[4]), v(vT[4]), v(vFA + 6), v(vFA + 7)))
A('v_max_f32 %s, %s, %s' % (v(vT[4]), v(vT[4]), v(vT[5])))
A('v_mul_f32 %s, %s, %s' % (v(vT[5]), sB, v(vT[4])))
for i in range(4): A('v_fma_f32 %s, %s, %s, -%s' % (v(S + i), v(S + i), sB, v(vT[5])))
for i in range(4): A('v_exp_f32 %s, %s' % (v(S + i), v(S + i)))
A('v_add_f32 %s, %s, %s' % (v(vT[4]), v(S), v(S + 1)))
A('v_add_f32 %s, %s, %s' % (v(vT[5]), v(S + 2), v(S + 3)))
A('v_cvt_pk_bf16_f32 %s, %s, %s' % (v(S + 4), v(S), v(S + 1)))
A('v_cvt_pk_bf16_f32 %s, %s, %s' % (v(S + 5), v(S + 2), v(S + 3)))
A('v_add_f32 %s, %s, %s' % (v(vT[4]), v(vT[4]), v(vT[5])))
A('ds_write_b64 %s, %s offset:%d' % (v(vT[8]), v(S + 4, 2), L_P))
allred_rows(vT[4], vT[5], 'add')
A('ds_write_b32 %s, %s offset:%d' % (v(vT[3]), v(vT[4]), L_LS))
bar()
rd = ['ds_read_b128 %s, %s offset:%d' % (v(vFB + 4 * b, 4), v(oV), L_P + 64 * b) for b in range(4)]
rd += ['ds_read_b128 %s, %s offset:%d' % (v(vY, 4), v(vT[9]), L_LS), 'ds_read_b128 %s, %s offset:%d' % (v(vY + 4, 4), v(vT[9]), L_LS + 16),
       'ds_read_b128 %s, %s offset:%d' % (v(vP1, 4), v(vT[9]), L_MAX), 'ds_read_b128 %s, %s offset:%d' % (v(vP1 + 4, 4), v(vT[9]), L_MAX + 16)]
for r_ in rd: A(r_)
stamp(7)
for o in S7: op(o)
def trr(b):
    return ['ds_read_b64_tr_b16 %s, %s offset:%d' % (v(vFA + 4 * b, 2), v(oTR), L_V + 8192 * b),
            'ds_read_b64_tr_b16 %s, %s offset:%d' % (v(vFA + 4 * b + 2, 2), v(oTR), L_V + 8192 * b + 1024)]
def pvm(b):
    A('v_mfma_f32_16x16x32_bf16 %s, %s, %s, %s' % (v(vACC, 4), v(vFB + 4 * b, 4), v(vFA + 4 * b, 4), '0' if b == 0 else v(vACC, 4)))
A('s_waitcnt lgkmcnt(0)')
A('v_pk_add_f32 %s, %s, %s' % (v(vY, 2), v(vY, 2), v(vY + 2, 2)))
A('v_pk_add_f32 %s, %s, %s' % (v(vY + 4, 2), v(vY + 4, 2), v(vY + 6, 2)))
A('v_max3_f32 %s, %s, %s, %s' % (v(vP1), v(vP1), v(vP1 + 1), v(vP1 + 2)))
A('v_pk_add_f32 %s, %s, %s' % (v(vY, 2), v(vY, 2), v(vY + 4, 2)))
A('v_max3_f32 %s, %s, %s, %s' % (v(vP1 + 3), v(vP1 + 3), v(vP1 + 4), v(vP1 + 5)))
A('v_add_f32 %s, %s, %s' % (v(vY), v(vY), v(vY + 1)))
A('v_max3_f32 %s, %s, %s, %s' % (v(vP1), v(vP1), v(vP1 + 6), v(vP1 + 7)))
A('v_log_f32 %s, %s' % (v(vG2 + 2), v(vY)))
A('v_rcp_f32 %s, %s' % (v(vY), v(vY)))
A('v_max_f32 %s, %s, %s' % (v(vP1), v(vP1), v(vP1 + 3)))
A('v_mov_b32 %s, %s' % (v(vG2 + 3), sTA))
A('v_fmac_f32 %s, 0x%x, %s' % (v(vG2 + 2), LOG2E, v(vP1)))
wait_tag('V2')
A('s_barrier')
for r_ in trr(0) + trr(1) + trr(2): A(r_)
A('s_waitcnt lgkmcnt(4)'); pvm(0)
A('s_waitcnt lgkmcnt(2)'); pvm(1)
A('s_waitcnt lgkmcnt(0)'); pvm(2)
wait_tag('V3')
A('s_barrier')
for r_ in trr(3): A(r_)
A('s_waitcnt lgkmcnt(0)'); pvm(3)
A('v_mul_f32 %s, %s, %s' % (v(vG2), v(vACC), v(vY)))
A('v_mov_b32_dpp %s, %s row_ror:8 row_mask:0xf bank_mask:0xf' % (v(vG2 + 1), v(vG2)))
set_exec(0x00ff00ff00ff00ff)
st_grp(vG2, vT[10], sKV)
set_exec(FULL)
stamp(8)
A('s_cmp_eq_u32 %s, 2' % sROLE)
A('s_cbranch_scc1 L_FIN')
A('s_lshl_b32 %s, %s, 7' % (sB, sW))
A('s_lshl_b32 %s, %s, 17' % (sA, sG))
A('s_add_u32 %s, %s, %s' % (sA, sA, sB))
A('v_lshl_or_b32 %s, %s, 3, %s' % (v(vT[3]), v(vPI), v(vCC)))
A('v_lshl_or_b32 %s, %s, 4, %s' % (v(vT[3]), v(vWv), v(vT[3])))
A('v_lshlrev_b32 %s, 1, %s' % (v(vT[3]), v(vT[3])))
A('v_lshlrev_b32 %s, 4, %s' % (v(vT[2]), v(vROW)))
g4 = [vP0, vP0 + 4, vP1, vP1 + 4]
l4 = [ldws(g4[i], vT[0], s) for i, s in enumerate((sA, sB, sC, sD))]
def wtr():
    for b in range(4):
        A('ds_read_b64_tr_b16 %s, %s offset:%d' % (v(vW1 + 4 * b, 2), v(vT[1]), 8192 * b))
        A('ds_read_b64_tr_b16 %s, %s offset:%d' % (v(vW1 + 4 * b + 2, 2), v(vT[1]), 8192 * b + 1024))
def bfrag():
    for b in range(4): A('ds_read_b128 %s, %s offset:%d' % (v(vFB + 4 * b, 4), v(vT[2]), L_ACC + 64 * b))
def wmfma(acc, afn, bfn, waits=True):
    for b in range(4):
        if waits: A('s_waitcnt lgkmcnt(%d)' % (3 - b))
        A('v_mfma_f32_16x16x32_bf16 %s, %s, %s, %s' % (v(acc, 4), v(afn(b), 4), v(bfn(b), 4), '0' if b == 0 else v(acc, 4)))
A('s_cmp_eq_u32 %s, 1' % sROLE)
A('s_cbranch_scc1 L_ROLE_G')
A('v_lshl_or_b32 %s, %s, 12, %s' % (v(vT[0]), v(vRG8), v(oW2)))
A('s_and_b32 %s, %s, 3' % (sB, sIDX))
A('s_lshl_b32 %s, %s, 10' % (sB, sB))
A('s_add_u32 %s, %s, %s' % (sA, sA, sB))
A('s_add_u32 %s, %s, 0x%x' % (sA, sA, WS_E2))
A('s_add_u32 %s, %s, 0x8000' % (sB, sA))
A('s_add_u32 %s, %s, 0x10000' % (sC, sA))
A('s_add_u32 %s, %s, 0x18000' % (sD, sA))
for l in l4: A(l)
A('v_add_u32 %s, 0x%x, %s' % (v(vT[1]), L_W, v(oTR)))
A('v_lshl_or_b32 %s, %s, 17, %s' % (v(vT[4]), v(vRG8), v(oW2)))
A('v_and_b32 %s, 8, %s' % (v(vT[6]), v(vL)))
A('v_cmp_ne_u32 %s, 0, %s' % (sMSK, v(vT[6])))
A('s_lshl_b32 %s, %s, 15' % (sKV, sRB))
A('s_lshl_b32 %s, %s, 10' % (sM0, sIDX))
A('s_add_u32 %s, %s, %s' % (sKV, sKV, sM0))
A('s_lshl_b32 %s, %s, 7' % (sM0, sW))
A('s_add_u32 %s, %s, %s' % (sKV, sKV, sM0))
A('s_add_u32 %s, %s, 0x%x' % (sKV, sKV, WS_E3))
def lammax():
    A('v_max3_f32 %s, %s, %s, %s' % (v(vT[5]), v(g4[0] + 2), v(g4[1] + 2), v(g4[2] + 2)))
    A('v_max_f32 %s, %s, %s' % (v(vT[5]), v(vT[5]), v(g4[3] + 2)))
mpoll(l4, g4, chk_lam, first_in_flight=True, extra=lammax)
stamp(10)
dpp_add(vT[5], 8, 'max')
allred_rows(vT[5], vT[6], 'max')
for i in range(4): A('v_sub_f32 %s, %s, %s' % (v(g4[i] + 2), v(g4[i] + 2), v(vT[5])))
for i in range(4): A('v_exp_f32 %s, %s' % (v(g4[i] + 2), v(g4[i] + 2)))
A('v_mul_f32 %s, %s, %s' % (v(vP0), v(vP0 + 2), v(vP0)))
A('v_mul_f32 %s, %s, %s' % (v(vP0 + 1), v(vP0 + 2), v(vP0 + 1)))
for i in range(1, 4):
    A('v_fmac_f32 %s, %s, %s' % (v(vP0), v(g4[i] + 2), v(g4[i])))
    A('v_fmac_f32 %s, %s, %s' % (v(vP0 + 1), v(g4[i] + 2), v(g4[i] + 1)))
    A('v_add_f32 %s, %s, %s' % (v(vP0 + 2), v(vP0 + 2), v(g4[i] + 2)))
A('v_mov_b32 %s, %s' % (v(vP0 + 3), v(vP0 + 2)))
A('v_permlane32_swap_b32 %s, %s' % (v(vP0), v(vP0 + 1)))
A('v_permlane32_swap_b32 %s, %s' % (v(vP0 + 2), v(vP0 + 3)))
A('v_add_f32 %s, %s, %s' % (v(vP0), v(vP0), v(vP0 + 1)))
A('v_add_f32 %s, %s, %s' % (v(vP0 + 2), v(vP0 + 2), v(vP0 + 3)))
A('v_mov_b32 %s, %s' % (v(vP0 + 1), v(vP0)))
A('v_mov_b32 %s, %s' % (v(vP0 + 3), v(vP0 + 2)))
A('v_permlane16_swap_b32 %s, %s' % (v(vP0), v(vP0 + 1)))
A('v_permlane16_swap_b32 %s, %s' % (v(vP0 + 2), v(vP0 + 3)))
A('v_add_f32 %s, %s, %s' % (v(vP0 + 2), v(vP0 + 2), v(vP0 + 3)))
A('v_add_f32 %s, %s, %s' % (v(vP0), v(vP0), v(vP0 + 1)))
dpp_add(vP0 + 2, 8); dpp_add(vP0, 8)
A('v_rcp_f32 %s, %s' % (v(vP0 + 2), v(vP0 + 2)))
A('v_mul_f32 %s, %s, %s' % (v(vP0), v(vP0), v(vP0 + 2)))
A('v_cvt_pk_bf16_f32 %s, %s, %s' % (v(vP0), v(vP0), v(vP0)))
A('ds_write_b16 %s, %s offset:%d' % (v(vT[3]), v(vP0), L_ACC))
A('s_waitcnt lgkmcnt(0)')
A('s_barrier')
stamp(9)
for b in range(4):
    A('ds_read_b128 %s, %s offset:%d' % (v(vFB + 4 * b, 4), v(vT[2]), L_ACC + 64 * b))
    A('ds_read_b64_tr_b16 %s, %s offset:%d' % (v(vW1 + 4 * b, 2), v(vT[1]), 8192 * b))
    A('ds_read_b64_tr_b16 %s, %s offset:%d' % (v(vW1 + 4 * b + 2, 2), v(vT[1]), 8192 * b + 1024))
for b in range(4):
    A('s_waitcnt lgkmcnt(%d)' % (9 - 3 * b))
    A('v_mfma_f32_16x16x32_bf16 %s, %s, %s, %s' % (v(vACC, 4), v(vFB + 4 * b, 4), v(vW1 + 4 * b, 4), '0' if b == 0 else v(vACC, 4)))
A('v_mov_b32_dpp %s, %s row_ror:8 row_mask:0xf bank_mask:0xf' % (v(vT[6]), v(vACC)))
A('v_cndmask_b32 %s, %s, %s, %s' % (v(vG), v(vACC + 1), v(vT[6]), sMSK))
A('v_cndmask_b32 %s, %s, %s, %s' % (v(vG + 1), v(vT[6]), v(vACC + 1), sMSK))
stws(vG, vT[4], sKV)
stamp(11)
A('s_cmp_lg_u32 %s, 0' % sRB)
A('s_cbranch_scc1 L_FIN')
A('v_bfe_u32 %s, v0, 3, 5' % v(vT[0]))
A('v_lshl_or_b32 %s, %s, 10, %s' % (v(vT[0]), v(vT[0]), v(oW2)))
A('s_lshr_b32 %s, %s, 3' % (sA, sIDX))
A('s_lshl_b32 %s, %s, 15' % (sA, sA))
A('s_and_b32 %s, %s, 7' % (sB, sIDX))
A('s_lshl_b32 %s, %s, 7' % (sB, sB))
A('s_add_u32 %s, %s, %s' % (sA, sA, sB))
A('s_lshl_b32 %s, %s, 17' % (sB, sG))
A('s_add_u32 %s, %s, %s' % (sA, sA, sB))
A('s_add_u32 %s, %s, 0x%x' % (sA, sA, WS_E3))
A('v_lshlrev_b32 %s, 1, %s' % (v(vT[1]), v(vL15)))
A('s_lshl_b32 %s, %s, 5' % (sD, sIDX))
A('buffer_load_ushort %s, %s, %s, %s offen' % (v(vX4), v(vT[1]), srd(SRD_X), sD))
A('v_lshl_or_b32 %s, %s, 3, %s' % (v(vT[2]), v(vPI), v(vCC)))
A('v_lshl_or_b32 %s, %s, 3, %s' % (v(vT[2]), v(vT[2]), v(vWv)))
A('v_lshlrev_b32 %s, 2, %s' % (v(vT[2]), v(vT[2])))
A('v_lshlrev_b32 %s, 5, %s' % (v(vT[3]), v(vL15)))
A('v_lshl_or_b32 %s, %s, 3, %s' % (v(vT[3]), v(vROW), v(vT[3])))
A('v_lshrrev_b32 %s, 3, v0' % v(vT[4]))
A('v_cmp_gt_u32 %s, 48, %s' % (sMSK, v(vT[4])))
A('v_mul_u32_u24 %s, %d, %s' % (v(vT[4]), E5_S, v(vT[4])))
A('v_add_u32 %s, %s, %s' % (v(vT[4]), v(oW2), v(vT[4])))
A('v_add_u32 %s, %d, %s' % (v(vT[5]), 64 * E5_S, v(vT[4])))
A('v_cndmask_b32 %s, %s, %s, %s' % (v(vT[5]), v(vT[4]), v(vT[5]), sMSK))
A('s_lshl_b32 %s, %s, 7' % (sB, sIDX))
A('s_add_u32 %s, %s, 0x%x' % (sB, sB, WS_E5))
mpoll([ldws(vP0, vT[0], sA)], [vP0], chk_tags, sleep=SLEEP)
red8(vP0)
A('ds_write_b32 %s, %s offset:%d' % (v(vT[2]), v(vP0), L_R1))
A('v_lshlrev_b32 %s, 16, %s' % (v(vX4), v(vX4)))
A('s_waitcnt lgkmcnt(0)')
A('s_barrier')
A('ds_read_b64 %s, %s offset:%d' % (v(vP1, 2), v(vT[3]), L_R1))
A('s_waitcnt lgkmcnt(0)')
A('v_add_f32 %s, %s, %s' % (v(vP1), v(vP1), v(vP1 + 1)))
allred_rows(vP1, vP1 + 1, 'add', (16,))
resid1(vP1, vX4)
A('v_lshlrev_b32 %s, 16, %s' % (v(vX4), v(vP1)))
stamp(12)
mpoll([ldws(vP0, vT[4], sB), ldws(vP0 + 4, vT[5], sB)], [vP0, vP0 + 4], chk_tags, sleep=SLEEP)
stamp(13)
A('v_cndmask_b32 %s, 0, %s, %s' % (v(vP0 + 4), v(vP0 + 4), sMSK))
A('v_cndmask_b32 %s, 0, %s, %s' % (v(vP0 + 5), v(vP0 + 5), sMSK))
A('v_pk_add_f32 %s, %s, %s' % (v(vP0, 2), v(vP0, 2), v(vP0 + 4, 2)))
red8(vP0)
A('ds_write_b32 %s, %s offset:%d' % (v(vT[2]), v(vP0), L_R2))
A('s_waitcnt lgkmcnt(0)')
A('s_barrier')
A('s_cmp_lg_u32 %s, 0' % sW)
A('s_cbranch_scc1 L_FIN')
A('ds_read_b64 %s, %s offset:%d' % (v(vP0, 2), v(vT[3]), L_R2))
A('s_waitcnt lgkmcnt(0)')
A('v_add_f32 %s, %s, %s' % (v(vP0), v(vP0), v(vP0 + 1)))
allred_rows(vP0, vP0 + 1, 'add')
resid1(vP0, vX4)
set_exec(0xffff)
A('buffer_store_short %s, %s, %s, %s offen' % (v(vP0), v(vT[1]), SRD_OUT, sD))
A('s_cmp_lg_u32 %s, 0' % sIDX)
A('s_cbranch_scc1 L_NOEP')
set_exec(1)
A('buffer_store_dword %s, %s, %s, 0 offen offset:%d' % (v(vG + 2), v(vT[1]), SRD_WS, WS_EPOCH))
A('L_NOEP:')
set_exec(FULL)
stamp(14)
A('s_branch L_FIN')
A('L_ROLE_G:')
if not GEARLY:
    for i in range(4): tone()
A('s_lshl_b32 %s, %s, 11' % (sM0, sW))
A('s_add_u32 %s, %s, %s' % (sO4, sO4, sM0))
A('s_add_u32 %s, %s, %d' % (sM0, sM0, L_K))
A('s_mov_b32 m0, %s' % sM0)
A('s_lshl_b32 %s, %s, 1' % (sC, sW))
A('s_and_b32 %s, %s, 2' % (sC, sC))
A('s_and_b32 %s, %s, 4' % (sD, sW))
A('s_or_b32 %s, %s, %s' % (sC, sC, sD))
A('s_lshl_b32 %s, %s, 5' % (sC, sC))
A('v_xor_b32 %s, %s, %s' % (v(vT[5]), sC, v(oX)))
A('buffer_load_dwordx4 %s, %s, %s offen nt lds' % (v(vT[5]), srd(SRD_W2), sO4))
A('v_xor_b32 %s, 32, %s' % (v(vT[5]), v(vT[5])))
A('buffer_load_dwordx4 %s, %s, %s offen offset:1024 nt lds' % (v(vT[5]), srd(SRD_W2), sO4))
A('s_lshl_b32 %s, %s, 8' % (sC, sRB))
A('buffer_load_ushort %s, %s, %s, %s offen' % (v(vXR), v(vT[3]), srd(SRD_X), sC))
A('v_lshl_or_b32 %s, %s, 10, %s' % (v(vT[0]), v(vRG8), v(oW2)))
A('s_and_b32 %s, %s, 1' % (sE, sW))
A('s_lshl_b32 %s, %s, 2' % (sE, sE))
A('s_lshr_b32 %s, %s, 1' % (sD, sW))
A('s_or_b32 %s, %s, %s' % (sC, sE, sD))
A('s_xor_b32 %s, %s, %s' % (sC, sC, sW))
A('s_lshl_b32 %s, %s, 5' % (sC, sC))
A('v_xor_b32 %s, %s, %s' % (v(vT[1]), sC, v(oTR)))
A('v_add_u32 %s, 0x%x, %s' % (v(vT[1]), L_W, v(vT[1])))
A('s_andn2_b32 %s, %s, 3' % (sKV, sIDX))
A('s_add_u32 %s, %s, %s' % (sKV, sKV, sD))
A('s_lshl_b32 %s, %s, 12' % (sKV, sKV))
A('s_add_u32 %s, %s, 0x%x' % (sKV, sKV, WS_E4))
A('s_add_u32 %s, %s, %s' % (sE, sE, sRB))
A('v_lshrrev_b32 %s, 1, %s' % (v(vT[4]), v(vCC)))
A('v_lshlrev_b32 %s, 8, %s' % (v(vT[4]), v(vT[4])))
A('v_and_b32 %s, 1, %s' % (v(vT[6]), v(vL)))
A('v_lshl_or_b32 %s, %s, 4, %s' % (v(vT[4]), v(vT[6]), v(vT[4])))
A('v_lshl_add_u32 %s, %s, 5, %s' % (v(vT[4]), sE, v(vT[4])))
A('s_lshl_b32 %s, %s, 4' % (sE, sE))
A('s_add_u32 %s, %s, 2048' % (sE, sE))
A('v_mov_b32 %s, %s' % (v(vT[7]), sE))
A('v_cmp_eq_u32 s[10:11], 8, %s' % v(vL))
A('v_and_b32 %s, 8, %s' % (v(vT[6]), v(vL)))
A('v_cmp_ne_u32 %s, 0, %s' % (sMSK, v(vT[6])))
A('v_cndmask_b32 %s, %s, %s, s[10:11]' % (v(oFR), v(vT[4]), v(vT[7])))
A('s_add_u32 %s, %s, 1024' % (sE, sKV))
A('v_and_b32 %s, 14, %s' % (v(oWQ), v(vL)))
A('v_lshlrev_b32 %s, 3, %s' % (v(oWQ), v(oWQ)))
A('s_lshl_b32 %s, %s, 15' % (sB, sRB))
A('s_add_u32 %s, %s, %s' % (sA, sA, sB))
A('s_add_u32 %s, %s, 0x%x' % (sA, sA, WS_E3))
A('s_add_u32 %s, %s, 0x2000' % (sB, sA))
A('s_add_u32 %s, %s, 0x4000' % (sC, sA))
A('s_add_u32 %s, %s, 0x6000' % (sD, sA))
A('s_lshl_b32 %s, %s, 12' % (sJ, sIDX))
A('s_add_u32 %s, %s, 0x%x' % (sJ, sJ, WS_E4))
A('s_mul_i32 %s, %s, %d' % (sSTEP, sIDX, E5_S))
A('s_add_u32 %s, %s, 0x%x' % (sSTEP, sSTEP, WS_E5))
A('v_bfe_u32 %s, %s, 3, 1' % (v(vT[6]), v(vL)))
A('v_lshl_or_b32 %s, %s, 1, %s' % (v(vT[6]), v(vROW), v(vT[6])))
A('v_bfe_u32 %s, %s, 2, 1' % (v(vT[7]), v(vL)))
A('v_and_b32 %s, 3, %s' % (v(oK), v(vT[6])))
A('v_lshl_or_b32 %s, %s, 2, %s' % (v(oK), v(vT[7]), v(oK)))
A('v_lshl_or_b32 %s, %s, 3, %s' % (v(vT[6]), v(vT[7]), v(vT[6])))
A('v_lshlrev_b32 %s, 2, %s' % (v(vT[7]), v(vWv)))
A('v_xor_b32 %s, %s, %s' % (v(oK), v(oK), v(vT[7])))
A('v_lshlrev_b32 %s, 5, %s' % (v(oK), v(oK)))
A('v_lshl_or_b32 %s, %s, 10, %s' % (v(oK), v(vT[6]), v(oK)))
A('v_and_b32 %s, 3, %s' % (v(vT[6]), v(vL)))
A('v_lshl_or_b32 %s, %s, 3, %s' % (v(oK), v(vT[6]), v(oK)))
A('v_lshl_or_b32 %s, %s, 7, %s' % (v(oV), v(vROW), v(oW2)))
A('v_lshl_or_b32 %s, %s, 9, %s' % (v(oV), v(vWv), v(oV)))
A('v_cmp_eq_u32 s[98:99], 1, %s' % v(vROW))
for i in range(4): A('v_mov_b32 %s, %s' % (v(vA4 + i), sONE))
A('s_waitcnt vmcnt(0)')
A('s_barrier')
stamp(9)
wtr()
for t4 in range(4):
    if t4: A('v_xor_b32 %s, %d, %s' % (v(vT[6]), 32 * t4, v(oK)))
    A('ds_read_b64_tr_b16 %s, %s offset:%d' % (v(vW2 + 2 * t4, 2), v(vT[6] if t4 else oK), L_K))
for l in l4: A(l)
A('s_waitcnt lgkmcnt(0)')
wmfma(vACC, lambda b: vA4, lambda b: vW1 + 4 * b, waits=False)
A('v_mov_b32 %s, %s' % (v(vG), v(vACC)))
A('v_mov_b32_dpp %s, %s row_ror:8 row_mask:0xf bank_mask:0xf' % (v(vG + 1), v(vACC)))
set_exec(0xff)
st_grp(vG, vT[4], sE)
set_exec(FULL)
stamp(10)
mpoll(l4, g4, chk_tags, first_in_flight=True, sleep=SLEEP)
stamp(11)
A('v_pk_add_f32 %s, %s, %s' % (v(vP0, 2), v(vP0, 2), v(vP0 + 4, 2)))
A('v_pk_add_f32 %s, %s, %s' % (v(vP1, 2), v(vP1, 2), v(vP1 + 4, 2)))
A('v_lshlrev_b32 %s, 16, %s' % (v(vXR), v(vXR)))
A('v_pk_add_f32 %s, %s, %s' % (v(vP0, 2), v(vP0, 2), v(vP1, 2)))
red8(vP0)
resid1(vP0, vXR)
A('ds_write_b16 %s, %s offset:%d' % (v(vT[3]), v(vP0), L_ACC))
A('s_waitcnt lgkmcnt(0)')
A('s_barrier')
bfrag()
A('s_bitcmp1_b32 %s, 0' % sW)
A('s_cbranch_scc1 L_ST_UP')
for b in range(4):
    A('s_waitcnt lgkmcnt(%d)' % (3 - b))
    A('v_mfma_f32_16x16x32_bf16 %s, %s, %s, %s' % (v(vACC, 4), v(vFB + 4 * b, 4), v(vW1 + 4 * b, 4), '0' if b == 0 else v(vACC, 4)))
    A('v_mfma_f32_16x16x32_bf16 %s, %s, %s, %s' % (v(vY, 4), v(vFB + 4 * b, 4), v(vFB + 4 * b, 4), '0' if b == 0 else v(vY, 4)))
A('s_branch L_ST_GO')
A('L_ST_UP:')
a.hist = []
for b in range(4):
    A('s_waitcnt lgkmcnt(%d)' % (3 - b))
    A('v_mfma_f32_16x16x32_bf16 %s, %s, %s, %s' % (v(vACC, 4), v(vFB + 4 * b, 4), v(vW1 + 4 * b, 4), '0' if b == 0 else v(vACC, 4)))
    A('v_mfma_f32_16x16x32_bf16 %s, %s, %s, %s' % (v(vY, 4), v(vFB + 4 * b, 4), v(vA4, 4), '0' if b == 0 else v(vY, 4)))
A('L_ST_GO:')
A('v_mov_b32_dpp %s, %s row_ror:8 row_mask:0xf bank_mask:0xf' % (v(vG + 1), v(vACC)))
A('v_cndmask_b32 %s, %s, %s, s[10:11]' % (v(vG), v(vACC + 1), v(vY)))
set_exec(0x1ff)
st_grp(vG, oFR, sKV)
set_exec(FULL)
stamp(12)
mpoll([ldws(vP0, oX, sJ), ldws(vP0 + 4, oWQ, sJ, 2048), ldws(vCS, oX, sJ, 1024)], [vP0, vP0 + 4, vCS], chk_tags)
stamp(13)
PR = ((vP0 + 4, vP0 + 5), (vP0, vP0 + 2), (vP0 + 1, vP0 + 3), (vCS, vCS + 2), (vCS + 1, vCS + 3))
for r, d in PR: dpp(r, r, 'quad_perm:[2,3,0,1]')
for r, d in PR: A('v_add_f32_dpp %s, %s, %s row_shr:4 row_mask:0xf bank_mask:0xa' % (v(d), v(r), v(r)))
for r, d in PR: A('v_add_f32_dpp %s, %s, %s row_shl:4 row_mask:0xf bank_mask:0x5' % (v(d), v(r), v(r)))
A('v_mov_b32_dpp %s, %s row_ror:8 row_mask:0xf bank_mask:0xf' % (v(vP0 + 4), v(vP0 + 5)))
A('v_cndmask_b32 %s, %s, %s, %s' % (v(vP0 + 6), v(vP0 + 4), v(vP0 + 5), sMSK))
A('v_cndmask_b32 %s, %s, %s, %s' % (v(vP0 + 7), v(vP0 + 5), v(vP0 + 4), sMSK))
ln_stats(vP0 + 6, vP0 + 7, vT[5], vT[6], vT[7])
for i in range(2): A('v_fma_f32 %s, -%s, %s, %s' % (v(vP0 + i), v(vT[5]), v(vCS + 2 + i), v(vP0 + 2 + i)))
for i in range(2): A('v_mul_f32 %s, %s, %s' % (v(vP0 + i), v(vP0 + i), v(vT[6])))
A('v_cvt_pk_bf16_f32 %s, %s, %s' % (v(vT[7]), v(vP0), v(vP0 + 1)))
A('v_lshlrev_b32 %s, 16, %s' % (v(vP0), v(vT[7])))
A('v_and_b32 %s, 0xffff0000, %s' % (v(vP0 + 1), v(vT[7])))
A('v_max_f32 %s, 0, %s' % (v(vP0 + 2), v(vP0)))
A('v_max_f32 %s, 0, %s' % (v(vP0 + 3), v(vP0 + 1)))
A('v_cndmask_b32 %s, %s, %s, %s' % (v(vP0), v(vP0 + 2), v(vP0), sMSK))
A('v_cndmask_b32 %s, %s, %s, %s' % (v(vP0 + 1), v(vP0 + 3), v(vP0 + 1), sMSK))
dpp(vP0, vP0, 'row_ror:8', 'mul'); dpp(vP0 + 1, vP0 + 1, 'row_ror:8', 'mul')
A('v_cvt_pk_bf16_f32 %s, %s, %s' % (v(vT[7]), v(vP0), v(vP0 + 1)))
A('v_mov_b32_dpp %s, %s quad_perm:[0,0,2,2] row_mask:0xf bank_mask:0xf' % (v(vX4), v(vT[7])))
A('v_mov_b32_dpp %s, %s quad_perm:[1,1,3,3] row_mask:0xf bank_mask:0xf' % (v(vX4 + 1), v(vT[7])))
for t4 in range(4):
    A('v_mfma_f32_16x16x16_bf16 %s, %s, %s, 0' % (v(vFA + 4 * t4, 4), v(vX4, 2), v(vW2 + 2 * t4, 2)))
A('v_cndmask_b32 %s, %s, %s, s[98:99]' % (v(vG), v(vFA), v(vFA + 4)))
A('s_mov_b32 exec_lo, 0')
A('v_mov_b32 %s, %s' % (v(vG), v(vFA + 8)))
A('s_mov_b32 exec_hi, 0xffff0000')
A('v_mov_b32 %s, %s' % (v(vG), v(vFA + 12)))
set_exec(FULL)
A('v_mov_b32_dpp %s, %s row_ror:8 row_mask:0xf bank_mask:0xf' % (v(vG + 1), v(vG)))
set_exec(0x00ff00ff00ff00ff)
stws(vG, oV, sSTEP)
set_exec(FULL)
stamp(14)
A('L_FIN:')
if STAMPS:
    A('s_waitcnt lgkmcnt(0)')
    A('v_mov_b32 %s, 0' % v(vT[8]))
    for i in range(16): A('v_writelane_b32 %s, s%d, %d' % (v(vT[8]), 64 + 2 * i, i))
    A('s_lshl_b32 %s, s2, 9' % sB)
    A('s_lshl_b32 %s, %s, 6' % (sC, sW))
    A('s_add_u32 %s, %s, %s' % (sB, sB, sC))
    A('s_add_u32 %s, %s, 0x%x' % (sB, sB, WS_ST))
    A('v_lshlrev_b32 %s, 2, %s' % (v(vT[9]), v(vL)))
    set_exec(0xffff)
    A('buffer_store_dword %s, %s, %s, %s offen' % (v(vT[8]), v(vT[9]), SRD_WS, sB))
A('L_END:')
A('s_endpgm')
a.raw('.fill 64, 4, 0xbf800000')
a.raw('.p2align 13, 0')
nv = (NVGPR + 7) // 8 * 8
a.raw('''.section .rodata,"a"
.p2align 6
.amdhsa_kernel %s_kernel
  .amdhsa_next_free_vgpr %d
  .amdhsa_next_free_sgpr 102
  .amdhsa_accum_offset %d
  .amdhsa_group_segment_fixed_size 0
  .amdhsa_kernarg_size 96
  .amdhsa_user_sgpr_count 2
  .amdhsa_user_sgpr_kernarg_segment_ptr 1
  .amdhsa_system_sgpr_workgroup_id_x 1
  .amdhsa_float_denorm_mode_32 3
.end_amdhsa_kernel''' % (NAME, nv, nv))
open(OUT, 'w').write(a.text())
print('wrote', OUT, 'vgprs', NVGPR)
```

```python
import sys
from asmlib import Asm

NAME = 'sequential_preLN__sliding_block_cached__glu_gated_reglu__decode'
STAMPS = '--stamps' in sys.argv
NOFAST = '--nofast' in sys.argv
def OPT(name, d=0):
    for a_ in sys.argv:
        if a_.startswith('--%s=' % name): return int(a_.split('=')[1])
    return d
THIN = OPT('thin', 16); FULLD = OPT('full', 36); SLEEP = OPT('sleep', 0)
LSLEEP = OPT('lsleep', 0)
KD = OPT('kd', 0)
PSTART = OPT('pstart', 1)
GWAIT = OPT('gwait', 0)
OUT = [a for a in sys.argv[1:] if not a.startswith('--')]
OUT = OUT[0] if OUT else 'cdna_kernels/%s.s' % NAME

WS_EPOCH = 0
WS_E1 = 0x10000; E1_K = 4352; E1_G = 4 * E1_K; E1_FS = 0x24000
WS_FL = 0x8000
def SOPT(name, d):
    for a_ in sys.argv:
        if a_.startswith('--%s=' % name): d = a_.split('=')[1]
    return [x for x in d.split(',') if x]
S1 = SOPT('s1', 'K0,K1,K2'); SW = SOPT('sw', ''); S2 = SOPT('s2', 'K3,V0,V1'); S3 = SOPT('s3', 'V2,V3,PT')
S4 = SOPT('s4', 'T0,T1'); S5 = SOPT('s5', ''); S6 = SOPT('s6', 'T2,T3'); S7 = SOPT('s7', '')
WARM = OPT('warm', 0)
GEARLY = OPT('gearly', 0)
NREP = OPT('nrep', 32); FSLEEP = OPT('fsleep', 2); TPOS = OPT('tpos', 1)
WS_E4 = 0x80000
WS_E2 = 0x100000
WS_E3 = 0x200000
WS_E5 = 0x300000; E5_S = 4352
WS_ST = 0x500000
WS_SIZE = 0x600000
QS = 272
L_Q = 0; L_P = L_Q + 4 * QS; L_QACC = L_P + 4 * QS
L_MAX = L_QACC + 2048; L_LS = L_MAX + 128
L_R1 = L_LS + 128; L_R2 = L_R1 + 512; L_ACC = L_R2 + 512
L_FLG = L_ACC + 256
L_CNT = L_FLG + 32
L_V = 8192; L_K = L_V + 32768; L_W = L_K + 32768
LDS_BYTES = L_W + 32768
assert L_CNT + 32 <= L_V and L_CNT % 16 == 0

LOG2E = 0x3fb8aa3b; SCALE = 0x3db504f3; EPS = 0x3727c5ac; INV512 = 0x3b000000; ONES = 0x3f803f80
SPIN = 1 << 16

a = Asm(); A = a
sW, sG, sR = 's3', 's4', 's5'
sTAG = 's[6:7]'; sTA, sTB = 's6', 's7'
sMSK = 's[8:9]'
sSELLO, sSELHI = 's12', 's13'
sCNT = 's14'; sONE = 's15'
SRD_WS = 's[16:19]'; SRD_OUT = 's[20:23]'
sA, sB, sC, sD = 's24', 's25', 's26', 's27'
sKV = 's28'; sJ = 's29'; sSTEP = 's30'; sIDX = 's31'; sRB = 's32'; sM0 = 's33'
sXT = 's34'; sROLE = 's35'
SRD_X, SRD_WQ, SRD_K, SRD_V, SRD_W2 = 36, 40, 44, 48, 52
pWO, pWG, pWU = 56, 60, 62
sO4 = 's58'; sE = 's59'; sFAST = 's96'; sF = 's97'; sVM = 's98'; sVS = 's99'; sKM = 's100'; sKS = 's101'; sTM = 's11'; sTN = 's10'
MS = ['s[40:41]', 's[42:43]', 's[44:45]', 's[46:47]']
def srd(n): return 's[%d:%d]' % (n, n + 3)

class V:
    n = 0
    @classmethod
    def alloc(cls, k=1, align=1):
        cls.n = (cls.n + align - 1) // align * align
        r = cls.n; cls.n += k
        return r
def v(r, k=1): return 'v%d' % r if k == 1 else 'v[%d:%d]' % (r, r + k - 1)
vTID = V.alloc(); vL = V.alloc(); vZ = V.alloc()
vWv = V.alloc(); vPI = V.alloc(); vL15 = V.alloc(); vROW = V.alloc(); vRG8 = V.alloc(); vCC = V.alloc()
vT = [V.alloc() for _ in range(11)]
vOFF = [V.alloc() for _ in range(8)]
vK = V.alloc(16, 4); vW1 = vK
vFB = V.alloc(16, 4); vFA = V.alloc(16, 4)
vXF = vFB; vWQa = vFB + 4; vWQb = vFB + 8
vW2 = V.alloc(8, 4)
vY = V.alloc(8, 4)
vACC = V.alloc(4, 4)
vG = V.alloc(4, 4); vG2 = V.alloc(4, 4)
vP0 = V.alloc(8, 4); vP1 = V.alloc(8, 4)
vEX = V.alloc(16, 4)
vCS = V.alloc(4, 4); vA4 = V.alloc(4, 4); vCN = V.alloc(8, 4)
oVD = V.alloc(); oPT = V.alloc()
vXR = V.alloc(2, 2); vX4 = V.alloc(2, 2); vWA = V.alloc(2, 2); vWB = V.alloc(2, 2)
NVGPR = V.n
oX, oXR, oWQ, oK, oV, oW2, oTR, oFR = vOFF

def stamp(i):
    if STAMPS: A('s_memrealtime s[%d:%d]' % (64 + 2 * i, 65 + 2 * i))
lab = [0]
def newlab(p='L'):
    lab[0] += 1
    return '%s%d' % (p, lab[0])
def dpp(d, s, mod, op='add'):
    A('v_%s_f32_dpp %s, %s, %s %s row_mask:0xf bank_mask:0xf' % (op, v(d), v(s), v(s), mod))
def dpp_add(d, ror, op='add'): dpp(d, d, 'row_ror:%d' % ror, op)
def reduce8(y):
    for i in range(4): A('v_permlane32_swap_b32 %s, %s' % (v(y + i), v(y + 4 + i)))
    for i in range(4): A('v_add_f32 %s, %s, %s' % (v(y + i), v(y + i), v(y + 4 + i)))
    for i in range(2): A('v_permlane16_swap_b32 %s, %s' % (v(y + i), v(y + 2 + i)))
    for i in range(2): A('v_add_f32 %s, %s, %s' % (v(y + i), v(y + i), v(y + 2 + i)))
def allred_rows(x, t, op='add', which=(16, 32)):
    for wdt in which:
        A('v_mov_b32 %s, %s' % (v(t), v(x)))
        A('v_permlane%d_swap_b32 %s, %s' % (wdt, v(x), v(t)))
        A('v_%s_f32 %s, %s, %s' % (op, v(x), v(x), v(t)))
def bf16r(d, s):
    A('v_cvt_pk_bf16_f32 %s, %s, %s' % (v(d), v(s), v(s)))
    A('v_and_b32 %s, 0xffff0000, %s' % (v(d), v(d)))
def ln_stats(vsum, vsq, vm, vr, t):
    A('v_mul_f32 %s, 0x%x, %s' % (v(vsum), INV512, v(vsum)))
    A('v_mul_f32 %s, 0x%x, %s' % (v(vsq), INV512, v(vsq)))
    A('v_fma_f32 %s, -%s, %s, %s' % (v(vsq), v(vsum), v(vsum), v(vsq)))
    A('v_max_f32 %s, 0, %s' % (v(vsq), v(vsq)))
    A('v_cvt_pk_bf16_f32 %s, %s, %s' % (v(t), v(vsum), v(vsq)))
    A('v_lshlrev_b32 %s, 16, %s' % (v(vm), v(t)))
    A('v_and_b32 %s, 0xffff0000, %s' % (v(vr), v(t)))
    A('v_add_f32 %s, 0x%x, %s' % (v(vr), EPS, v(vr)))
    bf16r(vr, vr)
    A('v_sqrt_f32 %s, %s' % (v(vr), v(vr)))
    bf16r(vr, vr)
    A('v_rcp_f32 %s, %s' % (v(vr), v(vr)))
def perm_pairs(dst, ra, rb, n):
    for j in range(n):
        A('v_perm_b32 %s, %s, %s, %s' % (v(dst + 2 * j), v(rb + j), v(ra + j), sSELLO))
        A('v_perm_b32 %s, %s, %s, %s' % (v(dst + 2 * j + 1), v(rb + j), v(ra + j), sSELHI))
FULL = (1 << 64) - 1
def set_exec(mask):
    lo, hi = mask & 0xffffffff, mask >> 32
    if mask == FULL: A('s_mov_b64 exec, -1')
    elif hi == 0 and lo <= 64: A('s_mov_b64 exec, %d' % lo)
    elif hi == 0 and lo < 0x80000000: A('s_mov_b64 exec, 0x%x' % lo)
    else:
        A('s_mov_b32 exec_lo, 0x%x' % lo); A('s_mov_b32 exec_hi, 0x%x' % hi)
def mpoll(loads, grans, check, first_in_flight=False, extra=None, sleep=0, each=None):
    top = newlab('P'); done = newlab('D'); chk = newlab('C')
    A('s_mov_b32 %s, %d' % (sCNT, SPIN))
    if not first_in_flight:
        for l in loads: A(l)
    A('s_branch %s' % chk)
    A('%s:' % top)
    if sleep: A('s_sleep %d' % sleep)
    if each: each()
    for i, l in enumerate(loads):
        sk = newlab('K')
        A('s_mov_b64 exec, %s' % MS[i])
        A('s_cbranch_execz %s' % sk)
        A(l)
        A('%s:' % sk)
    A('s_mov_b64 exec, -1')
    A('%s:' % chk)
    A('s_waitcnt vmcnt(0)')
    for i, gq in enumerate(grans): check(i, gq, vY + i)
    for i, gq in enumerate(grans): A('v_cmp_ne_u32 %s, 0, %s' % (MS[i], v(vY + i)))
    if extra: extra()
    A('s_sub_u32 %s, %s, 1' % (sCNT, sCNT))
    A('s_cbranch_scc1 %s' % done)
    A('s_or_b64 vcc, %s, %s' % (MS[0], MS[1 if len(grans) > 1 else 0]))
    for i in range(2, len(grans)): A('s_or_b64 vcc, vcc, %s' % MS[i])
    A('s_cbranch_scc1 %s' % top)
    A('%s:' % done)
NSET = OPT('nset', 1)
NC = OPT('nc', 1)
def ppoll(mk, n, sets, finish, first_in_flight=False):
    ns = len(sets)
    done = newlab('D')
    mreg = [40, 42, 44, 46, 48, 50, 52, 54, 60, 62, 100, 56]
    def M(k, i): r = mreg[k * n + i]; return 's[%d:%d]' % (r, r + 1)
    A('s_mov_b32 %s, %d' % (sCNT, SPIN))
    for k in range(ns):
        if k == 0 and first_in_flight: continue
        if k: A('s_sleep 1')
        for i in range(n): A(mk(i, sets[k][i]))
    top = newlab('P')
    A('%s:' % top)
    fin = [newlab('F') for _ in range(ns)]
    for k in range(ns):
        A('s_waitcnt vmcnt(%d)' % (n * (ns - 1)))
        for i in range(n): chk_tags(i, sets[k][i], vY + i)
        for i in range(n): A('v_cmp_ne_u32 %s, 0, %s' % (M(k, i), v(vY + i)))
        A('s_or_b64 vcc, %s, %s' % (M(k, 0), M(k, 1 if n > 1 else 0)))
        for i in range(2, n): A('s_or_b64 vcc, vcc, %s' % M(k, i))
        A('s_cbranch_scc0 %s' % fin[k])
        for i in range(n):
            A('s_or_b64 exec, %s, 1' % M(k, i))
            A(mk(i, sets[k][i]))
        A('s_mov_b64 exec, -1')
    A('s_sub_u32 %s, %s, 1' % (sCNT, sCNT))
    A('s_cbranch_scc0 %s' % top)
    A('s_waitcnt vmcnt(0)')
    for k in range(ns):
        A('%s:' % fin[k])
        a.hist = []
        finish(sets[k])
        if k < ns - 1: A('s_branch %s' % done)
    A('%s:' % done)
    A('s_nop 1')
def chk_tags(i, gq, t):
    A('v_xor_b32 %s, %s, %s' % (v(t), sTA, v(gq + 2)))
    A('v_xor_b32 %s, %s, %s' % (v(t + 4), sTB, v(gq + 3)))
    A('v_or_b32 %s, %s, %s' % (v(t), v(t), v(t + 4)))
def chk_tagx(i, gq, t):
    A('v_xor_b32 %s, %s, %s' % (v(t), sTA, v(gq + 2)))
    A('v_xor_b32 %s, %s, %s' % (v(t + 4), sTB, v(gq + 3)))
    A('v_and_or_b32 %s, %s, -16, %s' % (v(t), v(t + 4), v(t)))
def chk_lam(i, gq, t):
    A('v_xor_b32 %s, %s, %s' % (v(t), sTA, v(gq + 3)))
    A('v_xor_b32_dpp %s, %s, %s quad_perm:[1,0,3,2] row_mask:0xf bank_mask:0xf' % (v(t + 4), v(gq + 2), v(gq + 2)))
    A('v_or_b32 %s, %s, %s' % (v(t), v(t), v(t + 4)))
def ldws(dst, voff, soff, imm=0):
    return 'buffer_load_dwordx4 %s, %s, %s, %s offen%s sc1' % (v(dst, 4), v(voff), SRD_WS, soff, (' offset:%d' % imm) if imm else '')
def stws(src, voff, soff, sc1=True):
    A('buffer_store_dwordx4 %s, %s, %s, %s offen%s' % (v(src, 4), v(voff), SRD_WS, soff, ' sc1' if sc1 else ''))
def st_grp(src, voff, soff):
    l1 = newlab('S'); l2 = newlab('S')
    A('s_cmp_eq_u32 %s, 0' % sFAST)
    A('s_cbranch_scc1 %s' % l1)
    stws(src, voff, soff, False)
    A('s_branch %s' % l2)
    A('%s:' % l1)
    stws(src, voff, soff, True)
    A('%s:' % l2)
def red8(x):
    A('v_permlane32_swap_b32 %s, %s' % (v(x), v(x + 1)))
    A('v_add_f32 %s, %s, %s' % (v(x), v(x), v(x + 1)))
    allred_rows(x, x + 1, 'add', (16,))
    dpp_add(x, 8)
def resid1(x, base):
    A('v_cvt_pk_bf16_f32 %s, %s, %s' % (v(x), v(x), v(x)))
    A('v_and_b32 %s, 0xffff0000, %s' % (v(x), v(x)))
    A('v_add_f32 %s, %s, %s' % (v(x), v(x), v(base)))
    A('v_cvt_pk_bf16_f32 %s, %s, %s' % (v(x), v(x), v(x)))
def bar():
    A('s_waitcnt lgkmcnt(0)')
    A('s_barrier')
Q = []
def issued(tag, w0=False): Q.append((tag, w0))
def wait_tag(tag):
    i = max(k for k, (t_, _) in enumerate(Q) if t_ == tag)
    young = Q[i + 1:]
    n = sum(1 for _, w in young if not w); e = sum(1 for _, w in young if w)
    if e == 0:
        A('s_waitcnt vmcnt(%d)' % n); return
    l = newlab('W')
    A('s_cmp_eq_u32 %s, 0' % sW)
    A('s_waitcnt vmcnt(%d)' % (n + e))
    A('s_cbranch_scc1 %s' % l)
    A('s_waitcnt vmcnt(%d)' % n)
    A('%s:' % l)
def roles():
    lg = newlab('R'); ld = newlab('R')
    A('s_lshl_b32 %s, %s, 2' % (sC, sG))
    A('s_mov_b32 %s, 0' % sROLE)
    A('s_add_u32 %s, %s, %s' % (sIDX, sE, sC))
    A('s_cmp_lt_u32 %s, 16' % sR)
    A('s_cbranch_scc1 %s' % ld)
    A('s_sub_u32 %s, %s, 4' % (sD, sE))
    A('s_mul_i32 %s, %s, 3' % (sIDX, sG))
    A('s_add_u32 %s, %s, 4' % (sIDX, sIDX))
    A('s_min_u32 %s, %s, %s' % (sC, sC, sIDX))
    A('s_add_u32 %s, %s, %s' % (sC, sC, sD))
    A('s_lshr_b32 %s, %s, 2' % (sROLE, sG))
    A('s_add_u32 %s, %s, %s' % (sROLE, sROLE, sD))
    A('s_cmp_eq_u32 %s, 4' % sROLE)
    A('s_cselect_b32 %s, 2, 1' % sROLE)
    A('s_min_u32 %s, %s, 27' % (sC, sC))
    A('s_lshl_b32 %s, %s, 2' % (sIDX, sC))
    A('s_add_u32 %s, %s, %s' % (sIDX, sIDX, sRB))
    A('%s:' % ld)

head = []
for l in open('cdna_kernels/%s.s.ref' % NAME).read().split('\n'):
    if not l.startswith(';'): break
    head.append('; @launch grid=(256,1,1) block=(512,1,1) lds=%d' % LDS_BYTES if l.startswith('; @launch') else l)
a.raw('\n'.join(head))
a.raw('.amdgcn_target "amdgcn-amd-amdhsa--gfx950"\n.text\n.globl %s_kernel\n.p2align 8\n.type %s_kernel,@function\n%s_kernel:' % (NAME, NAME, NAME))

A('s_cmp_ge_u32 s2, 256')
A('s_cbranch_scc1 L_END')
A('s_load_dwordx2 s[%d:%d], s[0:1], 24' % (SRD_WQ, SRD_WQ + 1))
A('s_load_dwordx2 s[%d:%d], s[0:1], 0' % (SRD_X, SRD_X + 1))
A('s_load_dwordx2 s[16:17], s[0:1], 88')
A('s_load_dwordx2 s[%d:%d], s[0:1], 8' % (SRD_K, SRD_K + 1))
A('v_readfirstlane_b32 %s, v0' % sW)
A('v_and_b32 %s, 63, v0' % v(vL))
A('s_and_b32 %s, s2, 7' % sG)
A('s_lshr_b32 %s, s2, 3' % sR)
A('s_lshr_b32 %s, %s, 6' % (sW, sW))
A('s_and_b32 %s, %s, 3' % (sRB, sR))
A('s_lshr_b32 %s, %s, 2' % (sE, sR))
if STAMPS:
    for i in range(16): A('s_mov_b64 s[%d:%d], 0' % (64 + 2 * i, 65 + 2 * i))
stamp(0)
A('v_lshrrev_b32 %s, 3, v0' % v(vT[0]))
A('v_and_b32 %s, 7, v0' % v(vCC))
A('v_lshlrev_b32 %s, 14, %s' % (v(oWQ), v(vT[0])))
A('v_lshl_or_b32 %s, %s, 4, %s' % (v(oWQ), v(vCC), v(oWQ)))
A('s_lshl_b32 %s, %s, 20' % (sA, sRB))
A('s_lshl_b32 %s, %s, 10' % (sC, sG))
A('s_add_u32 %s, %s, %s' % (sA, sA, sC))
A('s_lshl_b32 %s, %s, 7' % (sC, sE))
A('s_add_u32 %s, %s, %s' % (sA, sA, sC))
A('s_add_u32 %s, %s, 8192' % (sB, sA))
A('s_mov_b32 s%d, 0x400000' % (SRD_WQ + 2)); A('s_mov_b32 s%d, 0x20000' % (SRD_WQ + 3))
A('s_movk_i32 s%d, 1024' % (SRD_X + 2)); A('s_mov_b32 s%d, 0x20000' % (SRD_X + 3))
A('v_lshlrev_b32 %s, 4, %s' % (v(oX), v(vL)))
A('v_lshlrev_b32 %s, 2, %s' % (v(oXR), v(vT[0])))
A('s_lshl_b32 %s, %s, 8' % (sD, sRB))
A('s_waitcnt lgkmcnt(0)')
A('buffer_load_dwordx4 %s, %s, %s, 0 offen' % (v(vXF, 4), v(oX), srd(SRD_X)))
A('buffer_load_dword %s, %s, %s, %s offen' % (v(vXR), v(oXR), srd(SRD_X), sD))
A('buffer_load_dwordx4 %s, %s, %s, %s offen nt' % (v(vWQa, 4), v(oWQ), srd(SRD_WQ), sA))
A('buffer_load_dwordx4 %s, %s, %s, %s offen nt' % (v(vWQb, 4), v(oWQ), srd(SRD_WQ), sB))
for t_ in ('x', 'xr', 'wqa', 'wq', 'fl'): issued(t_)
A('v_lshrrev_b32 %s, 6, v0' % v(vWv))
A('s_mov_b32 s18, 0x%x' % WS_SIZE); A('s_mov_b32 s19, 0x20000')
A('s_lshl_b32 %s, %s, 12' % (sD, sG))
A('s_add_u32 %s, %s, 0x%x' % (sD, sD, WS_FL))
A('v_lshrrev_b32 %s, %d, v0' % (v(vT[1]), {8: 6, 16: 5, 32: 4}[NREP]))
A('v_lshlrev_b32 %s, 7, %s' % (v(vT[1]), v(vT[1])))
A('buffer_load_dword %s, %s, %s, %s offen sc1' % (v(vCS), v(vT[1]), SRD_WS, sD))
A('v_and_b32 %s, 15, %s' % (v(vL15), v(vL)))
A('v_lshrrev_b32 %s, 4, %s' % (v(vROW), v(vL)))
A('s_lshl_b32 %s, %s, 23' % (sVS, sG))
A('s_lshl_b32 %s, %s, 15' % (sC, sR))
A('s_add_u32 %s, %s, %s' % (sVS, sVS, sC))
A('s_add_u32 %s, %s, 0x700000' % (sVS, sVS))
A('v_lshl_add_u32 %s, %s, 4, %s' % (v(oK), v(vWv), v(vROW)))
A('v_lshlrev_b32 %s, 8, %s' % (v(oK), v(oK)))
A('v_xor_b32 %s, %s, %s' % (v(vT[1]), v(vL15), v(vROW)))
A('v_lshl_or_b32 %s, %s, 4, %s' % (v(oK), v(vT[1]), v(oK)))
A('s_mov_b32 s%d, 0x4000000' % (SRD_K + 2)); A('s_mov_b32 s%d, 0x20000' % (SRD_K + 3))
A('s_lshl_b32 %s, %s, 12' % (sKM, sW))
A('s_add_u32 %s, %s, %d' % (sKM, sKM, L_K))
A('s_mov_b32 %s, %s' % (sKS, sVS))
A('s_barrier')
def op(o):
    if o.startswith('w:'): wait_tag(o[2:]); return
    if o == 'B': A('s_barrier'); return
    if o[0] == 'K':
        i = int(o[1])
        A('s_mov_b32 m0, %s' % sKM)
        A('v_xor_b32 %s, 0x%x, %s' % (v(vCN + 4), 64 * i, v(oK)))
        A('buffer_load_dwordx4 %s, %s, %s offen offset:%d nt lds' % (v(vCN + 4), srd(SRD_K), sKS, 1024 * i))
    elif o[0] == 'V':
        A('s_mov_b32 m0, %s' % sVM)
        A('s_add_u32 %s, %s, 8192' % (sVM, sVM))
        A('buffer_load_dwordx4 %s, %s, %s offen nt lds' % (v(oVD), srd(SRD_V), sVS))
        A('s_add_u32 %s, %s, 8192' % (sVS, sVS))
    elif o[0] == 'T':
        l1 = newlab('T'); l2 = newlab('T')
        A('s_cmp_gt_u32 %s, %d' % (sROLE, GEARLY))
        A('s_cbranch_scc1 %s' % l1)
        tone()
        A('s_branch %s' % l2)
        A('%s:' % l1)
        A('buffer_load_dword %s, %s, %s, 0 offen' % (v(vCN + 5), v(vZ), srd(SRD_X)))
        A('%s:' % l2)
    elif o == 'PT':
        A(ldws(vCS, oPT, sPT))
    else: raise ValueError(o)
    issued(o)
def tone():
    A('s_mov_b32 m0, %s' % sM0)
    A('s_add_u32 %s, %s, 8192' % (sM0, sM0))
    A('global_load_lds_dwordx4 %s, off nt' % v(vWA, 2))
    A('v_add_co_u32 %s, vcc, %s, %s' % (v(vWA), sSTEP, v(vWA)))
    A('v_addc_co_u32 %s, vcc, 0, %s, vcc' % (v(vWA + 1), v(vWA + 1)))
sPT = 's57'
for o in S1: op(o)
stamp(1)
A('s_load_dwordx2 s[%d:%d], s[0:1], 16' % (SRD_V, SRD_V + 1))
A('s_load_dwordx2 s[%d:%d], s[0:1], 32' % (pWO, pWO + 1))
A('s_load_dwordx4 s[%d:%d], s[0:1], 48' % (pWG, pWG + 3))
A('s_load_dwordx2 s[%d:%d], s[0:1], 64' % (SRD_W2, SRD_W2 + 1))
A('s_load_dwordx2 s[20:21], s[0:1], 72')
A('s_movk_i32 s22, 1024'); A('s_mov_b32 s23, 0x20000')
A('s_mov_b32 %s, 0x05040100' % sSELLO)
A('s_mov_b32 %s, 0x07060302' % sSELHI)
A('s_mov_b32 %s, 0x%x' % (sONE, ONES))
A('s_mov_b32 s%d, 0x4000000' % (SRD_V + 2)); A('s_mov_b32 s%d, 0x20000' % (SRD_V + 3))
A('s_mov_b32 s%d, 0x1c0000' % (SRD_W2 + 2)); A('s_mov_b32 s%d, 0x20000' % (SRD_W2 + 3))
A('v_lshrrev_b32 %s, 3, %s' % (v(vRG8), v(vL)))
A('v_lshrrev_b32 %s, 5, %s' % (v(vPI), v(vL)))
A('v_mov_b32 %s, 0' % v(vZ))
A('s_getreg_b32 %s, hwreg(HW_REG_XCC_ID)' % sXT)
A('s_lshl_b32 %s, %s, 5' % (sJ, sG))
A('s_add_u32 %s, %s, %s' % (sJ, sJ, sR))
A('v_lshlrev_b32 %s, 5, %s' % (v(vT[5]), v(vCC)))
A('v_lshl_or_b32 %s, %s, 3, %s' % (v(vT[5]), v(vROW), v(vT[5])))
A('v_lshl_or_b32 %s, %s, 8, %s' % (v(vT[5]), v(vWv), v(vT[5])))
A('v_and_b32 %s, 31, %s' % (v(vT[7]), v(vL)))
A('v_lshlrev_b32 %s, 3, %s' % (v(vT[6]), v(vT[7])))
A('v_lshl_or_b32 %s, %s, 10, %s' % (v(vT[6]), v(vPI), v(vT[6])))
roles()
A('v_lshl_add_u32 %s, %s, 2, %s' % (v(vT[2]), v(vWv), v(vROW)))
A('v_and_b32 %s, 2, %s' % (v(vT[3]), v(vWv)))
A('v_lshl_or_b32 %s, %s, 1, %s' % (v(vT[3]), v(vT[3]), v(vROW)))
A('v_lshlrev_b32 %s, 1, %s' % (v(vT[3]), v(vT[3])))
A('v_xor_b32 %s, %s, %s' % (v(vT[3]), v(vT[3]), v(vL15)))
A('v_lshlrev_b32 %s, 4, %s' % (v(vCN), v(vT[3])))
A('v_lshl_or_b32 %s, %s, 8, %s' % (v(oVD), v(vT[2]), v(vCN)))
A('s_lshl_b32 %s, %s, 10' % (sVM, sW))
A('s_add_u32 %s, %s, %d' % (sVM, sVM, L_V))
A('s_waitcnt lgkmcnt(0)')
A('s_load_dwordx2 %s, s[16:17], %d' % (sTAG, WS_EPOCH))
A('s_cmp_lg_u32 %s, 0' % sROLE)
A('s_cbranch_scc1 L_LA_G')
A('s_lshl_b32 %s, %s, 17' % (sF, sIDX))
A('s_lshl_b32 %s, %s, 8' % (sD, sRB))
A('s_add_u32 %s, %s, %s' % (sF, sF, sD))
A('s_add_u32 s%d, s%d, %s' % (pWO, pWO, sF))
A('s_addc_u32 s%d, s%d, 0' % (pWO + 1, pWO + 1))
A('v_lshl_or_b32 %s, %s, 10, %s' % (v(vT[2]), v(vT[2]), v(vCN)))
A('v_mov_b32 %s, s%d' % (v(vWA + 1), pWO + 1))
A('v_add_co_u32 %s, vcc, s%d, %s' % (v(vWA), pWO, v(vT[2])))
A('v_addc_co_u32 %s, vcc, 0, %s, vcc' % (v(vWA + 1), v(vWA + 1)))
A('s_mov_b32 %s, 32768' % sSTEP)
A('s_branch L_LA_GO')
A('L_LA_G:')
A('s_mul_i32 %s, %s, %d' % (sD, sRB, 128 * 3584))
A('s_lshr_b32 %s, %s, 2' % (sF, sIDX))
A('s_lshl_b32 %s, %s, 7' % (sF, sF))
A('s_add_u32 %s, %s, %s' % (sF, sF, sD))
A('v_mul_u32_u24 %s, 3584, %s' % (v(vT[2]), v(vT[2])))
A('v_and_b32 %s, 0x70, %s' % (v(vCN), v(vCN)))
A('v_add3_u32 %s, %s, %s, %s' % (v(vT[2]), v(vT[2]), v(vCN), sF))
A('v_cmp_lt_u32 vcc, 7, %s' % v(vT[3]))
A('v_mov_b32 %s, s%d' % (v(vCN), pWG)); A('v_mov_b32 %s, s%d' % (v(vCN + 1), pWU))
A('v_mov_b32 %s, s%d' % (v(vCN + 2), pWG + 1)); A('v_mov_b32 %s, s%d' % (v(vCN + 3), pWU + 1))
A('v_cndmask_b32 %s, %s, %s, vcc' % (v(vWA), v(vCN), v(vCN + 1)))
A('v_cndmask_b32 %s, %s, %s, vcc' % (v(vWA + 1), v(vCN + 2), v(vCN + 3)))
A('v_add_co_u32 %s, vcc, %s, %s' % (v(vWA), v(vWA), v(vT[2])))
A('v_addc_co_u32 %s, vcc, 0, %s, vcc' % (v(vWA + 1), v(vWA + 1)))
A('s_mov_b32 %s, %d' % (sSTEP, 32 * 3584))
A('L_LA_GO:')
A('s_lshl_b32 %s, %s, 14' % (sO4, sIDX))
if WARM:
    A('s_cmp_lg_u32 %s, 6' % sW)
    A('s_cbranch_scc1 L_NOWARM')
    A('s_load_dword s8, s[%d:%d], %s' % (SRD_V, SRD_V + 1, sVS))
    A('s_load_dword s8, s[%d:%d], 0' % (pWO, pWO + 1))
    A('s_min_u32 %s, %s, 0x1bff00' % (sF, sF))
    A('s_load_dword s8, s[%d:%d], %s' % (pWG, pWG + 1, sF))
    A('s_load_dword s8, s[%d:%d], %s' % (pWU, pWU + 1, sF))
    A('s_min_u32 %s, %s, 0x1bff00' % (sF, sO4))
    A('s_load_dword s8, s[%d:%d], %s' % (SRD_W2, SRD_W2 + 1, sF))
    A('s_load_dword s8, s[20:21], 0')
    for off in (WS_E4 + 0x70000, WS_E2 + 0xff000 + 0xf80 if False else 0xff000, ):
        A('s_load_dword s8, s[16:17], 0x%x' % off)
    for off in (0x1fff80, 0x2fff80, 0x3fff80):
        A('s_mov_b32 %s, 0x%x' % (sF, off))
        A('s_load_dword s8, s[16:17], %s' % sF)
    A('L_NOWARM:')
A('s_lshl_b32 %s, %s, 10' % (sM0, sW))
A('s_add_u32 %s, %s, %d' % (sM0, sM0, L_W))
A('v_lshlrev_b32 %s, 4, v0' % v(oPT))
A('s_lshl_b32 %s, %s, 17' % (sC, sG))
A('s_lshl_b32 %s, %s, 13' % (sD, sR))
A('s_add_u32 %s, %s, %s' % (sC, sC, sD))
A('s_add_u32 %s, %s, 0x%x' % (sC, sC, WS_E2))
A('s_lshl_b32 %s, %s, 12' % (sD, sIDX))
A('s_add_u32 %s, %s, 0x%x' % (sD, sD, WS_E4))
A('s_cmp_eq_u32 %s, 0' % sROLE)
A('s_cselect_b32 %s, %s, %s' % (sPT, sC, sD))
A('s_cselect_b32 %s, -1, 0xff0' % sD)
A('v_and_b32 %s, %s, %s' % (v(oPT), sD, v(oPT)))
A('s_mul_i32 %s, %s, %d' % (sA, sG, E1_G))
A('s_add_u32 %s, %s, 0x%x' % (sA, sA, WS_E1))
A('s_mul_i32 %s, %s, %d' % (sB, sRB, E1_K))
A('s_lshl_b32 %s, %s, 9' % (sC, sE))
A('s_add_u32 %s, %s, %s' % (sB, sB, sC))
A('s_add_u32 %s, %s, %s' % (sB, sB, sA))
A('s_add_u32 %s, %s, 0x%x' % (sC, sB, E1_FS))
wait_tag('x')
stamp(2)
s0, s1, m_, r_, t_ = vT[0], vT[1], vT[2], vT[3], vT[4]
A('v_dot2_f32_bf16 %s, %s, %s, 0' % (v(s0), v(vXF), sONE))
A('v_dot2_f32_bf16 %s, %s, %s, 0' % (v(s1), v(vXF), v(vXF)))
for j in range(1, 4):
    A('v_dot2_f32_bf16 %s, %s, %s, %s' % (v(s0), v(vXF + j), sONE, v(s0)))
    A('v_dot2_f32_bf16 %s, %s, %s, %s' % (v(s1), v(vXF + j), v(vXF + j), v(s1)))
A('v_permlane32_swap_b32 %s, %s' % (v(s0), v(s1)))
A('v_add_f32 %s, %s, %s' % (v(s0), v(s0), v(s1)))
allred_rows(s0, s1, 'add', (16,))
for ror in (8, 4, 2): dpp_add(s0, ror)
dpp(s1, s0, 'row_ror:1'); dpp(s0, s0, 'row_ror:1')
A('v_permlane32_swap_b32 %s, %s' % (v(s0), v(s1)))
ln_stats(s0, s1, m_, r_, t_)
wait_tag('xr')
A('v_lshlrev_b32 %s, 16, %s' % (v(s0), v(vXR)))
A('v_and_b32 %s, 0xffff0000, %s' % (v(s1), v(vXR)))
A('v_sub_f32 %s, %s, %s' % (v(s0), v(s0), v(m_)))
A('v_sub_f32 %s, %s, %s' % (v(s1), v(s1), v(m_)))
A('v_cvt_pk_bf16_f32 %s, %s, %s' % (v(t_), v(s0), v(s1)))
A('v_lshlrev_b32 %s, 16, %s' % (v(s0), v(t_)))
A('v_and_b32 %s, 0xffff0000, %s' % (v(s1), v(t_)))
A('v_mul_f32 %s, %s, %s' % (v(s0), v(s0), v(r_)))
A('v_mul_f32 %s, %s, %s' % (v(s1), v(s1), v(r_)))
A('v_cvt_pk_bf16_f32 %s, %s, %s' % (v(vXR), v(s0), v(s1)))
A('s_waitcnt lgkmcnt(0)')
A('s_add_u32 %s, %s, 1' % (sTA, sTA))
A('s_and_b32 %s, %s, 15' % (sXT, sXT))
A('s_lshl_b32 %s, %s, 4' % (sF, sTA))
A('s_or_b32 %s, %s, %s' % (sXT, sXT, sF))
A('v_mov_b32 %s, %s' % (v(vG + 2), sTA))
A('v_mov_b32 %s, %s' % (v(vG + 3), sTB))
A('v_mov_b32 %s, %s' % (v(vG2), sXT))
A('s_lshl_b32 %s, %s, 12' % (sD, sG))
A('s_add_u32 %s, %s, 0x%x' % (sD, sD, WS_FL))
A('s_add_u32 s10, s16, %s' % sD)
A('s_addc_u32 s11, s17, 0')
A('s_lshl_b32 %s, %s, 2' % (sF, sR))
A('s_add_u32 %s, %s, %s' % (sD, sD, sF))
A('v_lshlrev_b32 %s, 7, %s' % (v(vT[8]), v(vL)))
wait_tag('wq')
stamp(3)
for o in SW: op(o)
perm_pairs(vFA, vWQa, vWQb, 4)
for e in range(8): A('v_dot2_f32_bf16 %s, %s, %s, 0' % (v(vY + e), v(vFA + e), v(vXR)))
reduce8(vY)
dpp_add(vY, 8); dpp_add(vY + 1, 8)
A('ds_write_b64 %s, %s offset:%d' % (v(vT[5]), v(vY, 2), L_QACC))
bar()
A('s_cmp_lg_u32 %s, 0' % sW)
A('s_cbranch_scc1 L_NOPUB1')
for i in range(4): A('ds_read_b64 %s, %s offset:%d' % (v(vY + 2 * i, 2), v(vT[6]), L_QACC + 256 * i))
A('s_waitcnt lgkmcnt(0)')
A('v_pk_add_f32 %s, %s, %s' % (v(vY, 2), v(vY, 2), v(vY + 2, 2)))
A('v_pk_add_f32 %s, %s, %s' % (v(vY + 4, 2), v(vY + 4, 2), v(vY + 6, 2)))
A('v_pk_add_f32 %s, %s, %s' % (v(vG, 2), v(vY, 2), v(vY + 4, 2)))
A('v_mov_b32 %s, %s' % (v(vY), v(vG))); A('v_mov_b32 %s, %s' % (v(vY + 1), v(vG + 1)))
A('v_permlane32_swap_b32 %s, %s' % (v(vG), v(vY)))
A('v_permlane32_swap_b32 %s, %s' % (v(vG + 1), v(vY + 1)))
A('v_pk_add_f32 %s, %s, %s' % (v(vG, 2), v(vG, 2), v(vY, 2)))
set_exec(0xffffffff)
stws(vG, oX, sB, False)
set_exec((1 << NREP) - 1)
A('buffer_store_dword %s, %s, %s, %s offen' % (v(vG2), v(vT[8]), SRD_WS, sD))
set_exec(0xffffffff)
stws(vG, oX, sC, True)
set_exec(FULL)
A('L_NOPUB1:')
for _ in range(3): issued('st', True)
stamp(4)
if S2:
    A('s_barrier')
    for o in S2: op(o)
A('v_mov_b32 %s, %s' % (v(vG2 + 3), sTA))
A('v_bfe_u32 %s, %s, 2, 2' % (v(vT[1]), v(vL)))
A('v_bfe_u32 %s, %s, 4, 1' % (v(vT[2]), v(vL)))
A('v_lshl_or_b32 %s, %s, 2, %s' % (v(vT[2]), v(vT[2]), v(vT[1])))
A('v_xor_b32 %s, %s, %s' % (v(vT[2]), v(vT[2]), v(vWv)))
A('v_lshlrev_b32 %s, 5, %s' % (v(vT[2]), v(vT[2])))
A('v_and_b32 %s, 3, %s' % (v(vT[6]), v(vL)))
A('v_lshl_or_b32 %s, %s, 3, %s' % (v(vT[2]), v(vT[6]), v(vT[2])))
A('v_lshl_or_b32 %s, %s, 8, %s' % (v(vT[2]), v(vT[1]), v(vT[2])))
A('v_lshl_or_b32 %s, %s, 11, %s' % (v(oTR), v(vROW), v(vT[2])))
A('v_mul_u32_u24 %s, %d, %s' % (v(oFR), QS, v(vT[6])))
A('v_lshl_add_u32 %s, %s, 4, %s' % (v(oFR), v(vROW), v(oFR)))
A('v_mul_u32_u24 %s, %d, %s' % (v(oV), QS, v(vT[1])))
A('v_lshl_add_u32 %s, %s, 4, %s' % (v(oV), v(vROW), v(oV)))
A('v_lshl_or_b32 %s, %s, 5, %s' % (v(vT[2]), v(vWv), v(vT[7])))
A('v_mul_u32_u24 %s, %d, %s' % (v(vT[1]), 2 * E1_K, v(vPI)))
A('v_lshl_add_u32 %s, %s, 4, %s' % (v(vT[0]), v(vT[2]), v(vT[1])))
if NOFAST: A('s_add_u32 %s, %s, 0x%x' % (sA, sA, E1_FS))
A('s_add_u32 %s, %s, %d' % (sB, sA, E1_K))
A('v_lshlrev_b32 %s, 2, %s' % (v(vT[1]), v(vT[2])))
A('v_lshl_or_b32 %s, %s, 1, %s' % (v(vT[1]), v(vPI), v(vT[1])))
A('v_lshrrev_b32 %s, 1, %s' % (v(vT[2]), v(vWv)))
A('v_lshl_add_u32 %s, %s, 4, %s' % (v(vT[1]), v(vT[2]), v(vT[1])))
A('v_lshlrev_b32 %s, 2, %s' % (v(vT[4]), v(vWv)))
A('v_lshl_add_u32 %s, %s, 4, %s' % (v(vT[2]), v(vWv), v(vL15)))
A('v_lshlrev_b32 %s, 8, %s' % (v(vT[2]), v(vT[2])))
A('v_xor_b32 %s, %s, %s' % (v(vT[3]), v(vROW), v(vL15)))
A('v_lshl_or_b32 %s, %s, 4, %s' % (v(vA4), v(vT[3]), v(vT[2])))
for j in range(1, 4): A('v_xor_b32 %s, 0x%x, %s' % (v(vA4 + j), 64 * j, v(vA4)))
A('v_lshlrev_b32 %s, 5, %s' % (v(vT[7]), v(vT[6])))
A('v_add_u32 %s, %s, %s' % (v(vT[3]), v(vT[4]), v(vT[7])))
A('v_mul_u32_u24 %s, %d, %s' % (v(vT[8]), QS, v(vT[6])))
A('v_lshl_add_u32 %s, %s, 5, %s' % (v(vT[8]), v(vWv), v(vT[8])))
A('v_lshl_add_u32 %s, %s, 3, %s' % (v(vT[8]), v(vROW), v(vT[8])))
A('v_lshlrev_b32 %s, 5, %s' % (v(vT[9]), v(vROW)))
A('v_lshlrev_b32 %s, 4, %s' % (v(oW2), v(vCC)))
A('v_lshl_or_b32 %s, %s, 7, %s' % (v(vT[10]), v(vWv), v(oW2)))
A('v_lshl_or_b32 %s, %s, 10, %s' % (v(vT[10]), v(vROW), v(vT[10])))
A('s_mov_b32 %s, 0x%x' % (sC, (-E1_FS if NOFAST else E1_FS) & 0xffffffff))
A('s_lshl_b32 %s, %s, 12' % (sKV, sJ))
A('s_add_u32 %s, %s, 0x%x' % (sKV, sKV, WS_E2))
A('s_mov_b32 %s, 0' % sFAST)
A('s_cmp_lg_u32 %s, 7' % sW)
A('s_cbranch_scc1 L_FL_DONE')
FB = 64 if not STAMPS else None
A('s_mov_b32 %s, 0' % sCNT)
A('s_mov_b32 s8, %s' % sXT); A('s_mov_b32 s9, %s' % sXT)
A('L_FL:')
if STAMPS:
    for pc in range(4):
        A('s_load_dwordx8 s[40:47], s[10:11], %s' % sCNT) if pc == 0 else A('s_load_dwordx8 s[40:47], s[10:11], %s' % sF)
        A('s_add_u32 %s, %s, %d' % (sF, sCNT, 32 * (pc + 1)))
        A('s_waitcnt lgkmcnt(0)')
        for k in range(4):
            A('s_cmp_eq_u64 s[%d:%d], s[8:9]' % (40 + 2 * k, 41 + 2 * k))
            A('s_cbranch_scc0 L_FL_NO')
else:
    A('s_load_dwordx16 s[64:79], s[10:11], %s' % sCNT)
    A('s_add_u32 %s, %s, 64' % (sF, sCNT))
    A('s_load_dwordx16 s[80:95], s[10:11], %s' % sF)
    A('s_waitcnt lgkmcnt(0)')
    for k in range(16):
        A('s_cmp_eq_u64 s[%d:%d], s[8:9]' % (64 + 2 * k, 65 + 2 * k))
        A('s_cbranch_scc0 L_FL_NO')
A('s_mov_b32 %s, 1' % sFAST)
A('s_branch L_FL_DONE')
A('L_FL_NO:')
if FSLEEP: A('s_sleep %d' % FSLEEP)
A('s_add_u32 %s, %s, 128' % (sCNT, sCNT))
A('s_cmp_lt_u32 %s, %d' % (sCNT, 128 * NREP))
A('s_cbranch_scc1 L_FL')
A('L_FL_DONE:')
A('s_barrier')
stamp(5)
e1l = [ldws(vP0, vT[0], sA), ldws(vP0 + 4, vT[0], sB)]
for l in e1l: A(l)
issued('p'); issued('P0')
A('s_barrier')
for o in S3: op(o)
wait_tag('P0')
for j in range(4): A('ds_read_b128 %s, %s offset:%d' % (v(vK + 4 * j, 4), v(vA4 + j), L_K))
for i, gq in enumerate((vP0, vP0 + 4)): chk_tags(i, gq, vY + i)
A('v_or_b32 %s, %s, %s' % (v(vY), v(vY), v(vY + 1)))
A('v_cmp_ne_u32 vcc, 0, %s' % v(vY))
A('s_cbranch_vccz L_E1_OK')
def flip():
    A('s_add_u32 %s, %s, %s' % (sA, sA, sC))
    A('s_add_u32 %s, %s, %s' % (sB, sB, sC))
    A('s_sub_u32 %s, 0, %s' % (sC, sC))
mpoll(e1l, [vP0, vP0 + 4], chk_tags, each=flip)
A('L_E1_OK:')
stamp(15)
A('v_pk_add_f32 %s, %s, %s' % (v(vP0, 2), v(vP0, 2), v(vP0 + 4, 2)))
A('s_mov_b32 %s, 0x%x' % (sB, LOG2E))
A('v_permlane32_swap_b32 %s, %s' % (v(vP0), v(vP0 + 1)))
A('v_mov_b32 %s, %s' % (v(vP0 + 2), sFAST))
A('v_add_f32 %s, %s, %s' % (v(vP0), v(vP0), v(vP0 + 1)))
A('v_cvt_pk_bf16_f32 %s, %s, %s' % (v(vP0), v(vP0), v(vP0)))
A('ds_write_b16 %s, %s offset:%d' % (v(vT[1]), v(vP0), L_Q))
A('s_cmp_lg_u32 %s, 7' % sW)
A('s_cbranch_scc1 L_NOFW')
A('ds_write_b32 %s, %s offset:%d' % (v(vZ), v(vP0 + 2), L_FLG))
A('L_NOFW:')
for o in S4: op(o)
bar()
for j in range(4): A('ds_read_b128 %s, %s offset:%d' % (v(vFB + 4 * j, 4), v(oFR), L_Q + 64 * j))
A('ds_read_b32 %s, %s offset:%d' % (v(vFA + 8), v(vZ), L_FLG))
stamp(6)
for j in range(4):
    A('s_waitcnt lgkmcnt(%d)' % (4 - j))
    A('v_mfma_f32_16x16x32_bf16 %s, %s, %s, %s' % (v(vACC, 4), v(vK + 4 * j, 4), v(vFB + 4 * j, 4), '0' if j == 0 else v(vACC, 4)))
for o in S5: op(o)
A('s_waitcnt lgkmcnt(0)')
A('v_readfirstlane_b32 %s, %s' % (sFAST, v(vFA + 8)))
A('s_nop 3')
if NOFAST: A('s_mov_b32 %s, 0' % sFAST)
A('v_mov_b32 %s, 0x%x' % (v(vCN + 6), SCALE))
A('v_mov_b32 %s, 0x%x' % (v(vCN + 7), SCALE))
S = vY
for h in range(2): A('v_cvt_pk_bf16_f32 %s, %s, %s' % (v(vT[4 + h]), v(vACC + 2 * h), v(vACC + 2 * h + 1)))
for h in range(2):
    A('v_lshlrev_b32 %s, 16, %s' % (v(S + 2 * h), v(vT[4 + h])))
    A('v_and_b32 %s, 0xffff0000, %s' % (v(S + 2 * h + 1), v(vT[4 + h])))
for h in range(2): A('v_pk_mul_f32 %s, %s, %s' % (v(S + 2 * h, 2), v(S + 2 * h, 2), v(vCN + 6, 2)))
for h in range(2): A('v_cvt_pk_bf16_f32 %s, %s, %s' % (v(vT[4 + h]), v(S + 2 * h), v(S + 2 * h + 1)))
for h in range(2):
    A('v_lshlrev_b32 %s, 16, %s' % (v(S + 2 * h), v(vT[4 + h])))
    A('v_and_b32 %s, 0xffff0000, %s' % (v(S + 2 * h + 1), v(vT[4 + h])))
A('v_max3_f32 %s, %s, %s, %s' % (v(vT[4]), v(S), v(S + 1), v(S + 2)))
A('v_max_f32 %s, %s, %s' % (v(vT[4]), v(vT[4]), v(S + 3)))
allred_rows(vT[4], vT[5], 'max')
A('ds_write_b32 %s, %s offset:%d' % (v(vT[3]), v(vT[4]), L_MAX))
bar()
A('ds_read_b128 %s, %s offset:%d' % (v(vFA, 4), v(vT[7]), L_MAX))
A('ds_read_b128 %s, %s offset:%d' % (v(vFA + 4, 4), v(vT[7]), L_MAX + 16))
A('ds_read_b128 %s, %s offset:%d' % (v(vP1, 4), v(vT[9]), L_MAX))
A('ds_read_b128 %s, %s offset:%d' % (v(vP1 + 4, 4), v(vT[9]), L_MAX + 16))
for o in S6: op(o)
A('s_waitcnt lgkmcnt(2)')
A('v_max3_f32 %s, %s, %s, %s' % (v(vT[4]), v(vFA), v(vFA + 1), v(vFA + 2)))
A('v_max3_f32 %s, %s, %s, %s' % (v(vT[5]), v(vFA + 3), v(vFA + 4), v(vFA + 5)))
A('v_max3_f32 %s, %s, %s, %s' % (v(vT[4]), v(vT[4]), v(vFA + 6), v(vFA + 7)))
A('v_max_f32 %s, %s, %s' % (v(vT[4]), v(vT[4]), v(vT[5])))
A('v_mul_f32 %s, %s, %s' % (v(vT[5]), sB, v(vT[4])))
for i in range(4): A('v_fma_f32 %s, %s, %s, -%s' % (v(S + i), v(S + i), sB, v(vT[5])))
for i in range(4): A('v_exp_f32 %s, %s' % (v(S + i), v(S + i)))
A('v_cvt_pk_bf16_f32 %s, %s, %s' % (v(S + 4), v(S), v(S + 1)))
A('v_add_f32 %s, %s, %s' % (v(vT[4]), v(S), v(S + 1)))
A('v_cvt_pk_bf16_f32 %s, %s, %s' % (v(S + 5), v(S + 2), v(S + 3)))
A('v_add_f32 %s, %s, %s' % (v(vT[5]), v(S + 2), v(S + 3)))
A('ds_write_b64 %s, %s offset:%d' % (v(vT[8]), v(S + 4, 2), L_P))
A('v_add_f32 %s, %s, %s' % (v(vT[4]), v(vT[4]), v(vT[5])))
allred_rows(vT[4], vT[5], 'add')
A('ds_write_b32 %s, %s offset:%d' % (v(vT[3]), v(vT[4]), L_LS))
A('v_max3_f32 %s, %s, %s, %s' % (v(vP1), v(vP1), v(vP1 + 1), v(vP1 + 2))) if False else None
stamp(7)
for o in S7: op(o)
wait_tag('V3')
bar()
def trr(b):
    return ['ds_read_b64_tr_b16 %s, %s offset:%d' % (v(vFA + 4 * b, 2), v(oTR), L_V + 8192 * b),
            'ds_read_b64_tr_b16 %s, %s offset:%d' % (v(vFA + 4 * b + 2, 2), v(oTR), L_V + 8192 * b + 1024)]
A('ds_read_b128 %s, %s offset:%d' % (v(vY, 4), v(vT[9]), L_LS))
A('ds_read_b128 %s, %s offset:%d' % (v(vY + 4, 4), v(vT[9]), L_LS + 16))
for b in range(4):
    A('ds_read_b128 %s, %s offset:%d' % (v(vFB + 4 * b, 4), v(oV), L_P + 64 * b))
    for r_ in trr(b): A(r_)
A('v_max3_f32 %s, %s, %s, %s' % (v(vP1), v(vP1), v(vP1 + 1), v(vP1 + 2)))
A('v_max3_f32 %s, %s, %s, %s' % (v(vP1 + 3), v(vP1 + 3), v(vP1 + 4), v(vP1 + 5)))
A('v_max3_f32 %s, %s, %s, %s' % (v(vP1), v(vP1), v(vP1 + 6), v(vP1 + 7)))
A('v_max_f32 %s, %s, %s' % (v(vP1), v(vP1), v(vP1 + 3)))
A('s_waitcnt lgkmcnt(12)')
A('v_pk_add_f32 %s, %s, %s' % (v(vY, 2), v(vY, 2), v(vY + 2, 2)))
A('v_pk_add_f32 %s, %s, %s' % (v(vY + 4, 2), v(vY + 4, 2), v(vY + 6, 2)))
A('v_pk_add_f32 %s, %s, %s' % (v(vY, 2), v(vY, 2), v(vY + 4, 2)))
A('v_add_f32 %s, %s, %s' % (v(vY), v(vY), v(vY + 1)))
for b in range(4):
    A('s_waitcnt lgkmcnt(%d)' % (9 - 3 * b))
    A('v_mfma_f32_16x16x32_bf16 %s, %s, %s, %s' % (v(vACC, 4), v(vFB + 4 * b, 4), v(vFA + 4 * b, 4), '0' if b == 0 else v(vACC, 4)))
A('v_log_f32 %s, %s' % (v(vG2 + 2), v(vY)))
A('v_rcp_f32 %s, %s' % (v(vY), v(vY)))
A('s_cmp_eq_u32 %s, 0' % sFAST)
A('v_fmac_f32 %s, 0x%x, %s' % (v(vG2 + 2), LOG2E, v(vP1)))
A('v_mul_f32 %s, %s, %s' % (v(vG2), v(vACC), v(vY)))
A('v_mov_b32_dpp %s, %s row_ror:8 row_mask:0xf bank_mask:0xf' % (v(vG2 + 1), v(vG2)))
set_exec(0x00ff00ff00ff00ff)
st_grp(vG2, vT[10], sKV)
set_exec(FULL)
stamp(8)
A('s_cmp_eq_u32 %s, 2' % sROLE)
A('s_cbranch_scc1 L_FIN')
A('s_lshl_b32 %s, %s, 7' % (sB, sW))
A('s_lshl_b32 %s, %s, 17' % (sA, sG))
A('s_add_u32 %s, %s, %s' % (sA, sA, sB))
A('v_lshl_or_b32 %s, %s, 3, %s' % (v(vT[3]), v(vPI), v(vCC)))
A('v_lshl_or_b32 %s, %s, 4, %s' % (v(vT[3]), v(vWv), v(vT[3])))
A('v_lshlrev_b32 %s, 1, %s' % (v(vT[3]), v(vT[3])))
A('v_lshlrev_b32 %s, 4, %s' % (v(vT[2]), v(vROW)))
g4 = [vP0, vP0 + 4, vP1, vP1 + 4]
l4 = [ldws(g4[i], vT[0], s) for i, s in enumerate((sA, sB, sC, sD))]
def wtr():
    for b in range(4):
        A('ds_read_b64_tr_b16 %s, %s offset:%d' % (v(vW1 + 4 * b, 2), v(vT[1]), 8192 * b))
        A('ds_read_b64_tr_b16 %s, %s offset:%d' % (v(vW1 + 4 * b + 2, 2), v(vT[1]), 8192 * b + 1024))
def bfrag():
    for b in range(4): A('ds_read_b128 %s, %s offset:%d' % (v(vFB + 4 * b, 4), v(vT[2]), L_ACC + 64 * b))
def wmfma(acc, afn, bfn, waits=True):
    for b in range(4):
        if waits: A('s_waitcnt lgkmcnt(%d)' % (3 - b))
        A('v_mfma_f32_16x16x32_bf16 %s, %s, %s, %s' % (v(acc, 4), v(afn(b), 4), v(bfn(b), 4), '0' if b == 0 else v(acc, 4)))
A('s_cmp_eq_u32 %s, 1' % sROLE)
A('s_cbranch_scc1 L_ROLE_G')
A('v_lshl_or_b32 %s, %s, 12, %s' % (v(vT[0]), v(vRG8), v(oW2)))
A('s_and_b32 %s, %s, 3' % (sB, sIDX))
A('s_lshl_b32 %s, %s, 10' % (sB, sB))
A('s_add_u32 %s, %s, %s' % (sA, sA, sB))
A('s_add_u32 %s, %s, 0x%x' % (sA, sA, WS_E2))
A('s_add_u32 %s, %s, 0x8000' % (sB, sA))
A('s_add_u32 %s, %s, 0x10000' % (sC, sA))
A('s_add_u32 %s, %s, 0x18000' % (sD, sA))
for l in l4: A(l)
A('v_add_u32 %s, 0x%x, %s' % (v(vT[1]), L_W, v(oTR)))
A('v_lshl_or_b32 %s, %s, 17, %s' % (v(vT[4]), v(vRG8), v(oW2)))
A('v_and_b32 %s, 8, %s' % (v(vT[6]), v(vL)))
A('v_cmp_ne_u32 %s, 0, %s' % (sMSK, v(vT[6])))
A('s_lshl_b32 %s, %s, 15' % (sKV, sRB))
A('s_lshl_b32 %s, %s, 10' % (sM0, sIDX))
A('s_add_u32 %s, %s, %s' % (sKV, sKV, sM0))
A('s_lshl_b32 %s, %s, 7' % (sM0, sW))
A('s_add_u32 %s, %s, %s' % (sKV, sKV, sM0))
A('s_add_u32 %s, %s, 0x%x' % (sKV, sKV, WS_E3))
def lammax():
    A('v_max3_f32 %s, %s, %s, %s' % (v(vT[5]), v(g4[0] + 2), v(g4[1] + 2), v(g4[2] + 2)))
    A('v_max_f32 %s, %s, %s' % (v(vT[5]), v(vT[5]), v(g4[3] + 2)))
mpoll(l4, g4, chk_lam, first_in_flight=True, extra=lammax)
stamp(10)
dpp_add(vT[5], 8, 'max')
allred_rows(vT[5], vT[6], 'max')
for i in range(4): A('v_sub_f32 %s, %s, %s' % (v(g4[i] + 2), v(g4[i] + 2), v(vT[5])))
for i in range(4): A('v_exp_f32 %s, %s' % (v(g4[i] + 2), v(g4[i] + 2)))
A('v_mul_f32 %s, %s, %s' % (v(vP0), v(vP0 + 2), v(vP0)))
A('v_mul_f32 %s, %s, %s' % (v(vP0 + 1), v(vP0 + 2), v(vP0 + 1)))
for i in range(1, 4):
    A('v_fmac_f32 %s, %s, %s' % (v(vP0), v(g4[i] + 2), v(g4[i])))
    A('v_fmac_f32 %s, %s, %s' % (v(vP0 + 1), v(g4[i] + 2), v(g4[i] + 1)))
    A('v_add_f32 %s, %s, %s' % (v(vP0 + 2), v(vP0 + 2), v(g4[i] + 2)))
A('v_mov_b32 %s, %s' % (v(vP0 + 3), v(vP0 + 2)))
A('v_permlane32_swap_b32 %s, %s' % (v(vP0), v(vP0 + 1)))
A('v_permlane32_swap_b32 %s, %s' % (v(vP0 + 2), v(vP0 + 3)))
A('v_add_f32 %s, %s, %s' % (v(vP0), v(vP0), v(vP0 + 1)))
A('v_add_f32 %s, %s, %s' % (v(vP0 + 2), v(vP0 + 2), v(vP0 + 3)))
A('v_mov_b32 %s, %s' % (v(vP0 + 1), v(vP0)))
A('v_mov_b32 %s, %s' % (v(vP0 + 3), v(vP0 + 2)))
A('v_permlane16_swap_b32 %s, %s' % (v(vP0), v(vP0 + 1)))
A('v_permlane16_swap_b32 %s, %s' % (v(vP0 + 2), v(vP0 + 3)))
A('v_add_f32 %s, %s, %s' % (v(vP0 + 2), v(vP0 + 2), v(vP0 + 3)))
A('v_add_f32 %s, %s, %s' % (v(vP0), v(vP0), v(vP0 + 1)))
dpp_add(vP0 + 2, 8); dpp_add(vP0, 8)
A('v_rcp_f32 %s, %s' % (v(vP0 + 2), v(vP0 + 2)))
A('v_mul_f32 %s, %s, %s' % (v(vP0), v(vP0), v(vP0 + 2)))
A('v_cvt_pk_bf16_f32 %s, %s, %s' % (v(vP0), v(vP0), v(vP0)))
A('ds_write_b16 %s, %s offset:%d' % (v(vT[3]), v(vP0), L_ACC))
A('s_waitcnt lgkmcnt(0)')
A('s_barrier')
stamp(9)
for b in range(4):
    A('ds_read_b128 %s, %s offset:%d' % (v(vFB + 4 * b, 4), v(vT[2]), L_ACC + 64 * b))
    A('ds_read_b64_tr_b16 %s, %s offset:%d' % (v(vW1 + 4 * b, 2), v(vT[1]), 8192 * b))
    A('ds_read_b64_tr_b16 %s, %s offset:%d' % (v(vW1 + 4 * b + 2, 2), v(vT[1]), 8192 * b + 1024))
for b in range(4):
    A('s_waitcnt lgkmcnt(%d)' % (9 - 3 * b))
    A('v_mfma_f32_16x16x32_bf16 %s, %s, %s, %s' % (v(vACC, 4), v(vFB + 4 * b, 4), v(vW1 + 4 * b, 4), '0' if b == 0 else v(vACC, 4)))
A('v_mov_b32_dpp %s, %s row_ror:8 row_mask:0xf bank_mask:0xf' % (v(vT[6]), v(vACC)))
A('v_cndmask_b32 %s, %s, %s, %s' % (v(vG), v(vACC + 1), v(vT[6]), sMSK))
A('v_cndmask_b32 %s, %s, %s, %s' % (v(vG + 1), v(vT[6]), v(vACC + 1), sMSK))
if NC < 8: set_exec((1 << (8 * NC)) - 1)
stws(vG, vT[4], sKV)
if NC < 8: set_exec(FULL)
stamp(11)
A('s_cmp_lg_u32 %s, 0' % sRB)
A('s_cbranch_scc1 L_FIN')
A('v_bfe_u32 %s, v0, 3, 5' % v(vT[0]))
A('v_lshl_or_b32 %s, %s, 10, %s' % (v(vT[0]), v(vT[0]), v(oW2)))
A('s_lshr_b32 %s, %s, 3' % (sA, sIDX))
A('s_lshl_b32 %s, %s, 15' % (sA, sA))
A('s_and_b32 %s, %s, 7' % (sB, sIDX))
A('s_lshl_b32 %s, %s, 7' % (sB, sB))
A('s_add_u32 %s, %s, %s' % (sA, sA, sB))
A('s_and_b32 %s, %s, %d' % (sB, sG, NC - 1))
A('s_lshl_b32 %s, %s, 17' % (sB, sB))
A('s_add_u32 %s, %s, %s' % (sA, sA, sB))
A('s_add_u32 %s, %s, 0x%x' % (sA, sA, WS_E3))
A('v_lshlrev_b32 %s, 1, %s' % (v(vT[1]), v(vL15)))
A('s_lshl_b32 %s, %s, 5' % (sD, sIDX))
A('buffer_load_ushort %s, %s, %s, %s offen' % (v(vX4), v(vT[1]), srd(SRD_X), sD))
A('v_lshl_or_b32 %s, %s, 3, %s' % (v(vT[2]), v(vPI), v(vCC)))
A('v_lshl_or_b32 %s, %s, 3, %s' % (v(vT[2]), v(vT[2]), v(vWv)))
A('v_lshlrev_b32 %s, 2, %s' % (v(vT[2]), v(vT[2])))
A('v_lshlrev_b32 %s, 5, %s' % (v(vT[3]), v(vL15)))
A('v_lshl_or_b32 %s, %s, 3, %s' % (v(vT[3]), v(vROW), v(vT[3])))
A('v_lshrrev_b32 %s, 3, v0' % v(vT[4]))
A('v_cmp_gt_u32 %s, 48, %s' % (sMSK, v(vT[4])))
A('v_mul_u32_u24 %s, %d, %s' % (v(vT[4]), E5_S, v(vT[4])))
A('v_add_u32 %s, %s, %s' % (v(vT[4]), v(oW2), v(vT[4])))
A('v_add_u32 %s, %d, %s' % (v(vT[5]), 64 * E5_S, v(vT[4])))
A('v_cndmask_b32 %s, %s, %s, %s' % (v(vT[5]), v(vT[4]), v(vT[5]), sMSK))
A('s_lshl_b32 %s, %s, 7' % (sB, sIDX))
A('s_add_u32 %s, %s, 0x%x' % (sB, sB, WS_E5))
mpoll([ldws(vP0, vT[0], sA)], [vP0], chk_tags, sleep=SLEEP)
red8(vP0)
A('ds_write_b32 %s, %s offset:%d' % (v(vT[2]), v(vP0), L_R1))
A('v_lshlrev_b32 %s, 16, %s' % (v(vX4), v(vX4)))
A('s_waitcnt lgkmcnt(0)')
A('s_barrier')
A('ds_read_b64 %s, %s offset:%d' % (v(vP1, 2), v(vT[3]), L_R1))
A('s_waitcnt lgkmcnt(0)')
A('v_add_f32 %s, %s, %s' % (v(vP1), v(vP1), v(vP1 + 1)))
allred_rows(vP1, vP1 + 1, 'add', (16,))
resid1(vP1, vX4)
A('v_lshlrev_b32 %s, 16, %s' % (v(vX4), v(vP1)))
stamp(12)
def fin2(st):
    A('v_cndmask_b32 %s, 0, %s, %s' % (v(vACC + 2), v(st[1]), sMSK))
    A('v_cndmask_b32 %s, 0, %s, %s' % (v(vACC + 3), v(st[1] + 1), sMSK))
    A('v_pk_add_f32 %s, %s, %s' % (v(vACC, 2), v(st[0], 2), v(vACC + 2, 2)))
if NSET > 1:
    ppoll(lambda i, r: ldws(r, (vT[4], vT[5])[i], sB), 2, [[vP0, vP0 + 4], [vFA, vFA + 4], [vFA + 8, vFA + 12], [vEX, vEX + 4]][:NSET + 1], fin2)
else:
    mpoll([ldws(vP0, vT[4], sB), ldws(vP0 + 4, vT[5], sB)], [vP0, vP0 + 4], chk_tags, sleep=SLEEP)
    fin2([vP0, vP0 + 4])
stamp(13)
red8(vACC)
A('ds_write_b32 %s, %s offset:%d' % (v(vT[2]), v(vACC), L_R2))
A('s_waitcnt lgkmcnt(0)')
A('s_barrier')
A('s_cmp_lg_u32 %s, 0' % sW)
A('s_cbranch_scc1 L_FIN')
A('ds_read_b64 %s, %s offset:%d' % (v(vACC, 2), v(vT[3]), L_R2))
A('s_waitcnt lgkmcnt(0)')
A('v_add_f32 %s, %s, %s' % (v(vACC), v(vACC), v(vACC + 1)))
allred_rows(vACC, vACC + 1, 'add')
resid1(vACC, vX4)
set_exec(0xffff)
A('buffer_store_short %s, %s, %s, %s offen' % (v(vACC), v(vT[1]), SRD_OUT, sD))
A('s_cmp_lg_u32 %s, 0' % sIDX)
A('s_cbranch_scc1 L_NOEP')
set_exec(1)
A('buffer_store_dword %s, %s, %s, 0 offen offset:%d' % (v(vG + 2), v(vT[1]), SRD_WS, WS_EPOCH))
A('L_NOEP:')
set_exec(FULL)
stamp(14)
A('s_branch L_FIN')
A('L_ROLE_G:')
A('s_barrier')
if not GEARLY:
    for i in range(4): tone()
A('s_lshl_b32 %s, %s, 11' % (sM0, sW))
A('s_add_u32 %s, %s, %s' % (sO4, sO4, sM0))
A('s_add_u32 %s, %s, %d' % (sM0, sM0, L_K))
A('s_mov_b32 m0, %s' % sM0)
A('s_lshl_b32 %s, %s, 1' % (sC, sW))
A('s_and_b32 %s, %s, 2' % (sC, sC))
A('s_and_b32 %s, %s, 4' % (sD, sW))
A('s_or_b32 %s, %s, %s' % (sC, sC, sD))
A('s_lshl_b32 %s, %s, 5' % (sC, sC))
A('v_xor_b32 %s, %s, %s' % (v(vT[5]), sC, v(oX)))
A('buffer_load_dwordx4 %s, %s, %s offen nt lds' % (v(vT[5]), srd(SRD_W2), sO4))
A('v_xor_b32 %s, 32, %s' % (v(vT[5]), v(vT[5])))
A('buffer_load_dwordx4 %s, %s, %s offen offset:1024 nt lds' % (v(vT[5]), srd(SRD_W2), sO4))
A('s_lshl_b32 %s, %s, 8' % (sC, sRB))
A('buffer_load_ushort %s, %s, %s, %s offen' % (v(vXR), v(vT[3]), srd(SRD_X), sC))
A('v_lshl_or_b32 %s, %s, 10, %s' % (v(vT[0]), v(vRG8), v(oW2)))
A('s_and_b32 %s, %s, 1' % (sE, sW))
A('s_lshl_b32 %s, %s, 2' % (sE, sE))
A('s_lshr_b32 %s, %s, 1' % (sD, sW))
A('s_or_b32 %s, %s, %s' % (sC, sE, sD))
A('s_xor_b32 %s, %s, %s' % (sC, sC, sW))
A('s_lshl_b32 %s, %s, 5' % (sC, sC))
A('v_xor_b32 %s, %s, %s' % (v(vT[1]), sC, v(oTR)))
A('v_add_u32 %s, 0x%x, %s' % (v(vT[1]), L_W, v(vT[1])))
A('s_andn2_b32 %s, %s, 3' % (sKV, sIDX))
A('s_add_u32 %s, %s, %s' % (sKV, sKV, sD))
A('s_lshl_b32 %s, %s, 12' % (sKV, sKV))
A('s_add_u32 %s, %s, 0x%x' % (sKV, sKV, WS_E4))
A('s_add_u32 %s, %s, %s' % (sE, sE, sRB))
A('v_lshrrev_b32 %s, 1, %s' % (v(vT[4]), v(vCC)))
A('v_lshlrev_b32 %s, 8, %s' % (v(vT[4]), v(vT[4])))
A('v_and_b32 %s, 1, %s' % (v(vT[6]), v(vL)))
A('v_lshl_or_b32 %s, %s, 4, %s' % (v(vT[4]), v(vT[6]), v(vT[4])))
A('v_lshl_add_u32 %s, %s, 5, %s' % (v(vT[4]), sE, v(vT[4])))
A('s_lshl_b32 %s, %s, 4' % (sE, sE))
A('s_add_u32 %s, %s, 2048' % (sE, sE))
A('v_mov_b32 %s, %s' % (v(vT[7]), sE))
A('v_cmp_eq_u32 s[10:11], 8, %s' % v(vL))
A('v_and_b32 %s, 8, %s' % (v(vT[6]), v(vL)))
A('v_cmp_ne_u32 %s, 0, %s' % (sMSK, v(vT[6])))
A('v_cndmask_b32 %s, %s, %s, s[10:11]' % (v(oFR), v(vT[4]), v(vT[7])))
A('s_add_u32 %s, %s, 1024' % (sE, sKV))
A('v_and_b32 %s, 14, %s' % (v(oWQ), v(vL)))
A('v_lshlrev_b32 %s, 3, %s' % (v(oWQ), v(oWQ)))
A('s_and_b32 %s, %s, 0x%x' % (sA, sA, (NC << 17) - 1))
A('s_lshl_b32 %s, %s, 15' % (sB, sRB))
A('s_add_u32 %s, %s, %s' % (sA, sA, sB))
A('s_add_u32 %s, %s, 0x%x' % (sA, sA, WS_E3))
A('s_add_u32 %s, %s, 0x2000' % (sB, sA))
A('s_add_u32 %s, %s, 0x4000' % (sC, sA))
A('s_add_u32 %s, %s, 0x6000' % (sD, sA))
A('s_lshl_b32 %s, %s, 12' % (sJ, sIDX))
A('s_add_u32 %s, %s, 0x%x' % (sJ, sJ, WS_E4))
A('s_mul_i32 %s, %s, %d' % (sSTEP, sIDX, E5_S))
A('s_add_u32 %s, %s, 0x%x' % (sSTEP, sSTEP, WS_E5))
A('v_bfe_u32 %s, %s, 3, 1' % (v(vT[6]), v(vL)))
A('v_lshl_or_b32 %s, %s, 1, %s' % (v(vT[6]), v(vROW), v(vT[6])))
A('v_bfe_u32 %s, %s, 2, 1' % (v(vT[7]), v(vL)))
A('v_and_b32 %s, 3, %s' % (v(oK), v(vT[6])))
A('v_lshl_or_b32 %s, %s, 2, %s' % (v(oK), v(vT[7]), v(oK)))
A('v_lshl_or_b32 %s, %s, 3, %s' % (v(vT[6]), v(vT[7]), v(vT[6])))
A('v_lshlrev_b32 %s, 2, %s' % (v(vT[7]), v(vWv)))
A('v_xor_b32 %s, %s, %s' % (v(oK), v(oK), v(vT[7])))
A('v_lshlrev_b32 %s, 5, %s' % (v(oK), v(oK)))
A('v_lshl_or_b32 %s, %s, 10, %s' % (v(oK), v(vT[6]), v(oK)))
A('v_and_b32 %s, 3, %s' % (v(vT[6]), v(vL)))
A('v_lshl_or_b32 %s, %s, 3, %s' % (v(oK), v(vT[6]), v(oK)))
A('v_lshl_or_b32 %s, %s, 7, %s' % (v(oV), v(vROW), v(oW2)))
A('v_lshl_or_b32 %s, %s, 9, %s' % (v(oV), v(vWv), v(oV)))
A('v_cmp_eq_u32 s[98:99], 1, %s' % v(vROW))
for i in range(4): A('v_mov_b32 %s, %s' % (v(vA4 + i), sONE))
A('s_waitcnt vmcnt(0)')
A('s_barrier')
stamp(9)
wtr()
for t4 in range(4):
    if t4: A('v_xor_b32 %s, %d, %s' % (v(vT[6]), 32 * t4, v(oK)))
    A('ds_read_b64_tr_b16 %s, %s offset:%d' % (v(vW2 + 2 * t4, 2), v(vT[6] if t4 else oK), L_K))
for l in l4: A(l)
A('s_waitcnt lgkmcnt(0)')
wmfma(vACC, lambda b: vA4, lambda b: vW1 + 4 * b, waits=False)
A('v_mov_b32 %s, %s' % (v(vG), v(vACC)))
A('v_mov_b32_dpp %s, %s row_ror:8 row_mask:0xf bank_mask:0xf' % (v(vG + 1), v(vACC)))
set_exec(0xff)
st_grp(vG, vT[4], sE)
set_exec(FULL)
stamp(10)
A('v_lshlrev_b32 %s, 16, %s' % (v(vXR), v(vXR)))
if NSET > 1:
    def fin4(st):
        A('v_pk_add_f32 %s, %s, %s' % (v(vACC, 2), v(st[0], 2), v(st[1], 2)))
        A('v_pk_add_f32 %s, %s, %s' % (v(vACC + 2, 2), v(st[2], 2), v(st[3], 2)))
        A('v_pk_add_f32 %s, %s, %s' % (v(vACC, 2), v(vACC, 2), v(vACC + 2, 2)))
    A('s_waitcnt vmcnt(0)')
    ppoll(lambda i, r: ldws(r, vT[0], (sA, sB, sC, sD)[i]), 4, [g4, [vFA + 4 * i for i in range(4)], [vEX + 4 * i for i in range(4)]][:NSET], fin4)
else:
    mpoll(l4, g4, chk_tags, first_in_flight=True, sleep=SLEEP)
    A('v_pk_add_f32 %s, %s, %s' % (v(vP0, 2), v(vP0, 2), v(vP0 + 4, 2)))
    A('v_pk_add_f32 %s, %s, %s' % (v(vP1, 2), v(vP1, 2), v(vP1 + 4, 2)))
    A('v_pk_add_f32 %s, %s, %s' % (v(vACC, 2), v(vP0, 2), v(vP1, 2)))
stamp(11)
red8(vACC)
resid1(vACC, vXR)
A('ds_write_b16 %s, %s offset:%d' % (v(vT[3]), v(vACC), L_ACC))
A('s_waitcnt lgkmcnt(0)')
A('s_barrier')
bfrag()
A('s_bitcmp1_b32 %s, 0' % sW)
A('s_cbranch_scc1 L_ST_UP')
for b in range(4):
    A('s_waitcnt lgkmcnt(%d)' % (3 - b))
    A('v_mfma_f32_16x16x32_bf16 %s, %s, %s, %s' % (v(vACC, 4), v(vFB + 4 * b, 4), v(vW1 + 4 * b, 4), '0' if b == 0 else v(vACC, 4)))
    A('v_mfma_f32_16x16x32_bf16 %s, %s, %s, %s' % (v(vY, 4), v(vFB + 4 * b, 4), v(vFB + 4 * b, 4), '0' if b == 0 else v(vY, 4)))
A('s_branch L_ST_GO')
A('L_ST_UP:')
a.hist = []
for b in range(4):
    A('s_waitcnt lgkmcnt(%d)' % (3 - b))
    A('v_mfma_f32_16x16x32_bf16 %s, %s, %s, %s' % (v(vACC, 4), v(vFB + 4 * b, 4), v(vW1 + 4 * b, 4), '0' if b == 0 else v(vACC, 4)))
    A('v_mfma_f32_16x16x32_bf16 %s, %s, %s, %s' % (v(vY, 4), v(vFB + 4 * b, 4), v(vA4, 4), '0' if b == 0 else v(vY, 4)))
A('L_ST_GO:')
A('v_mov_b32_dpp %s, %s row_ror:8 row_mask:0xf bank_mask:0xf' % (v(vG + 1), v(vACC)))
A('v_cndmask_b32 %s, %s, %s, s[10:11]' % (v(vG), v(vACC + 1), v(vY)))
set_exec(0x1ff)
st_grp(vG, oFR, sKV)
set_exec(FULL)
stamp(12)
mpoll([ldws(vP0, oX, sJ), ldws(vP0 + 4, oWQ, sJ, 2048), ldws(vCS, oX, sJ, 1024)], [vP0, vP0 + 4, vCS], chk_tags)
stamp(13)
PR = ((vP0 + 4, vP0 + 5), (vP0, vP0 + 2), (vP0 + 1, vP0 + 3), (vCS, vCS + 2), (vCS + 1, vCS + 3))
for r, d in PR: dpp(r, r, 'quad_perm:[2,3,0,1]')
for r, d in PR: A('v_add_f32_dpp %s, %s, %s row_shr:4 row_mask:0xf bank_mask:0xa' % (v(d), v(r), v(r)))
for r, d in PR: A('v_add_f32_dpp %s, %s, %s row_shl:4 row_mask:0xf bank_mask:0x5' % (v(d), v(r), v(r)))
A('v_mov_b32_dpp %s, %s row_ror:8 row_mask:0xf bank_mask:0xf' % (v(vP0 + 4), v(vP0 + 5)))
A('v_cndmask_b32 %s, %s, %s, %s' % (v(vP0 + 6), v(vP0 + 4), v(vP0 + 5), sMSK))
A('v_cndmask_b32 %s, %s, %s, %s' % (v(vP0 + 7), v(vP0 + 5), v(vP0 + 4), sMSK))
ln_stats(vP0 + 6, vP0 + 7, vT[5], vT[6], vT[7])
for i in range(2): A('v_fma_f32 %s, -%s, %s, %s' % (v(vP0 + i), v(vT[5]), v(vCS + 2 + i), v(vP0 + 2 + i)))
for i in range(2): A('v_mul_f32 %s, %s, %s' % (v(vP0 + i), v(vP0 + i), v(vT[6])))
A('v_cvt_pk_bf16_f32 %s, %s, %s' % (v(vT[7]), v(vP0), v(vP0 + 1)))
A('v_lshlrev_b32 %s, 16, %s' % (v(vP0), v(vT[7])))
A('v_and_b32 %s, 0xffff0000, %s' % (v(vP0 + 1), v(vT[7])))
A('v_max_f32 %s, 0, %s' % (v(vP0 + 2), v(vP0)))
A('v_max_f32 %s, 0, %s' % (v(vP0 + 3), v(vP0 + 1)))
A('v_cndmask_b32 %s, %s, %s, %s' % (v(vP0), v(vP0 + 2), v(vP0), sMSK))
A('v_cndmask_b32 %s, %s, %s, %s' % (v(vP0 + 1), v(vP0 + 3), v(vP0 + 1), sMSK))
dpp(vP0, vP0, 'row_ror:8', 'mul'); dpp(vP0 + 1, vP0 + 1, 'row_ror:8', 'mul')
A('v_cvt_pk_bf16_f32 %s, %s, %s' % (v(vT[7]), v(vP0), v(vP0 + 1)))
A('v_mov_b32_dpp %s, %s quad_perm:[0,0,2,2] row_mask:0xf bank_mask:0xf' % (v(vX4), v(vT[7])))
A('v_mov_b32_dpp %s, %s quad_perm:[1,1,3,3] row_mask:0xf bank_mask:0xf' % (v(vX4 + 1), v(vT[7])))
for t4 in range(4):
    A('v_mfma_f32_16x16x16_bf16 %s, %s, %s, 0' % (v(vFA + 4 * t4, 4), v(vX4, 2), v(vW2 + 2 * t4, 2)))
A('v_cndmask_b32 %s, %s, %s, s[98:99]' % (v(vG), v(vFA), v(vFA + 4)))
A('s_mov_b32 exec_lo, 0')
A('v_mov_b32 %s, %s' % (v(vG), v(vFA + 8)))
A('s_mov_b32 exec_hi, 0xffff0000')
A('v_mov_b32 %s, %s' % (v(vG), v(vFA + 12)))
set_exec(FULL)
A('v_mov_b32_dpp %s, %s row_ror:8 row_mask:0xf bank_mask:0xf' % (v(vG + 1), v(vG)))
set_exec(0x00ff00ff00ff00ff)
stws(vG, oV, sSTEP)
set_exec(FULL)
stamp(14)
A('L_FIN:')
if STAMPS:
    A('s_waitcnt lgkmcnt(0)')
    A('v_mov_b32 %s, 0' % v(vT[8]))
    for i in range(16): A('v_writelane_b32 %s, s%d, %d' % (v(vT[8]), 64 + 2 * i, i))
    A('s_lshl_b32 %s, s2, 9' % sB)
    A('s_lshl_b32 %s, %s, 6' % (sC, sW))
    A('s_add_u32 %s, %s, %s' % (sB, sB, sC))
    A('s_add_u32 %s, %s, 0x%x' % (sB, sB, WS_ST))
    A('v_lshlrev_b32 %s, 2, %s' % (v(vT[9]), v(vL)))
    set_exec(0xffff)
    A('buffer_store_dword %s, %s, %s, %s offen' % (v(vT[8]), v(vT[9]), SRD_WS, sB))
A('L_END:')
A('s_endpgm')
a.raw('.fill 64, 4, 0xbf800000')
a.raw('.p2align 13, 0')
nv = (NVGPR + 7) // 8 * 8
a.raw('''.section .rodata,"a"
.p2align 6
.amdhsa_kernel %s_kernel
  .amdhsa_next_free_vgpr %d
  .amdhsa_next_free_sgpr 102
  .amdhsa_accum_offset %d
  .amdhsa_group_segment_fixed_size 0
  .amdhsa_kernarg_size 96
  .amdhsa_user_sgpr_count 2
  .amdhsa_user_sgpr_kernarg_segment_ptr 1
  .amdhsa_system_sgpr_workgroup_id_x 1
  .amdhsa_float_denorm_mode_32 3
.end_amdhsa_kernel''' % (NAME, nv, nv))
open(OUT, 'w').write(a.text())
print('wrote', OUT, 'vgprs', NVGPR)
```

```python
import sys
from asmlib import Asm

NAME = 'sequential_preLN__sliding_block_cached__glu_gated_reglu__decode'
STAMPS = '--stamps' in sys.argv
NOFAST = '--nofast' in sys.argv
def OPT(name, d=0):
    for a_ in sys.argv:
        if a_.startswith('--%s=' % name): return int(a_.split('=')[1])
    return d
FSLEEP = OPT('fsleep', 2)
OUT = [a for a in sys.argv[1:] if not a.startswith('--')]
OUT = OUT[0] if OUT else 'cdna_kernels/%s.s' % NAME

WS_EPOCH = 0
WS_FL = 0x8000
WS_E1 = 0x10000; E1_K = 4352; E1_G = 4 * E1_K; E1_FS = 0x24000
WS_E3 = 0x60000
WS_E4 = 0x80000
WS_E2 = 0x100000
WS_E5 = 0x200000
WS_ST = 0x500000
WS_SIZE = 0x600000
QS = 272
L_QACC = 0; L_Q = 2048; L_P = L_Q + 4 * QS
L_MAX = L_P + 4 * QS; L_LS = L_MAX + 128
L_R1 = L_LS + 128; L_R2 = L_R1 + 512; L_ACC = L_R2 + 512
L_FLG = L_ACC + 256
L_V = 8192; L_K = L_V + 32768; L_W = L_K + 32768
LDS_BYTES = L_W + 32768
LOG2E = 0x3fb8aa3b; SCALE = 0x3db504f3; EPS = 0x3727c5ac; INV512 = 0x3b000000; ONES = 0x3f803f80
SPIN = 1 << 21

a = Asm(); A = a
sW, sG, sR = 's3', 's4', 's5'
sTAG = 's[6:7]'; sTA, sTB = 's6', 's7'
sMSK = 's[8:9]'
sSELLO, sSELHI = 's12', 's13'
sCNT = 's14'; sONE = 's15'
SRD_WS = 's[16:19]'; SRD_OUT = 's[20:23]'
sA, sB, sC, sD = 's24', 's25', 's26', 's27'
sKV = 's28'; sJ = 's29'; sSTEP = 's30'; sIDX = 's31'; sRB = 's32'; sM0 = 's33'
sXT = 's34'; sROLE = 's35'
SRD_X, SRD_WQ, SRD_K, SRD_V, SRD_W2 = 36, 40, 44, 48, 52
pWO, pWG, pWU = 56, 60, 62
sHI = 's58'; sE = 's59'; sFAST = 's96'; sF = 's97'; sVM = 's98'; sVS = 's99'; s8K = 's100'; sLG = 's101'
MS = ['s[40:41]', 's[42:43]', 's[44:45]', 's[46:47]']
def srd(n): return 's[%d:%d]' % (n, n + 3)
W3 = 's%d' % (SRD_X + 3)

class V:
    n = 0
    @classmethod
    def alloc(cls, k=1, align=1):
        cls.n = (cls.n + align - 1) // align * align
        r = cls.n; cls.n += k
        return r
def v(r, k=1): return 'v%d' % r if k == 1 else 'v[%d:%d]' % (r, r + k - 1)
vTID = V.alloc(); vL = V.alloc(); vZ = V.alloc()
vWv = V.alloc(); vPI = V.alloc(); vL15 = V.alloc(); vROW = V.alloc(); vCC = V.alloc()
vT = [V.alloc() for _ in range(12)]
oX, oXR, oWQ, oK, oV, oW2, oTR, oFR = [V.alloc() for _ in range(8)]
vK = V.alloc(16, 4); vW1 = vK
vFB = V.alloc(16, 4); vFA = V.alloc(16, 4)
vXF = vFB; vWQa = vFB + 4; vWQb = vFB + 8
vW2 = V.alloc(8, 4); vY = V.alloc(8, 4); vACC = V.alloc(4, 4)
vG = V.alloc(4, 4); vG2 = V.alloc(4, 4)
vP0 = V.alloc(8, 4); vP1 = V.alloc(8, 4)
vCS = V.alloc(4, 4); vA4 = V.alloc(4, 4); vCN = V.alloc(4, 4)
vXR = V.alloc(2, 2); vX4 = V.alloc(2, 2); vWA = V.alloc(2, 2); oVD = V.alloc(); vDUM = V.alloc()
NVGPR = V.n

def stamp(i):
    if STAMPS: A('s_memrealtime s[%d:%d]' % (64 + 2 * i, 65 + 2 * i))
lab = [0]
def newlab(p='L'):
    lab[0] += 1
    return '%s%d' % (p, lab[0])
def dpp(d, s, mod, op='add'):
    A('v_%s_f32_dpp %s, %s, %s %s row_mask:0xf bank_mask:0xf' % (op, v(d), v(s), v(s), mod))
def dpp_add(d, ror, op='add'): dpp(d, d, 'row_ror:%d' % ror, op)
def movdpp(d, s, mod): A('v_mov_b32_dpp %s, %s %s row_mask:0xf bank_mask:0xf' % (v(d), v(s), mod))
def allred_rows(x, t, op='add', which=(16, 32)):
    for wdt in which:
        A('v_mov_b32 %s, %s' % (v(t), v(x)))
        A('v_permlane%d_swap_b32 %s, %s' % (wdt, v(x), v(t)))
        A('v_%s_f32 %s, %s, %s' % (op, v(x), v(x), v(t)))
def hi16(d, s): A('v_and_b32 %s, %s, %s' % (v(d), sHI, v(s)))
def lo16(d, s): A('v_lshlrev_b32 %s, 16, %s' % (v(d), v(s)))
def cvt(d, x, y): A('v_cvt_pk_bf16_f32 %s, %s, %s' % (v(d), v(x), v(y)))
def bf16r(d, s): cvt(d, s, s); hi16(d, d)
def ln_stats(vsum, vsq, vm, vr, t):
    A('v_mul_f32 %s, 0x%x, %s' % (v(vsum), INV512, v(vsum)))
    A('v_mul_f32 %s, 0x%x, %s' % (v(vsq), INV512, v(vsq)))
    A('v_fma_f32 %s, -%s, %s, %s' % (v(vsq), v(vsum), v(vsum), v(vsq)))
    A('v_max_f32 %s, 0, %s' % (v(vsq), v(vsq)))
    cvt(t, vsum, vsq)
    lo16(vm, t); hi16(vr, t)
    A('v_add_f32 %s, 0x%x, %s' % (v(vr), EPS, v(vr)))
    bf16r(vr, vr)
    A('v_sqrt_f32 %s, %s' % (v(vr), v(vr)))
    bf16r(vr, vr)
    A('v_rcp_f32 %s, %s' % (v(vr), v(vr)))
FULL = (1 << 64) - 1
def set_exec(mask):
    lo, hi = mask & 0xffffffff, mask >> 32
    if mask == FULL: A('s_mov_b64 exec, -1')
    elif hi == 0 and lo <= 64: A('s_mov_b64 exec, %d' % lo)
    elif hi == 0 and lo < 0x80000000: A('s_mov_b64 exec, 0x%x' % lo)
    elif lo == hi:
        A('s_mov_b32 exec_lo, 0x%x' % lo); A('s_mov_b32 exec_hi, exec_lo')
    else: raise ValueError
def mpoll(loads, grans, check, first_in_flight=False, extra=None, each=None):
    top = newlab('P'); done = newlab('D'); chk = newlab('C')
    A('s_mov_b32 %s, %d' % (sCNT, SPIN))
    if not first_in_flight:
        for l in loads: A(l)
    A('s_branch %s' % chk)
    A('%s:' % top)
    if each: each()
    for i, l in enumerate(loads):
        sk = newlab('K')
        A('s_mov_b64 exec, %s' % MS[i])
        A('s_cbranch_execz %s' % sk)
        A(l)
        A('%s:' % sk)
    A('s_mov_b64 exec, -1')
    A('%s:' % chk)
    A('s_waitcnt vmcnt(0)')
    for i, gq in enumerate(grans): check(i, gq, vY + i)
    for i, gq in enumerate(grans): A('v_cmp_ne_u32 %s, 0, %s' % (MS[i], v(vY + i)))
    if extra: extra()
    A('s_sub_u32 %s, %s, 1' % (sCNT, sCNT))
    A('s_cbranch_scc1 %s' % done)
    A('s_or_b64 vcc, %s, %s' % (MS[0], MS[1 if len(grans) > 1 else 0]))
    for i in range(2, len(grans)): A('s_or_b64 vcc, vcc, %s' % MS[i])
    A('s_cbranch_scc1 %s' % top)
    A('%s:' % done)
def chk_tags(i, gq, t):
    A('v_xor_b32 %s, %s, %s' % (v(t), sTA, v(gq + 2)))
    A('v_xor_b32 %s, %s, %s' % (v(t + 4), sTB, v(gq + 3)))
    A('v_or_b32 %s, %s, %s' % (v(t), v(t), v(t + 4)))
def chk_lam(i, gq, t):
    A('v_xor_b32 %s, %s, %s' % (v(t), sTA, v(gq + 3)))
    A('v_xor_b32_dpp %s, %s, %s quad_perm:[1,0,3,2] row_mask:0xf bank_mask:0xf' % (v(t + 4), v(gq + 2), v(gq + 2)))
    A('v_or_b32 %s, %s, %s' % (v(t), v(t), v(t + 4)))
def ldws(dst, voff, soff, imm=0):
    return 'buffer_load_dwordx4 %s, %s, %s, %s offen%s sc1' % (v(dst, 4), v(voff), SRD_WS, soff, (' offset:%d' % imm) if imm else '')
def stws(src, voff, soff, sc1=True):
    A('buffer_store_dwordx4 %s, %s, %s, %s offen%s' % (v(src, 4), v(voff), SRD_WS, soff, ' sc1' if sc1 else ''))
def st_grp(src, voff, soff):
    l1 = newlab('S'); l2 = newlab('S')
    A('s_cmp_eq_u32 %s, 0' % sFAST)
    A('s_cbranch_scc1 %s' % l1)
    stws(src, voff, soff, False)
    A('s_branch %s' % l2)
    A('%s:' % l1)
    stws(src, voff, soff, True)
    A('%s:' % l2)
def red8(x):
    A('v_permlane32_swap_b32 %s, %s' % (v(x), v(x + 1)))
    A('v_add_f32 %s, %s, %s' % (v(x), v(x), v(x + 1)))
    allred_rows(x, x + 1, 'add', (16,))
    dpp_add(x, 8)
def resid1(x, base):
    bf16r(x, x)
    A('v_add_f32 %s, %s, %s' % (v(x), v(x), v(base)))
    cvt(x, x, x)
def bar():
    A('s_waitcnt lgkmcnt(0)')
    A('s_barrier')
def mfma(acc, x, y, first): A('v_mfma_f32_16x16x32_bf16 %s, %s, %s, %s' % (v(acc, 4), v(x, 4), v(y, 4), '0' if first else v(acc, 4)))
def kdma(i):
    if i: A('v_xor_b32 %s, 0x%x, %s' % (v(vT[11]), 64 * i, v(oK)))
    A('buffer_load_dwordx4 %s, %s, %s offen offset:%d nt lds' % (v(vT[11] if i else oK), srd(SRD_K), sVS, 1024 * i))
def vdma():
    A('s_mov_b32 m0, %s' % sVM)
    A('s_add_u32 %s, %s, %s' % (sVM, sVM, s8K))
    A('buffer_load_dwordx4 %s, %s, %s offen nt lds' % (v(oVD), srd(SRD_V), sVS))
    A('s_add_u32 %s, %s, %s' % (sVS, sVS, s8K))
def tone():
    A('s_mov_b32 m0, %s' % sM0)
    A('s_add_u32 %s, %s, %s' % (sM0, sM0, s8K))
    A('global_load_lds_dwordx4 %s, off nt' % v(vWA, 2))
    A('v_lshl_add_u64 %s, %s, 0, s[30:31]' % (v(vWA, 2), v(vWA, 2)))
def fin():
    if STAMPS: A('s_branch L_FIN')
    else: A('s_endpgm')

head = []
for l in open('cdna_kernels/%s.s.ref' % NAME).read().split('\n'):
    if not l.startswith(';'): break
    head.append('; @launch grid=(256,1,1) block=(512,1,1) lds=%d' % LDS_BYTES if l.startswith('; @launch') else l)
a.raw('\n'.join(head))
a.raw('.amdgcn_target "amdgcn-amd-amdhsa--gfx950"\n.text\n.globl %s_kernel\n.p2align 12\n.type %s_kernel,@function\n%s_kernel:' % (NAME, NAME, NAME))
sIDX = 's29'
A('s_load_dwordx2 s[%d:%d], s[0:1], 24' % (SRD_WQ, SRD_WQ + 1))
A('s_load_dwordx2 s[%d:%d], s[0:1], 0' % (SRD_X, SRD_X + 1))
A('s_load_dwordx2 s[16:17], s[0:1], 88')
A('s_load_dwordx2 s[%d:%d], s[0:1], 8' % (SRD_K, SRD_K + 1))
A('s_lshr_b32 %s, s2, 3' % sR)
A('s_cmp_ge_u32 %s, 32' % sR)
A('s_cbranch_scc1 L_END0')
A('v_readfirstlane_b32 %s, v0' % sW)
A('v_and_b32 %s, 63, v0' % v(vL))
A('s_and_b32 %s, s2, 7' % sG)
A('s_and_b32 %s, %s, 3' % (sRB, sR))
A('s_lshr_b32 %s, %s, 2' % (sE, sR))
if STAMPS:
    for i in range(16): A('s_mov_b64 s[%d:%d], 0' % (64 + 2 * i, 65 + 2 * i))
stamp(0)
A('v_lshrrev_b32 %s, 3, v0' % v(vT[0]))
A('v_and_b32 %s, 7, v0' % v(vCC))
A('v_lshlrev_b32 %s, 4, %s' % (v(oW2), v(vCC)))
A('v_lshl_or_b32 %s, %s, 14, %s' % (v(oWQ), v(vT[0]), v(oW2)))
A('s_lshl_b32 %s, %s, 20' % (sA, sRB))
A('s_lshl_b32 %s, %s, 10' % (sC, sG))
A('s_add_u32 %s, %s, %s' % (sA, sA, sC))
A('s_lshl_b32 %s, %s, 7' % (sC, sE))
A('s_add_u32 %s, %s, %s' % (sA, sA, sC))
A('s_movk_i32 %s, 8192' % s8K)
A('s_add_u32 %s, %s, %s' % (sB, sA, s8K))
A('s_mov_b32 %s, 0x20000' % W3)
A('s_lshl_b32 s%d, %s, 5' % (SRD_WQ + 2, W3)); A('s_mov_b32 s%d, %s' % (SRD_WQ + 3, W3))
A('s_movk_i32 s%d, 1024' % (SRD_X + 2))
A('v_lshlrev_b32 %s, 4, %s' % (v(oX), v(vL)))
A('v_lshlrev_b32 %s, 2, %s' % (v(oXR), v(vT[0])))
A('s_lshl_b32 %s, %s, 8' % (sD, sRB))
A('s_waitcnt lgkmcnt(0)')
A('buffer_load_dwordx4 %s, %s, %s, 0 offen' % (v(vXF, 4), v(oX), srd(SRD_X)))
A('buffer_load_dword %s, %s, %s, %s offen' % (v(vXR), v(oXR), srd(SRD_X), sD))
A('buffer_load_dwordx4 %s, %s, %s, %s offen nt' % (v(vWQa, 4), v(oWQ), srd(SRD_WQ), sA))
A('buffer_load_dwordx4 %s, %s, %s, %s offen nt' % (v(vWQb, 4), v(oWQ), srd(SRD_WQ), sB))
A('s_load_dwordx2 %s, s[16:17], %d' % (sTAG, WS_EPOCH))
A('s_lshr_b32 %s, %s, 6' % (sW, sW))
A('s_mul_i32 s18, %s, %d' % (W3, WS_SIZE // 0x20000)); A('s_mov_b32 s19, %s' % W3)
A('s_add_u32 %s, %s, 8' % (sKV, sG))
A('s_lshl_b32 %s, %s, 12' % (sKV, sKV))
A('v_lshlrev_b32 %s, 3, v0' % v(vT[1]))
A('buffer_load_dword %s, %s, %s, %s offen sc1' % (v(vDUM), v(vT[1]), SRD_WS, sKV))
A('v_lshrrev_b32 %s, 6, v0' % v(vWv))
A('v_and_b32 %s, 15, %s' % (v(vL15), v(vL)))
A('v_lshrrev_b32 %s, 4, %s' % (v(vROW), v(vL)))
A('s_lshl_b32 %s, %s, 8' % (sVS, sG))
A('s_add_u32 %s, %s, %s' % (sVS, sVS, sR))
A('s_addk_i32 %s, 224' % sVS)
A('s_lshl_b32 %s, %s, 15' % (sVS, sVS))
A('v_xor_b32 %s, %s, %s' % (v(vT[1]), v(vL15), v(vROW)))
A('v_lshlrev_b32 %s, 4, %s' % (v(vT[1]), v(vT[1])))
A('v_lshl_or_b32 %s, %s, 12, %s' % (v(vT[2]), v(vWv), v(vT[1])))
A('v_lshl_or_b32 %s, %s, 8, %s' % (v(oK), v(vROW), v(vT[2])))
A('v_lshl_or_b32 %s, %s, 8, %s' % (v(vA4), v(vL15), v(vT[2])))
A('s_lshl_b32 s%d, %s, 9' % (SRD_K + 2, W3)); A('s_mov_b32 s%d, %s' % (SRD_K + 3, W3))
A('s_add_u32 %s, %s, %d' % (sF, sW, L_K // 4096))
A('s_lshl_b32 m0, %s, 12' % sF)
A('s_barrier')
for i in range(3): kdma(i)
stamp(1)
A('s_load_dwordx2 s[%d:%d], s[0:1], 16' % (SRD_V, SRD_V + 1))
A('s_load_dwordx2 s[%d:%d], s[0:1], 32' % (pWO, pWO + 1))
A('s_load_dwordx4 s[%d:%d], s[0:1], 48' % (pWG, pWG + 3))
A('s_load_dwordx2 s[%d:%d], s[0:1], 64' % (SRD_W2, SRD_W2 + 1))
A('s_mov_b32 %s, 0x05040100' % sSELLO)
A('s_mov_b32 %s, 0x07060302' % sSELHI)
A('s_mov_b32 %s, 0x%x' % (sONE, ONES))
A('s_mov_b32 %s, 0xffff0000' % sHI)
A('s_mov_b32 %s, 0x%x' % (sLG, LOG2E))
A('s_mov_b64 s[%d:%d], s[%d:%d]' % (SRD_V + 2, SRD_V + 3, SRD_K + 2, SRD_K + 3))
A('v_lshrrev_b32 %s, 5, %s' % (v(vPI), v(vL)))
A('v_mov_b32 %s, 0' % v(vZ))
A('s_getreg_b32 %s, hwreg(HW_REG_XCC_ID, 0, 4)' % sXT)
A('v_lshlrev_b32 %s, 1, %s' % (v(vT[5]), v(oW2)))
A('v_lshl_or_b32 %s, %s, 3, %s' % (v(vT[5]), v(vROW), v(vT[5])))
A('v_lshl_or_b32 %s, %s, 8, %s' % (v(vT[5]), v(vWv), v(vT[5])))
A('v_and_b32 %s, 31, %s' % (v(vT[7]), v(vL)))
A('v_lshlrev_b32 %s, 3, %s' % (v(vT[6]), v(vT[7])))
A('v_lshl_or_b32 %s, %s, 10, %s' % (v(vT[6]), v(vPI), v(vT[6])))
A('v_lshrrev_b32 %s, 4, v0' % v(vT[2]))
A('v_and_b32 %s, 2, %s' % (v(vT[3]), v(vWv)))
A('v_lshl_or_b32 %s, %s, 1, %s' % (v(vT[3]), v(vT[3]), v(vROW)))
A('v_lshlrev_b32 %s, 1, %s' % (v(vT[3]), v(vT[3])))
A('v_xor_b32 %s, %s, %s' % (v(vT[3]), v(vT[3]), v(vL15)))
A('v_lshlrev_b32 %s, 4, %s' % (v(vCN), v(vT[3])))
A('v_lshl_or_b32 %s, %s, 8, %s' % (v(oVD), v(vT[2]), v(vCN)))
A('s_add_u32 %s, %s, %d' % (sVM, sW, L_V // 1024))
A('s_lshl_b32 %s, %s, 10' % (sVM, sVM))
A('s_add_u32 %s, %s, 0x%x' % (sM0, sVM, L_W - L_V))
A('s_add_u32 s10, s16, %s' % sKV)
A('s_addc_u32 s11, s17, 0')
A('s_lshl2_add_u32 %s, %s, %s' % (sKV, sR, sKV))
A('s_mul_i32 %s, %s, %d' % (sA, sG, E1_G))
A('s_add_u32 %s, %s, 0x%x' % (sA, sA, WS_E1))
A('s_mulk_i32 %s, %d' % (sD, E1_K // 256))
A('s_lshl_b32 %s, %s, 9' % (sC, sE))
A('s_add_u32 %s, %s, %s' % (sB, sD, sC))
A('s_add_u32 %s, %s, %s' % (sB, sB, sA))
A('s_mov_b32 s31, 0')
A('s_lshl2_add_u32 %s, %s, %s' % (sIDX, sG, sE))
A('s_mov_b32 %s, 0' % sROLE)
A('v_lshlrev_b32 %s, 7, %s' % (v(vT[8]), v(vL)))
A('s_waitcnt vmcnt(7)')
stamp(2)
s0, s1, m_, r_, t_ = vT[0], vT[1], vT[9], vT[10], vT[4]
A('v_dot2_f32_bf16 %s, %s, %s, 0' % (v(s0), v(vXF), sONE))
A('v_dot2_f32_bf16 %s, %s, %s, 0' % (v(s1), v(vXF), v(vXF)))
for j in range(1, 4):
    A('v_dot2c_f32_bf16 %s, %s, %s' % (v(s0), sONE, v(vXF + j)))
    A('v_dot2c_f32_bf16 %s, %s, %s' % (v(s1), v(vXF + j), v(vXF + j)))
A('v_permlane32_swap_b32 %s, %s' % (v(s0), v(s1)))
A('v_add_f32 %s, %s, %s' % (v(s0), v(s0), v(s1)))
allred_rows(s0, s1, 'add', (16,))
for ror in (8, 4, 2): dpp_add(s0, ror)
dpp(s1, s0, 'row_ror:1'); dpp(s0, s0, 'row_ror:1')
A('v_permlane32_swap_b32 %s, %s' % (v(s0), v(s1)))
ln_stats(s0, s1, m_, r_, t_)
A('s_waitcnt vmcnt(6)')
lo16(s0, vXR); hi16(s1, vXR)
A('v_sub_f32 %s, %s, %s' % (v(s0), v(s0), v(m_)))
A('v_sub_f32 %s, %s, %s' % (v(s1), v(s1), v(m_)))
cvt(t_, s0, s1)
lo16(s0, t_); hi16(s1, t_)
A('v_mul_f32 %s, %s, %s' % (v(s0), v(s0), v(r_)))
A('v_mul_f32 %s, %s, %s' % (v(s1), v(s1), v(r_)))
cvt(vXR, s0, s1)
A('s_waitcnt vmcnt(4)')
stamp(3)
for j in range(4):
    A('v_perm_b32 %s, %s, %s, %s' % (v(vFA + 2 * j), v(vWQb + j), v(vWQa + j), sSELLO))
    A('v_perm_b32 %s, %s, %s, %s' % (v(vFA + 2 * j + 1), v(vWQb + j), v(vWQa + j), sSELHI))
for e in range(8): A('v_dot2_f32_bf16 %s, %s, %s, 0' % (v(vY + e), v(vFA + e), v(vXR)))
for i in range(4): A('v_permlane32_swap_b32 %s, %s' % (v(vY + i), v(vY + 4 + i)))
for i in range(4): A('v_add_f32 %s, %s, %s' % (v(vY + i), v(vY + i), v(vY + 4 + i)))
for i in range(2): A('v_permlane16_swap_b32 %s, %s' % (v(vY + i), v(vY + 2 + i)))
for i in range(2): A('v_add_f32 %s, %s, %s' % (v(vY + i), v(vY + i), v(vY + 2 + i)))
dpp_add(vY, 8); dpp_add(vY + 1, 8)
A('ds_write_b64 %s, %s offset:%d' % (v(vT[5]), v(vY, 2), L_QACC))
A('s_waitcnt lgkmcnt(0)')
A('s_add_u32 %s, %s, 1' % (sTA, sTA))
A('s_barrier')
A('s_lshl4_add_u32 %s, %s, %s' % (sXT, sTA, sXT))
A('v_mov_b32 %s, %s' % (v(vG + 2), sTA))
A('v_mov_b32 %s, %s' % (v(vG + 3), sTB))
A('s_cmp_lg_u32 %s, 0' % sW)
A('s_cbranch_scc1 L_NOPUB1')
A('ds_read2st64_b64 %s, %s offset0:0 offset1:1' % (v(vY, 4), v(vT[6])) if False else 'ds_read2_b64 %s, %s offset0:%d offset1:%d' % (v(vY, 4), v(vT[6]), 0, 32))
A('ds_read2_b64 %s, %s offset0:%d offset1:%d' % (v(vY + 4, 4), v(vT[6]), 64, 96))
A('v_mov_b32 %s, %s' % (v(vG2), sXT))
A('s_add_u32 %s, %s, 0x%x' % (sC, sB, E1_FS))
A('s_waitcnt lgkmcnt(0)')
A('v_pk_add_f32 %s, %s, %s' % (v(vY, 2), v(vY, 2), v(vY + 2, 2)))
A('v_pk_add_f32 %s, %s, %s' % (v(vY + 4, 2), v(vY + 4, 2), v(vY + 6, 2)))
A('v_pk_add_f32 %s, %s, %s' % (v(vG, 2), v(vY, 2), v(vY + 4, 2)))
A('v_pk_add_f32 %s, %s, %s' % (v(vY, 2), v(vY, 2), v(vY + 4, 2)))
A('v_permlane32_swap_b32 %s, %s' % (v(vG), v(vY)))
A('v_permlane32_swap_b32 %s, %s' % (v(vG + 1), v(vY + 1)))
A('v_pk_add_f32 %s, %s, %s' % (v(vG, 2), v(vG, 2), v(vY, 2)))
A('s_mov_b32 exec_hi, 0')
stws(vG, oX, sB, False)
A('buffer_store_dword %s, %s, %s, %s offen' % (v(vG2), v(vT[8]), SRD_WS, sKV))
stws(vG, oX, sC, True)
set_exec(FULL)
A('L_NOPUB1:')
stamp(4)
A('s_barrier')
kdma(3); vdma(); vdma()
A('s_cmp_lt_u32 %s, 16' % sR)
A('s_cbranch_scc0 L_LA_G')
A('s_lshl_b32 %s, %s, 9' % (sF, sIDX))
A('s_add_u32 %s, %s, %s' % (sF, sF, sRB))
A('s_lshl_b32 %s, %s, 8' % (sF, sF))
A('v_lshl_or_b32 %s, %s, 10, %s' % (v(vT[2]), v(vT[2]), v(vCN)))
A('s_lshl_b32 s30, %s, 2' % s8K)
A('s_mov_b64 s[%d:%d], s[%d:%d]' % (pWG, pWG + 1, pWO, pWO + 1))
A('s_mov_b64 s[%d:%d], s[%d:%d]' % (pWU, pWU + 1, pWO, pWO + 1))
A('s_branch L_LA_GO')
A('L_LA_G:')
A('s_max_u32 %s, %s, 4' % (sC, sG))
A('s_sub_u32 %s, %s, %s' % (sC, sIDX, sC))
A('s_lshr_b32 %s, %s, 2' % (sROLE, sG))
A('s_add_u32 %s, %s, %s' % (sROLE, sROLE, sE))
A('s_cmp_eq_u32 %s, 8' % sROLE)
A('s_cselect_b32 %s, 2, 1' % sROLE)
A('s_lshl2_add_u32 %s, %s, %s' % (sIDX, sC, sRB))
A('s_mul_i32 %s, %s, 3584' % (sF, sRB))
A('s_add_u32 %s, %s, %s' % (sF, sF, sC))
A('s_lshl_b32 %s, %s, 7' % (sF, sF))
A('v_and_b32 %s, 0x70, %s' % (v(vCN), v(vCN)))
A('s_movk_i32 %s, 3584' % sC)
A('v_mad_u32_u24 %s, %s, %s, %s' % (v(vT[2]), v(vT[2]), sC, v(vCN)))
A('s_lshl_b32 s30, %s, 5' % sC)
A('L_LA_GO:')
A('v_cmp_lt_u32 vcc, 7, %s' % v(vT[3]))
A('v_add_u32 %s, %s, %s' % (v(vCN), sF, v(vT[2])))
A('v_mov_b32 %s, 0' % v(vCN + 1))
A('v_lshl_add_u64 %s, %s, 0, s[%d:%d]' % (v(vWA, 2), v(vCN, 2), pWG, pWG + 1))
A('v_lshl_add_u64 %s, %s, 0, s[%d:%d]' % (v(vCN + 2, 2), v(vCN, 2), pWU, pWU + 1))
A('v_cndmask_b32 %s, %s, %s, vcc' % (v(vWA), v(vWA), v(vCN + 2)))
A('v_cndmask_b32 %s, %s, %s, vcc' % (v(vWA + 1), v(vWA + 1), v(vCN + 3)))
A('v_mov_b32 %s, %s' % (v(vG2 + 3), sTA))
A('v_bfe_u32 %s, %s, 2, 2' % (v(vT[1]), v(vL)))
A('v_bfe_u32 %s, %s, 2, 3' % (v(vT[2]), v(vL)))
A('v_xor_b32 %s, %s, %s' % (v(vT[2]), v(vT[2]), v(vWv)))
A('v_and_b32 %s, 3, %s' % (v(vT[6]), v(vL)))
A('v_lshl_or_b32 %s, %s, 2, %s' % (v(vT[2]), v(vT[2]), v(vT[6])))
A('v_lshl_or_b32 %s, %s, 5, %s' % (v(vT[2]), v(vT[1]), v(vT[2])))
A('v_lshl_or_b32 %s, %s, 8, %s' % (v(vT[2]), v(vROW), v(vT[2])))
A('v_lshlrev_b32 %s, 3, %s' % (v(oTR), v(vT[2])))
A('v_and_b32 %s, 48, %s' % (v(vT[2]), v(vL)))
A('s_movk_i32 %s, %d' % (sC, QS))
A('v_mad_u32_u24 %s, %s, %s, %s' % (v(oFR), v(vT[6]), sC, v(vT[2])))
A('v_mad_u32_u24 %s, %s, %s, %s' % (v(oV), v(vT[1]), sC, v(vT[2])))
A('v_lshrrev_b32 %s, 1, v0' % v(vT[8]))
A('v_and_b32 %s, 0xf8, %s' % (v(vT[8]), v(vT[8])))
A('v_mad_u32_u24 %s, %s, %s, %s' % (v(vT[8]), v(vT[6]), sC, v(vT[8])))
A('v_lshl_or_b32 %s, %s, 5, %s' % (v(vT[4]), v(vWv), v(vT[7])))
A('v_mul_u32_u24 %s, %d, %s' % (v(vT[1]), 2 * E1_K, v(vPI)))
A('v_lshl_add_u32 %s, %s, 4, %s' % (v(vT[0]), v(vT[4]), v(vT[1])))
if NOFAST: A('s_add_u32 %s, %s, 0x%x' % (sA, sA, E1_FS))
A('s_add_u32 %s, %s, %d' % (sB, sA, E1_K))
A('v_lshl_or_b32 %s, %s, 1, %s' % (v(vT[1]), v(vT[4]), v(vPI)))
A('v_and_b32 %s, 6, %s' % (v(vT[4]), v(vWv)))
A('v_lshl_add_u32 %s, %s, 2, %s' % (v(vT[1]), v(vT[4]), v(vT[1])))
A('v_lshlrev_b32 %s, 1, %s' % (v(vT[1]), v(vT[1])))
A('v_xor_b32 %s, 64, %s' % (v(vA4 + 1), v(vA4)))
A('v_xor_b32 %s, 0x80, %s' % (v(vA4 + 2), v(vA4)))
A('v_xor_b32 %s, 64, %s' % (v(vA4 + 3), v(vA4 + 2)))
A('v_lshlrev_b32 %s, 5, %s' % (v(vT[7]), v(vT[6])))
A('v_lshl_add_u32 %s, %s, 2, %s' % (v(vT[3]), v(vWv), v(vT[7])))
A('v_lshlrev_b32 %s, 5, %s' % (v(vT[9]), v(vROW)))
A('v_lshl_or_b32 %s, %s, 15, %s' % (v(vT[10]), v(vROW), v(oW2)))
A('s_lshl_b32 %s, %s, 5' % (sKV, sG))
A('s_add_u32 %s, %s, %s' % (sKV, sKV, sW))
A('s_lshl_b32 %s, %s, 5' % (sKV, sKV))
A('s_add_u32 %s, %s, %s' % (sKV, sKV, sR))
A('s_add_u32 %s, %s, %s' % (sKV, sKV, s8K))
A('s_lshl_b32 %s, %s, 7' % (sKV, sKV))
A('s_mov_b32 %s, 0' % sFAST)
A('s_cmp_lg_u32 %s, 7' % sW)
A('s_cbranch_scc1 L_FL_DONE')
A('s_movk_i32 %s, 31' % sCNT)
A('s_mov_b32 s8, %s' % sXT); A('s_mov_b32 s9, %s' % sXT)
A('L_FL:')
if STAMPS:
    for pc in range(4):
        A('s_load_dwordx8 s[40:47], s[10:11], %d' % (32 * pc))
        A('s_waitcnt lgkmcnt(0)')
        for k in range(4):
            A('s_cmp_eq_u64 s[%d:%d], s[8:9]' % (40 + 2 * k, 41 + 2 * k))
            A('s_cbranch_scc0 L_FL_NO')
else:
    A('s_load_dwordx16 s[64:79], s[10:11], 0')
    A('s_load_dwordx16 s[80:95], s[10:11], 64')
    A('s_waitcnt lgkmcnt(0)')
    for k in range(16):
        A('s_cmp_eq_u64 s[%d:%d], s[8:9]' % (64 + 2 * k, 65 + 2 * k))
        A('s_cbranch_scc0 L_FL_NO')
A('s_mov_b32 %s, %d' % (sFAST, 0 if NOFAST else 1))
A('s_branch L_FL_W')
A('L_FL_NO:')
if FSLEEP: A('s_sleep %d' % FSLEEP)
A('s_addk_i32 s10, 128')
A('s_sub_u32 %s, %s, 1' % (sCNT, sCNT))
A('s_cbranch_scc0 L_FL')
A('L_FL_W:')
A('v_mov_b32 %s, %s' % (v(vP1), sFAST))
A('ds_write_b32 %s, %s offset:%d' % (v(vZ), v(vP1), L_FLG))
A('L_FL_DONE:')
A('s_barrier')
stamp(5)
e1l = [ldws(vP0, vT[0], sA), ldws(vP0 + 4, vT[0], sB)]
for l in e1l: A(l)
A('s_barrier')
vdma(); vdma()
A(ldws(vCS, vT[10], sKV))
A('s_waitcnt vmcnt(3)')
for j in range(4): A('ds_read_b128 %s, %s offset:%d' % (v(vK + 4 * j, 4), v(vA4 + j), L_K))
for i, gq in enumerate((vP0, vP0 + 4)): chk_tags(i, gq, vY + i)
A('v_or_b32 %s, %s, %s' % (v(vY), v(vY), v(vY + 1)))
A('v_cmp_ne_u32 vcc, 0, %s' % v(vY))
A('s_cbranch_vccnz L_E1_RETRY')
A('L_E1_OK:')
stamp(15)
A('v_pk_add_f32 %s, %s, %s' % (v(vP0, 2), v(vP0, 2), v(vP0 + 4, 2)))
A('s_cmp_lg_u32 %s, 0' % sROLE)
A('v_permlane32_swap_b32 %s, %s' % (v(vP0), v(vP0 + 1)))
A('v_add_f32 %s, %s, %s' % (v(vP0), v(vP0), v(vP0 + 1)))
cvt(vP0, vP0, vP0)
A('ds_write_b16 %s, %s offset:%d' % (v(vT[1]), v(vP0), L_Q))
A('s_cbranch_scc1 L_NT1')
tone(); tone()
A('L_NT1:')
bar()
for j in range(4): A('ds_read_b128 %s, %s offset:%d' % (v(vFB + 4 * j, 4), v(oFR), L_Q + 64 * j))
A('ds_read_b32 %s, %s offset:%d' % (v(vFA + 8), v(vZ), L_FLG))
stamp(6)
A('v_mov_b32 %s, 0x%x' % (v(vCN), SCALE))
for j in range(4):
    A('s_waitcnt lgkmcnt(%d)' % (4 - j))
    mfma(vACC, vK + 4 * j, vFB + 4 * j, j == 0)
A('s_waitcnt lgkmcnt(0)')
A('v_readfirstlane_b32 %s, %s' % (sFAST, v(vFA + 8)))
S = vY
for h in range(2): cvt(vT[4 + h], vACC + 2 * h, vACC + 2 * h + 1)
for h in range(2): lo16(S + 2 * h, vT[4 + h]); hi16(S + 2 * h + 1, vT[4 + h])
for i in range(4): A('v_mul_f32 %s, %s, %s' % (v(S + i), v(vCN), v(S + i)))
for h in range(2): cvt(vT[4 + h], S + 2 * h, S + 2 * h + 1)
for h in range(2): lo16(S + 2 * h, vT[4 + h]); hi16(S + 2 * h + 1, vT[4 + h])
A('v_max3_f32 %s, %s, %s, %s' % (v(vT[4]), v(S), v(S + 1), v(S + 2)))
A('v_max_f32 %s, %s, %s' % (v(vT[4]), v(vT[4]), v(S + 3)))
allred_rows(vT[4], vT[5], 'max')
A('ds_write_b32 %s, %s offset:%d' % (v(vT[3]), v(vT[4]), L_MAX))
A('s_cmp_lg_u32 %s, 0' % sROLE)
bar()
A('ds_read_b128 %s, %s offset:%d' % (v(vFA, 4), v(vT[7]), L_MAX))
A('ds_read_b128 %s, %s offset:%d' % (v(vFA + 4, 4), v(vT[7]), L_MAX + 16))
A('s_cbranch_scc1 L_NT2')
tone(); tone()
A('L_NT2:')
A('s_waitcnt lgkmcnt(0)')
A('v_max3_f32 %s, %s, %s, %s' % (v(vT[4]), v(vFA), v(vFA + 1), v(vFA + 2)))
A('v_max3_f32 %s, %s, %s, %s' % (v(vT[5]), v(vFA + 3), v(vFA + 4), v(vFA + 5)))
A('v_max3_f32 %s, %s, %s, %s' % (v(vT[4]), v(vT[4]), v(vFA + 6), v(vFA + 7)))
A('v_max_f32 %s, %s, %s' % (v(vT[4]), v(vT[4]), v(vT[5])))
A('v_mul_f32 %s, %s, %s' % (v(vCN), sLG, v(vT[4])))
for i in range(4): A('v_fma_f32 %s, %s, %s, -%s' % (v(S + i), v(S + i), sLG, v(vCN)))
for i in range(4): A('v_exp_f32 %s, %s' % (v(S + i), v(S + i)))
A('v_lshrrev_b32 %s, 2, %s' % (v(vCN + 1), v(vT[2])))
cvt(S + 4, S, S + 1)
A('v_add_f32 %s, %s, %s' % (v(vT[4]), v(S), v(S + 1)))
cvt(S + 5, S + 2, S + 3)
A('v_add_f32 %s, %s, %s' % (v(vT[5]), v(S + 2), v(S + 3)))
A('ds_write_b64 %s, %s offset:%d' % (v(vT[8]), v(S + 4, 2), L_P))
A('ds_bpermute_b32 %s, %s, %s' % (v(vP1), v(vCN + 1), v(vCN)))
A('v_add_f32 %s, %s, %s' % (v(vT[4]), v(vT[4]), v(vT[5])))
allred_rows(vT[4], vT[5], 'add')
A('ds_write_b32 %s, %s offset:%d' % (v(vT[3]), v(vT[4]), L_LS))
stamp(7)
A('s_cmp_eq_u32 %s, 0' % sROLE)
A('s_waitcnt vmcnt(5)')
A('s_cbranch_scc1 L_WV')
A('s_waitcnt vmcnt(1)')
A('L_WV:')
bar()
A('ds_read_b128 %s, %s offset:%d' % (v(vY, 4), v(vT[9]), L_LS))
A('ds_read_b128 %s, %s offset:%d' % (v(vY + 4, 4), v(vT[9]), L_LS + 16))
for b in range(4):
    A('ds_read_b128 %s, %s offset:%d' % (v(vFB + 4 * b, 4), v(oV), L_P + 64 * b))
    A('ds_read_b64_tr_b16 %s, %s offset:%d' % (v(vFA + 4 * b, 2), v(oTR), L_V + 8192 * b))
    A('ds_read_b64_tr_b16 %s, %s offset:%d' % (v(vFA + 4 * b + 2, 2), v(oTR), L_V + 8192 * b + 1024))
A('s_lshl3_add_u32 %s, %s, %s' % (sA, sIDX, sW))
A('s_addk_i32 %s, %d' % (sA, WS_E2 // 4096))
A('s_lshl_b32 %s, %s, 12' % (sA, sA))
A('s_waitcnt lgkmcnt(12)')
A('v_pk_add_f32 %s, %s, %s' % (v(vY, 2), v(vY, 2), v(vY + 2, 2)))
A('v_pk_add_f32 %s, %s, %s' % (v(vY + 4, 2), v(vY + 4, 2), v(vY + 6, 2)))
A('v_pk_add_f32 %s, %s, %s' % (v(vY, 2), v(vY, 2), v(vY + 4, 2)))
A('v_add_f32 %s, %s, %s' % (v(vY), v(vY), v(vY + 1)))
for b in range(4):
    A('s_waitcnt lgkmcnt(%d)' % (9 - 3 * b))
    mfma(vACC, vFB + 4 * b, vFA + 4 * b, b == 0)
A('v_log_f32 %s, %s' % (v(vG2 + 2), v(vY)))
A('v_rcp_f32 %s, %s' % (v(vY), v(vY)))
A('v_lshl_or_b32 %s, %s, 3, %s' % (v(vT[3]), v(vPI), v(vCC)))
A('v_add_f32 %s, %s, %s' % (v(vG2 + 2), v(vG2 + 2), v(vP1)))
A('v_lshl_or_b32 %s, %s, 4, %s' % (v(vT[3]), v(vWv), v(vT[3])))
A('v_lshlrev_b32 %s, 1, %s' % (v(vT[3]), v(vT[3])))
A('v_mul_f32 %s, %s, %s' % (v(vG2), v(vACC), v(vY)))
movdpp(vG2 + 1, vG2, 'row_ror:8')
set_exec(0x00ff00ff00ff00ff)
st_grp(vG2, vT[10], sKV)
set_exec(FULL)
stamp(8)
A('s_cmp_eq_u32 %s, 1' % sROLE)
A('s_cbranch_scc1 L_GT')
A('s_cmp_eq_u32 %s, 2' % sROLE)
A('s_cbranch_scc1 L_FIN0')
g4 = [vP0, vP0 + 4, vP1, vP1 + 4]
l4 = [ldws(g4[i], oX, sA, 1024 * i) for i in range(4)]
for l in l4: A(l)
A('v_add_u32 %s, 0x%x, %s' % (v(vT[1]), L_W, v(oTR)))
A('s_lshl3_add_u32 %s, %s, %s' % (sKV, sRB, sW))
A('s_lshl_b32 %s, %s, 5' % (sKV, sKV))
A('s_add_u32 %s, %s, %s' % (sKV, sKV, sIDX))
A('s_addk_i32 %s, %d' % (sKV, WS_E3 // 128))
A('s_lshl_b32 %s, %s, 7' % (sKV, sKV))
def lammax():
    A('v_max3_f32 %s, %s, %s, %s' % (v(vT[5]), v(g4[0] + 2), v(g4[1] + 2), v(g4[2] + 2)))
    A('v_max_f32 %s, %s, %s' % (v(vT[5]), v(vT[5]), v(g4[3] + 2)))
mpoll(l4, g4, chk_lam, first_in_flight=True, extra=lammax)
stamp(10)
dpp_add(vT[5], 8, 'max')
allred_rows(vT[5], vT[6], 'max')
for i in range(4): A('v_sub_f32 %s, %s, %s' % (v(g4[i] + 2), v(g4[i] + 2), v(vT[5])))
for i in range(4): A('v_exp_f32 %s, %s' % (v(g4[i] + 2), v(g4[i] + 2)))
A('v_mul_f32 %s, %s, %s' % (v(vP0), v(vP0 + 2), v(vP0)))
A('v_mul_f32 %s, %s, %s' % (v(vP0 + 1), v(vP0 + 2), v(vP0 + 1)))
for i in range(1, 4):
    A('v_fmac_f32 %s, %s, %s' % (v(vP0), v(g4[i] + 2), v(g4[i])))
    A('v_fmac_f32 %s, %s, %s' % (v(vP0 + 1), v(g4[i] + 2), v(g4[i] + 1)))
    A('v_add_f32 %s, %s, %s' % (v(vP0 + 2), v(vP0 + 2), v(g4[i] + 2)))
A('v_mov_b32 %s, %s' % (v(vP0 + 3), v(vP0 + 2)))
A('v_permlane32_swap_b32 %s, %s' % (v(vP0), v(vP0 + 1)))
A('v_permlane32_swap_b32 %s, %s' % (v(vP0 + 2), v(vP0 + 3)))
A('v_add_f32 %s, %s, %s' % (v(vP0), v(vP0), v(vP0 + 1)))
A('v_add_f32 %s, %s, %s' % (v(vP0 + 2), v(vP0 + 2), v(vP0 + 3)))
A('v_mov_b32 %s, %s' % (v(vP0 + 1), v(vP0)))
A('v_mov_b32 %s, %s' % (v(vP0 + 3), v(vP0 + 2)))
A('v_permlane16_swap_b32 %s, %s' % (v(vP0), v(vP0 + 1)))
A('v_permlane16_swap_b32 %s, %s' % (v(vP0 + 2), v(vP0 + 3)))
A('v_add_f32 %s, %s, %s' % (v(vP0 + 2), v(vP0 + 2), v(vP0 + 3)))
A('v_add_f32 %s, %s, %s' % (v(vP0), v(vP0), v(vP0 + 1)))
dpp_add(vP0 + 2, 8); dpp_add(vP0, 8)
A('v_rcp_f32 %s, %s' % (v(vP0 + 2), v(vP0 + 2)))
A('v_mul_f32 %s, %s, %s' % (v(vP0), v(vP0), v(vP0 + 2)))
cvt(vP0, vP0, vP0)
A('ds_write_b16 %s, %s offset:%d' % (v(vT[3]), v(vP0), L_ACC))
bar()
stamp(9)
for b in range(4):
    A('ds_read_b128 %s, %s offset:%d' % (v(vFB + 4 * b, 4), v(vT[2]), L_ACC + 64 * b))
    A('ds_read_b64_tr_b16 %s, %s offset:%d' % (v(vW1 + 4 * b, 2), v(vT[1]), 8192 * b))
    A('ds_read_b64_tr_b16 %s, %s offset:%d' % (v(vW1 + 4 * b + 2, 2), v(vT[1]), 8192 * b + 1024))
for b in range(4):
    A('s_waitcnt lgkmcnt(%d)' % (9 - 3 * b))
    mfma(vACC, vFB + 4 * b, vW1 + 4 * b, b == 0)
A('s_cmp_eq_u32 %s, 0' % sRB)
movdpp(vG + 1, vACC, 'row_ror:8')
A('v_mov_b32 %s, %s' % (v(vG), v(vACC + 1)))
set_exec(0xff)
stws(vG, oX, sKV)
set_exec(FULL)
stamp(11)
A('s_cbranch_scc1 L_RED')
A('L_FIN0:')
fin()
A('L_END0:')
A('s_endpgm')
A('L_GT:')
a.hist = []
A('s_mul_i32 s%d, %s, 14' % (SRD_W2 + 2, W3)); A('s_mov_b32 s%d, %s' % (SRD_W2 + 3, W3))
A('s_barrier')
for i in range(4): tone()
A('s_lshl_b32 %s, %s, 5' % (sC, sW))
A('s_and_b32 %s, %s, 0x80' % (sD, sC))
A('s_lshl_b32 %s, %s, 1' % (sC, sC))
A('s_and_b32 %s, %s, 64' % (sC, sC))
A('s_or_b32 %s, %s, %s' % (sC, sC, sD))
A('v_xor_b32 %s, %s, %s' % (v(vT[5]), sC, v(oX)))
A('s_add_u32 %s, %s, %d' % (sC, sW, L_K // 2048))
A('s_lshl_b32 m0, %s, 11' % sC)
A('s_lshl3_add_u32 %s, %s, %s' % (sD, sIDX, sW))
A('s_lshl_b32 %s, %s, 11' % (sD, sD))
A('buffer_load_dwordx4 %s, %s, %s offen nt lds' % (v(vT[5]), srd(SRD_W2), sD))
A('v_xor_b32 %s, 32, %s' % (v(vT[5]), v(vT[5])))
A('buffer_load_dwordx4 %s, %s, %s offen offset:1024 nt lds' % (v(vT[5]), srd(SRD_W2), sD))
A('s_branch L_ROLE_G')
A('L_PAGE0_END:')
if not STAMPS:
    a.raw('.if (L_PAGE0_END - %s_kernel) > 4096\n.error "page 0 overflow"\n.endif' % NAME)
    a.raw('.fill (4096 - (L_PAGE0_END - %s_kernel)) / 4, 4, 0xbf800000' % NAME)
A('L_ROLE_G:')
a.hist = []
A('s_lshl_b32 %s, %s, 12' % (sJ := 's28', sIDX))
A('s_add_u32 %s, %s, 0x%x' % (sJ, sJ, WS_E4))
A('v_lshlrev_b32 %s, 4, v0' % v(vT[5]))
A('v_and_b32 %s, 0xff0, %s' % (v(vT[5]), v(vT[5])))
A(ldws(vCS, vT[5], sJ))
A('s_lshl_b32 %s, %s, 8' % (sC, sRB))
A('buffer_load_ushort %s, %s, %s, %s offen' % (v(vXR), v(vT[3]), srd(SRD_X), sC))
A('s_and_b32 %s, %s, 1' % (sE, sW))
A('s_lshl_b32 %s, %s, 2' % (sE, sE))
A('s_lshr_b32 %s, %s, 1' % (sD, sW))
A('s_or_b32 %s, %s, %s' % (sC, sE, sD))
A('s_xor_b32 %s, %s, %s' % (sC, sC, sW))
A('s_lshl_b32 %s, %s, 5' % (sC, sC))
A('v_xor_b32 %s, %s, %s' % (v(vT[1]), sC, v(oTR)))
A('v_add_u32 %s, 0x%x, %s' % (v(vT[1]), L_W, v(vT[1])))
sDST = 's33'
A('s_andn2_b32 %s, %s, 3' % (sDST, sIDX))
A('s_add_u32 %s, %s, %s' % (sDST, sDST, sD))
A('s_lshl_b32 %s, %s, 12' % (sDST, sDST))
A('s_add_u32 %s, %s, 0x%x' % (sDST, sDST, WS_E4))
A('s_add_u32 %s, %s, %s' % (sE, sE, sRB))
A('v_lshrrev_b32 %s, 1, %s' % (v(vT[4]), v(vCC)))
A('v_lshlrev_b32 %s, 8, %s' % (v(vT[4]), v(vT[4])))
A('v_and_b32 %s, 1, %s' % (v(vT[6]), v(vL)))
A('v_lshl_or_b32 %s, %s, 4, %s' % (v(vT[4]), v(vT[6]), v(vT[4])))
A('v_lshl_add_u32 %s, %s, 5, %s' % (v(vT[4]), sE, v(vT[4])))
A('s_lshl_b32 %s, %s, 4' % (sE, sE))
A('s_add_u32 %s, %s, 2048' % (sE, sE))
A('v_mov_b32 %s, %s' % (v(vT[7]), sE))
A('v_cmp_eq_u32 s[10:11], 8, %s' % v(vL))
A('v_and_b32 %s, 8, %s' % (v(vT[6]), v(vL)))
A('v_cmp_ne_u32 %s, 0, %s' % (sMSK, v(vT[6])))
A('v_cndmask_b32 %s, %s, %s, s[10:11]' % (v(oFR), v(vT[4]), v(vT[7])))
A('s_add_u32 %s, %s, 1024' % (sE, sDST))
A('v_and_b32 %s, 14, %s' % (v(oWQ), v(vL)))
A('v_lshlrev_b32 %s, 3, %s' % (v(oWQ), v(oWQ)))
A('s_lshl3_add_u32 %s, %s, %s' % (sA, sRB, sW))
A('s_addk_i32 %s, %d' % (sA, WS_E3 // 4096))
A('s_lshl_b32 %s, %s, 12' % (sA, sA))
A('s_lshl_b32 %s, %s, 16' % (sB, sW))
A('s_lshl_b32 %s, %s, 7' % (sC, sIDX))
A('s_add_u32 %s, %s, %s' % (sB, sB, sC))
A('s_add_u32 %s, %s, 0x%x' % (sB, sB, WS_E5))
A('v_lshl_or_b32 %s, %s, 14, %s' % (v(oV), v(vROW), v(oW2)))
A('v_bfe_u32 %s, %s, 3, 1' % (v(vT[6]), v(vL)))
A('v_lshl_or_b32 %s, %s, 1, %s' % (v(vT[6]), v(vROW), v(vT[6])))
A('v_bfe_u32 %s, %s, 2, 1' % (v(vT[7]), v(vL)))
A('v_and_b32 %s, 3, %s' % (v(oK), v(vT[6])))
A('v_lshl_or_b32 %s, %s, 2, %s' % (v(oK), v(vT[7]), v(oK)))
A('v_lshl_or_b32 %s, %s, 3, %s' % (v(vT[6]), v(vT[7]), v(vT[6])))
A('v_lshlrev_b32 %s, 2, %s' % (v(vT[7]), v(vWv)))
A('v_xor_b32 %s, %s, %s' % (v(oK), v(oK), v(vT[7])))
A('v_lshlrev_b32 %s, 5, %s' % (v(oK), v(oK)))
A('v_lshl_or_b32 %s, %s, 10, %s' % (v(oK), v(vT[6]), v(oK)))
A('v_and_b32 %s, 3, %s' % (v(vT[6]), v(vL)))
A('v_lshl_or_b32 %s, %s, 3, %s' % (v(oK), v(vT[6]), v(oK)))
A('v_cmp_eq_u32 s[98:99], 1, %s' % v(vROW))
for i in range(4): A('v_mov_b32 %s, %s' % (v(vA4 + i), sONE))
A('s_waitcnt vmcnt(0)')
A('s_barrier')
stamp(9)
for l in l4: A(l)
for b in range(4):
    A('ds_read_b64_tr_b16 %s, %s offset:%d' % (v(vW1 + 4 * b, 2), v(vT[1]), 8192 * b))
    A('ds_read_b64_tr_b16 %s, %s offset:%d' % (v(vW1 + 4 * b + 2, 2), v(vT[1]), 8192 * b + 1024))
for t4 in range(4):
    if t4: A('v_xor_b32 %s, %d, %s' % (v(vT[6]), 32 * t4, v(oK)))
    A('ds_read_b64_tr_b16 %s, %s offset:%d' % (v(vW2 + 2 * t4, 2), v(vT[6] if t4 else oK), L_K))
lo16(vXR, vXR)
A('s_waitcnt lgkmcnt(0)')
for b in range(4): mfma(vACC, vA4, vW1 + 4 * b, b == 0)
A('v_mov_b32 %s, %s' % (v(vG), v(vACC)))
movdpp(vG + 1, vACC, 'row_ror:8')
set_exec(0xff)
st_grp(vG, vT[4], sE)
set_exec(FULL)
stamp(10)
mpoll(l4, g4, chk_tags, first_in_flight=True)
stamp(11)
A('v_pk_add_f32 %s, %s, %s' % (v(vP0, 2), v(vP0, 2), v(vP0 + 4, 2)))
A('v_pk_add_f32 %s, %s, %s' % (v(vP1, 2), v(vP1, 2), v(vP1 + 4, 2)))
A('v_pk_add_f32 %s, %s, %s' % (v(vP0, 2), v(vP0, 2), v(vP1, 2)))
red8(vP0)
resid1(vP0, vXR)
A('ds_write_b16 %s, %s offset:%d' % (v(vT[3]), v(vP0), L_ACC))
bar()
for b in range(4): A('ds_read_b128 %s, %s offset:%d' % (v(vFB + 4 * b, 4), v(vT[2]), L_ACC + 64 * b))
A('s_bitcmp1_b32 %s, 0' % sW)
A('s_cbranch_scc1 L_ST_UP')
for b in range(4):
    A('s_waitcnt lgkmcnt(%d)' % (3 - b))
    mfma(vACC, vFB + 4 * b, vW1 + 4 * b, b == 0)
    mfma(vY, vFB + 4 * b, vFB + 4 * b, b == 0)
A('s_branch L_ST_GO')
A('L_ST_UP:')
a.hist = []
for b in range(4):
    A('s_waitcnt lgkmcnt(%d)' % (3 - b))
    mfma(vACC, vFB + 4 * b, vW1 + 4 * b, b == 0)
    mfma(vY, vFB + 4 * b, vA4, b == 0)
A('L_ST_GO:')
movdpp(vG + 1, vACC, 'row_ror:8')
A('v_cndmask_b32 %s, %s, %s, s[10:11]' % (v(vG), v(vACC + 1), v(vY)))
set_exec(0x1ff)
st_grp(vG, oFR, sDST)
set_exec(FULL)
stamp(12)
mpoll([ldws(vP0, oX, sJ), ldws(vP0 + 4, oWQ, sJ, 2048), ldws(vCS, oX, sJ, 1024)], [vP0, vP0 + 4, vCS], chk_tags)
stamp(13)
PR = ((vP0 + 4, vP0 + 5), (vP0, vP0 + 2), (vP0 + 1, vP0 + 3), (vCS, vCS + 2), (vCS + 1, vCS + 3))
for r, d in PR: dpp(r, r, 'quad_perm:[2,3,0,1]')
for r, d in PR: A('v_add_f32_dpp %s, %s, %s row_shr:4 row_mask:0xf bank_mask:0xa' % (v(d), v(r), v(r)))
for r, d in PR: A('v_add_f32_dpp %s, %s, %s row_shl:4 row_mask:0xf bank_mask:0x5' % (v(d), v(r), v(r)))
movdpp(vP0 + 4, vP0 + 5, 'row_ror:8')
A('v_cndmask_b32 %s, %s, %s, %s' % (v(vP0 + 6), v(vP0 + 4), v(vP0 + 5), sMSK))
A('v_cndmask_b32 %s, %s, %s, %s' % (v(vP0 + 7), v(vP0 + 5), v(vP0 + 4), sMSK))
ln_stats(vP0 + 6, vP0 + 7, vT[5], vT[6], vT[7])
for i in range(2): A('v_fma_f32 %s, -%s, %s, %s' % (v(vP0 + i), v(vT[5]), v(vCS + 2 + i), v(vP0 + 2 + i)))
for i in range(2): A('v_mul_f32 %s, %s, %s' % (v(vP0 + i), v(vP0 + i), v(vT[6])))
cvt(vT[7], vP0, vP0 + 1)
lo16(vP0, vT[7]); hi16(vP0 + 1, vT[7])
A('v_max_f32 %s, 0, %s' % (v(vP0 + 2), v(vP0)))
A('v_max_f32 %s, 0, %s' % (v(vP0 + 3), v(vP0 + 1)))
A('v_cndmask_b32 %s, %s, %s, %s' % (v(vP0), v(vP0 + 2), v(vP0), sMSK))
A('v_cndmask_b32 %s, %s, %s, %s' % (v(vP0 + 1), v(vP0 + 3), v(vP0 + 1), sMSK))
dpp(vP0, vP0, 'row_ror:8', 'mul'); dpp(vP0 + 1, vP0 + 1, 'row_ror:8', 'mul')
cvt(vT[7], vP0, vP0 + 1)
movdpp(vX4, vT[7], 'quad_perm:[0,0,2,2]'); movdpp(vX4 + 1, vT[7], 'quad_perm:[1,1,3,3]')
for t4 in range(4):
    A('v_mfma_f32_16x16x16_bf16 %s, %s, %s, 0' % (v(vFA + 4 * t4, 4), v(vX4, 2), v(vW2 + 2 * t4, 2)))
A('v_cndmask_b32 %s, %s, %s, s[98:99]' % (v(vG), v(vFA), v(vFA + 4)))
A('s_mov_b32 exec_lo, 0')
A('v_mov_b32 %s, %s' % (v(vG), v(vFA + 8)))
A('s_mov_b32 exec_hi, %s' % sHI)
A('v_mov_b32 %s, %s' % (v(vG), v(vFA + 12)))
set_exec(FULL)
movdpp(vG + 1, vG, 'row_ror:8')
set_exec(0x00ff00ff00ff00ff)
stws(vG, oV, sB)
set_exec(FULL)
stamp(14)
fin()
A('L_RED:')
a.hist = []
A('s_load_dwordx2 s[20:21], s[0:1], 72')
A('s_mov_b64 s[22:23], s[%d:%d]' % (SRD_X + 2, SRD_X + 3))
A('v_lshlrev_b32 %s, 4, v0' % v(vT[4]))
A('v_and_b32 %s, 0xff0, %s' % (v(vT[0]), v(vT[4])))
A('s_add_u32 %s, %s, %d' % (sA, sIDX, WS_E3 // 4096))
A('s_lshl_b32 %s, %s, 12' % (sA, sA))
A('v_lshlrev_b32 %s, 1, %s' % (v(vT[1]), v(vL15)))
A('s_lshl_b32 %s, %s, 5' % (sD, sIDX))
A('buffer_load_ushort %s, %s, %s, %s offen' % (v(vX4), v(vT[1]), srd(SRD_X), sD))
A('v_lshl_or_b32 %s, %s, 3, %s' % (v(vT[2]), v(vPI), v(vCC)))
A('v_lshl_or_b32 %s, %s, 3, %s' % (v(vT[2]), v(vT[2]), v(vWv)))
A('v_lshlrev_b32 %s, 2, %s' % (v(vT[2]), v(vT[2])))
A('v_lshlrev_b32 %s, 5, %s' % (v(vT[3]), v(vL15)))
A('v_lshl_or_b32 %s, %s, 3, %s' % (v(vT[3]), v(vROW), v(vT[3])))
A('s_add_u32 %s, %s, %d' % (sB, sIDX, WS_E5 // 16384))
A('s_lshl_b32 %s, %s, 14' % (sB, sB))
A('s_cmp_lt_u32 %s, 6' % sW)
A('s_cselect_b32 %s, %s, 0' % (sC, s8K))
A('s_cselect_b32 %s, 1.0, 0' % sE)
A('s_add_u32 %s, %s, %s' % (sC, sC, sB))
mpoll([ldws(vP0, vT[0], sA)], [vP0], chk_tags)
red8(vP0)
A('ds_write_b32 %s, %s offset:%d' % (v(vT[2]), v(vP0), L_R1))
lo16(vX4, vX4)
bar()
A('ds_read_b64 %s, %s offset:%d' % (v(vP1, 2), v(vT[3]), L_R1))
A('s_waitcnt lgkmcnt(0)')
A('v_add_f32 %s, %s, %s' % (v(vP1), v(vP1), v(vP1 + 1)))
allred_rows(vP1, vP1 + 1, 'add', (16,))
resid1(vP1, vX4)
lo16(vX4, vP1)
stamp(12)
mpoll([ldws(vP0, vT[4], sB), ldws(vP0 + 4, vT[4], sC)], [vP0, vP0 + 4], chk_tags)
stamp(13)
A('s_cmp_lt_u32 %s, 6' % sW)
A('s_cbranch_scc0 L_R_ONE')
A('v_pk_add_f32 %s, %s, %s' % (v(vP0, 2), v(vP0, 2), v(vP0 + 4, 2)))
A('L_R_ONE:')
red8(vP0)
A('ds_write_b32 %s, %s offset:%d' % (v(vT[2]), v(vP0), L_R2))
bar()
A('s_cmp_lg_u32 %s, 0' % sW)
A('s_cbranch_scc1 L_FIN')
A('ds_read_b64 %s, %s offset:%d' % (v(vP0, 2), v(vT[3]), L_R2))
A('s_waitcnt lgkmcnt(0)')
A('v_add_f32 %s, %s, %s' % (v(vP0), v(vP0), v(vP0 + 1)))
allred_rows(vP0, vP0 + 1, 'add')
resid1(vP0, vX4)
set_exec(0xffff)
A('buffer_store_short %s, %s, %s, %s offen' % (v(vP0), v(vT[1]), SRD_OUT, sD))
A('s_cmp_lg_u32 %s, 0' % sIDX)
A('s_cbranch_scc1 L_NOEP')
set_exec(1)
A('buffer_store_dword %s, %s, %s, 0 offen offset:%d' % (v(vG + 2), v(vT[1]), SRD_WS, WS_EPOCH))
A('L_NOEP:')
set_exec(FULL)
stamp(14)
A('L_FIN:')
if STAMPS:
    A('s_waitcnt lgkmcnt(0)')
    A('v_mov_b32 %s, 0' % v(vT[8]))
    for i in range(16): A('v_writelane_b32 %s, s%d, %d' % (v(vT[8]), 64 + 2 * i, i))
    A('s_lshl_b32 %s, s2, 9' % sB)
    A('s_lshl_b32 %s, %s, 6' % (sC, sW))
    A('s_add_u32 %s, %s, %s' % (sB, sB, sC))
    A('s_add_u32 %s, %s, 0x%x' % (sB, sB, WS_ST))
    A('v_lshlrev_b32 %s, 2, %s' % (v(vT[9]), v(vL)))
    set_exec(0xffff)
    A('buffer_store_dword %s, %s, %s, %s offen' % (v(vT[8]), v(vT[9]), SRD_WS, sB))
A('s_endpgm')
A('L_E1_RETRY:')
a.hist = []
A('s_mov_b32 %s, 0x%x' % (sC, (-E1_FS if NOFAST else E1_FS) & 0xffffffff))
def flip():
    A('s_add_u32 %s, %s, %s' % (sA, sA, sC))
    A('s_add_u32 %s, %s, %s' % (sB, sB, sC))
    A('s_sub_u32 %s, 0, %s' % (sC, sC))
mpoll(e1l, [vP0, vP0 + 4], chk_tags, each=flip)
A('s_branch L_E1_OK')
a.raw('.p2align 12, 0')
nv = (NVGPR + 7) // 8 * 8
a.raw('''.section .rodata,"a"
.p2align 6
.amdhsa_kernel %s_kernel
  .amdhsa_next_free_vgpr %d
  .amdhsa_next_free_sgpr 102
  .amdhsa_accum_offset %d
  .amdhsa_group_segment_fixed_size 0
  .amdhsa_kernarg_size 96
  .amdhsa_user_sgpr_count 2
  .amdhsa_user_sgpr_kernarg_segment_ptr 1
  .amdhsa_system_sgpr_workgroup_id_x 1
  .amdhsa_float_denorm_mode_32 3
.end_amdhsa_kernel''' % (NAME, nv, nv))
open(OUT, 'w').write(a.text())
print('wrote', OUT, 'vgprs', NVGPR)
```

```python
import sys
from asmlib import Asm

NAME = 'sequential_preLN__sliding_block_cached__glu_gated_reglu__decode'
STAMPS = '--stamps' in sys.argv
NOFAST = '--nofast' in sys.argv
def OPT(name, d=0):
    for a_ in sys.argv:
        if a_.startswith('--%s=' % name): return int(a_.split('=')[1])
    return d
FSLEEP = OPT('fsleep', 2); PF = OPT('pf', 0)
OUT = [a for a in sys.argv[1:] if not a.startswith('--')]
OUT = OUT[0] if OUT else 'cdna_kernels/%s.s' % NAME

WS_EPOCH = 0
WS_FL = 0x8000
WS_E1 = 0x10000; E1_K = 4352; E1_G = 4 * E1_K; E1_FS = 0x24000
WS_E3 = 0x60000
WS_E4 = 0x80000
WS_E2 = 0x100000
WS_E5 = 0x200000
WS_ST = 0x500000
WS_SIZE = 0x600000
QS = 272
L_QACC = 0; L_Q = 2048; L_P = L_Q + 4 * QS
L_MAX = L_P + 4 * QS; L_LS = L_MAX + 128
L_R1 = L_LS + 128; L_R2 = L_R1 + 512; L_ACC = L_R2 + 512
L_FLG = L_ACC + 256
L_V = 8192; L_K = L_V + 32768; L_W = L_K + 32768
LDS_BYTES = L_W + 32768
LOG2E = 0x3fb8aa3b; SCALE = 0x3db504f3; EPS = 0x3727c5ac; INV512 = 0x3b000000; ONES = 0x3f803f80
SPIN = 1 << 21

a = Asm(); A = a
sW, sG, sR = 's3', 's4', 's5'
sTAG = 's[6:7]'; sTA, sTB = 's6', 's7'
sMSK = 's[8:9]'
sSELLO, sSELHI = 's12', 's13'
sCNT = 's14'; sONE = 's15'
SRD_WS = 's[16:19]'; SRD_OUT = 's[20:23]'
sA, sB, sC, sD = 's24', 's25', 's26', 's27'
sKV = 's28'; sJ = 's29'; sSTEP = 's30'; sIDX = 's31'; sRB = 's32'; sM0 = 's33'
sXT = 's34'; sROLE = 's35'
SRD_X, SRD_WQ, SRD_K, SRD_V, SRD_W2 = 36, 40, 44, 48, 52
pWO, pWG, pWU = 56, 60, 62
sHI = 's58'; sE = 's59'; sFAST = 's96'; sF = 's97'; sVM = 's98'; sVS = 's99'; s8K = 's100'; sLG = 's101'
MS = ['s[40:41]', 's[42:43]', 's[44:45]', 's[46:47]']
def srd(n): return 's[%d:%d]' % (n, n + 3)
W3 = 's%d' % (SRD_X + 3)

class V:
    n = 0
    @classmethod
    def alloc(cls, k=1, align=1):
        cls.n = (cls.n + align - 1) // align * align
        r = cls.n; cls.n += k
        return r
def v(r, k=1): return 'v%d' % r if k == 1 else 'v[%d:%d]' % (r, r + k - 1)
vTID = V.alloc(); vL = V.alloc(); vZ = V.alloc()
vWv = V.alloc(); vPI = V.alloc(); vL15 = V.alloc(); vROW = V.alloc(); vCC = V.alloc()
vT = [V.alloc() for _ in range(12)]
oX, oXR, oWQ, oK, oV, oW2, oTR, oFR = [V.alloc() for _ in range(8)]
vK = V.alloc(16, 4); vW1 = vK
vFB = V.alloc(16, 4); vFA = V.alloc(16, 4)
vXF = vFB; vWQa = vFB + 4; vWQb = vFB + 8
vW2 = V.alloc(8, 4); vY = V.alloc(8, 4); vACC = V.alloc(4, 4)
vG = V.alloc(4, 4); vG2 = V.alloc(4, 4)
vP0 = V.alloc(8, 4); vP1 = V.alloc(8, 4)
vCS = V.alloc(4, 4); vA4 = V.alloc(4, 4); vCN = V.alloc(4, 4)
vXR = V.alloc(2, 2); vX4 = V.alloc(2, 2); vWA = V.alloc(2, 2); oVD = V.alloc(); vDUM = V.alloc()
NVGPR = V.n

DIAG = OPT('diag', -1)
def stamp(i):
    if STAMPS: A('s_memrealtime s[%d:%d]' % (64 + 2 * i, 65 + 2 * i))
    if DIAG >= 0 and i == 0: A('s_memrealtime s[64:65]')
    if DIAG >= 0 and i == DIAG: A('s_memrealtime s[66:67]')
lab = [0]
def newlab(p='L'):
    lab[0] += 1
    return '%s%d' % (p, lab[0])
def dpp(d, s, mod, op='add'):
    A('v_%s_f32_dpp %s, %s, %s %s row_mask:0xf bank_mask:0xf' % (op, v(d), v(s), v(s), mod))
def dpp_add(d, ror, op='add'): dpp(d, d, 'row_ror:%d' % ror, op)
def movdpp(d, s, mod): A('v_mov_b32_dpp %s, %s %s row_mask:0xf bank_mask:0xf' % (v(d), v(s), mod))
def allred_rows(x, t, op='add', which=(16, 32)):
    for wdt in which:
        A('v_mov_b32 %s, %s' % (v(t), v(x)))
        A('v_permlane%d_swap_b32 %s, %s' % (wdt, v(x), v(t)))
        A('v_%s_f32 %s, %s, %s' % (op, v(x), v(x), v(t)))
def hi16(d, s): A('v_and_b32 %s, %s, %s' % (v(d), sHI, v(s)))
def lo16(d, s): A('v_lshlrev_b32 %s, 16, %s' % (v(d), v(s)))
def cvt(d, x, y): A('v_cvt_pk_bf16_f32 %s, %s, %s' % (v(d), v(x), v(y)))
def bf16r(d, s): cvt(d, s, s); hi16(d, d)
def ln_stats(vsum, vsq, vm, vr, t):
    A('v_mul_f32 %s, 0x%x, %s' % (v(vsum), INV512, v(vsum)))
    A('v_mul_f32 %s, 0x%x, %s' % (v(vsq), INV512, v(vsq)))
    A('v_fma_f32 %s, -%s, %s, %s' % (v(vsq), v(vsum), v(vsum), v(vsq)))
    A('v_max_f32 %s, 0, %s' % (v(vsq), v(vsq)))
    cvt(t, vsum, vsq)
    lo16(vm, t); hi16(vr, t)
    A('v_add_f32 %s, 0x%x, %s' % (v(vr), EPS, v(vr)))
    bf16r(vr, vr)
    A('v_sqrt_f32 %s, %s' % (v(vr), v(vr)))
    bf16r(vr, vr)
    A('v_rcp_f32 %s, %s' % (v(vr), v(vr)))
FULL = (1 << 64) - 1
def set_exec(mask):
    lo, hi = mask & 0xffffffff, mask >> 32
    if mask == FULL: A('s_mov_b64 exec, -1')
    elif hi == 0 and lo <= 64: A('s_mov_b64 exec, %d' % lo)
    elif hi == 0 and lo < 0x80000000: A('s_mov_b64 exec, 0x%x' % lo)
    elif lo == hi:
        A('s_mov_b32 exec_lo, 0x%x' % lo); A('s_mov_b32 exec_hi, exec_lo')
    else: raise ValueError
def mpoll(loads, grans, check, first_in_flight=False, extra=None, each=None):
    top = newlab('P'); done = newlab('D'); chk = newlab('C')
    A('s_mov_b32 %s, %d' % (sCNT, SPIN))
    if not first_in_flight:
        for l in loads: A(l)
    A('s_branch %s' % chk)
    A('%s:' % top)
    if each: each()
    for i, l in enumerate(loads):
        sk = newlab('K')
        A('s_mov_b64 exec, %s' % MS[i])
        A('s_cbranch_execz %s' % sk)
        A(l)
        A('%s:' % sk)
    A('s_mov_b64 exec, -1')
    A('%s:' % chk)
    A('s_waitcnt vmcnt(0)')
    for i, gq in enumerate(grans): check(i, gq, vY + i)
    for i, gq in enumerate(grans): A('v_cmp_ne_u32 %s, 0, %s' % (MS[i], v(vY + i)))
    if extra: extra()
    A('s_sub_u32 %s, %s, 1' % (sCNT, sCNT))
    A('s_cbranch_scc1 %s' % done)
    A('s_or_b64 vcc, %s, %s' % (MS[0], MS[1 if len(grans) > 1 else 0]))
    for i in range(2, len(grans)): A('s_or_b64 vcc, vcc, %s' % MS[i])
    A('s_cbranch_scc1 %s' % top)
    A('%s:' % done)
def chk_tags(i, gq, t):
    A('v_xor_b32 %s, %s, %s' % (v(t), sTA, v(gq + 2)))
    A('v_xor_b32 %s, %s, %s' % (v(t + 4), sTB, v(gq + 3)))
    A('v_or_b32 %s, %s, %s' % (v(t), v(t), v(t + 4)))
def chk_lam(i, gq, t):
    A('v_xor_b32 %s, %s, %s' % (v(t), sTA, v(gq + 3)))
    A('v_xor_b32_dpp %s, %s, %s quad_perm:[1,0,3,2] row_mask:0xf bank_mask:0xf' % (v(t + 4), v(gq + 2), v(gq + 2)))
    A('v_or_b32 %s, %s, %s' % (v(t), v(t), v(t + 4)))
def ldws(dst, voff, soff, imm=0):
    return 'buffer_load_dwordx4 %s, %s, %s, %s offen%s sc1' % (v(dst, 4), v(voff), SRD_WS, soff, (' offset:%d' % imm) if imm else '')
def stws(src, voff, soff, sc1=True):
    A('buffer_store_dwordx4 %s, %s, %s, %s offen%s' % (v(src, 4), v(voff), SRD_WS, soff, ' sc1' if sc1 else ''))
def st_grp(src, voff, soff):
    l1 = newlab('S'); l2 = newlab('S')
    A('s_cmp_eq_u32 %s, 0' % sFAST)
    A('s_cbranch_scc1 %s' % l1)
    stws(src, voff, soff, False)
    A('s_branch %s' % l2)
    A('%s:' % l1)
    stws(src, voff, soff, True)
    A('%s:' % l2)
def red8(x):
    A('v_permlane32_swap_b32 %s, %s' % (v(x), v(x + 1)))
    A('v_add_f32 %s, %s, %s' % (v(x), v(x), v(x + 1)))
    allred_rows(x, x + 1, 'add', (16,))
    dpp_add(x, 8)
def resid1(x, base):
    bf16r(x, x)
    A('v_add_f32 %s, %s, %s' % (v(x), v(x), v(base)))
    cvt(x, x, x)
def bar():
    A('s_waitcnt lgkmcnt(0)')
    A('s_barrier')
def mfma(acc, x, y, first): A('v_mfma_f32_16x16x32_bf16 %s, %s, %s, %s' % (v(acc, 4), v(x, 4), v(y, 4), '0' if first else v(acc, 4)))
def kdma(i):
    if i: A('v_xor_b32 %s, 0x%x, %s' % (v(vT[11]), 64 * i, v(oK)))
    A('buffer_load_dwordx4 %s, %s, %s offen offset:%d nt lds' % (v(vT[11] if i else oK), srd(SRD_K), sVS, 1024 * i))
def vdma():
    A('s_mov_b32 m0, %s' % sVM)
    A('s_add_u32 %s, %s, %s' % (sVM, sVM, s8K))
    A('buffer_load_dwordx4 %s, %s, %s offen nt lds' % (v(oVD), srd(SRD_V), sVS))
    A('s_add_u32 %s, %s, %s' % (sVS, sVS, s8K))
def tone():
    A('s_mov_b32 m0, %s' % sM0)
    A('s_add_u32 %s, %s, %s' % (sM0, sM0, s8K))
    A('global_load_lds_dwordx4 %s, off nt' % v(vWA, 2))
    A('v_lshl_add_u64 %s, %s, 0, s[30:31]' % (v(vWA, 2), v(vWA, 2)))
def fin():
    if STAMPS: A('s_branch L_FIN')
    else: A('s_endpgm')

head = []
for l in open('cdna_kernels/%s.s.ref' % NAME).read().split('\n'):
    if not l.startswith(';'): break
    head.append('; @launch grid=(256,1,1) block=(512,1,1) lds=%d' % LDS_BYTES if l.startswith('; @launch') else l)
a.raw('\n'.join(head))
a.raw('.amdgcn_target "amdgcn-amd-amdhsa--gfx950"\n.text\n.globl %s_kernel\n.p2align 12\n.type %s_kernel,@function\n%s_kernel:' % (NAME, NAME, NAME))
sIDX = 's29'
A('s_load_dwordx2 s[%d:%d], s[0:1], 24' % (SRD_WQ, SRD_WQ + 1))
A('s_load_dwordx2 s[%d:%d], s[0:1], 0' % (SRD_X, SRD_X + 1))
A('s_load_dwordx2 s[16:17], s[0:1], 88')
A('s_load_dwordx2 s[%d:%d], s[0:1], 8' % (SRD_K, SRD_K + 1))
A('s_lshr_b32 %s, s2, 3' % sR)
A('s_cmp_ge_u32 %s, 32' % sR)
A('s_cbranch_scc1 L_END0')
def pf():
    A('s_getpc_b64 s[10:11]')
    A('s_and_b32 s10, s10, 0xfffff000')
    A('v_lshlrev_b32 %s, 3, v0' % v(vT[1]))
    A('global_load_dword %s, %s, s[10:11]' % (v(vDUM), v(vT[1])))
if PF == 1: pf()
A('v_readfirstlane_b32 %s, v0' % sW)
A('v_and_b32 %s, 63, v0' % v(vL))
A('s_and_b32 %s, s2, 7' % sG)
A('s_and_b32 %s, %s, 3' % (sRB, sR))
A('s_lshr_b32 %s, %s, 2' % (sE, sR))
if STAMPS:
    for i in range(16): A('s_mov_b64 s[%d:%d], 0' % (64 + 2 * i, 65 + 2 * i))
stamp(0)
A('v_lshrrev_b32 %s, 3, v0' % v(vT[0]))
A('v_and_b32 %s, 7, v0' % v(vCC))
A('v_lshlrev_b32 %s, 4, %s' % (v(oW2), v(vCC)))
A('v_lshl_or_b32 %s, %s, 14, %s' % (v(oWQ), v(vT[0]), v(oW2)))
A('s_lshl_b32 %s, %s, 20' % (sA, sRB))
A('s_lshl_b32 %s, %s, 10' % (sC, sG))
A('s_add_u32 %s, %s, %s' % (sA, sA, sC))
A('s_lshl_b32 %s, %s, 7' % (sC, sE))
A('s_add_u32 %s, %s, %s' % (sA, sA, sC))
A('s_movk_i32 %s, 8192' % s8K)
A('s_add_u32 %s, %s, %s' % (sB, sA, s8K))
A('s_mov_b32 %s, 0x20000' % W3)
A('s_lshl_b32 s%d, %s, 5' % (SRD_WQ + 2, W3)); A('s_mov_b32 s%d, %s' % (SRD_WQ + 3, W3))
A('s_movk_i32 s%d, 1024' % (SRD_X + 2))
A('v_lshlrev_b32 %s, 4, %s' % (v(oX), v(vL)))
A('v_lshlrev_b32 %s, 2, %s' % (v(oXR), v(vT[0])))
A('s_lshl_b32 %s, %s, 8' % (sD, sRB))
A('s_waitcnt lgkmcnt(0)')
A('buffer_load_dwordx4 %s, %s, %s, 0 offen' % (v(vXF, 4), v(oX), srd(SRD_X)))
A('buffer_load_dword %s, %s, %s, %s offen' % (v(vXR), v(oXR), srd(SRD_X), sD))
A('buffer_load_dwordx4 %s, %s, %s, %s offen nt' % (v(vWQa, 4), v(oWQ), srd(SRD_WQ), sA))
A('buffer_load_dwordx4 %s, %s, %s, %s offen nt' % (v(vWQb, 4), v(oWQ), srd(SRD_WQ), sB))
A('s_load_dwordx2 %s, s[16:17], %d' % (sTAG, WS_EPOCH))
A('s_lshr_b32 %s, %s, 6' % (sW, sW))
A('s_mul_i32 s18, %s, %d' % (W3, WS_SIZE // 0x20000)); A('s_mov_b32 s19, %s' % W3)
A('s_add_u32 %s, %s, 8' % (sKV, sG))
A('s_lshl_b32 %s, %s, 12' % (sKV, sKV))
A('v_lshlrev_b32 %s, 3, v0' % v(vT[1]))
A('buffer_load_dword %s, %s, %s, %s offen sc1' % (v(vDUM), v(vT[1]), SRD_WS, sKV))
if PF == 2: pf()
X2 = 1 if PF == 2 else 0
A('v_lshrrev_b32 %s, 6, v0' % v(vWv))
A('v_and_b32 %s, 15, %s' % (v(vL15), v(vL)))
A('v_lshrrev_b32 %s, 4, %s' % (v(vROW), v(vL)))
A('s_lshl_b32 %s, %s, 8' % (sVS, sG))
A('s_add_u32 %s, %s, %s' % (sVS, sVS, sR))
A('s_addk_i32 %s, 224' % sVS)
A('s_lshl_b32 %s, %s, 15' % (sVS, sVS))
A('v_xor_b32 %s, %s, %s' % (v(vT[1]), v(vL15), v(vROW)))
A('v_lshlrev_b32 %s, 4, %s' % (v(vT[1]), v(vT[1])))
A('v_lshl_or_b32 %s, %s, 12, %s' % (v(vT[2]), v(vWv), v(vT[1])))
A('v_lshl_or_b32 %s, %s, 8, %s' % (v(oK), v(vROW), v(vT[2])))
A('v_lshl_or_b32 %s, %s, 8, %s' % (v(vA4), v(vL15), v(vT[2])))
A('s_lshl_b32 s%d, %s, 9' % (SRD_K + 2, W3)); A('s_mov_b32 s%d, %s' % (SRD_K + 3, W3))
A('s_add_u32 %s, %s, %d' % (sF, sW, L_K // 4096))
A('s_lshl_b32 m0, %s, 12' % sF)
A('s_barrier')
for i in range(3): kdma(i)
stamp(1)
A('s_load_dwordx2 s[%d:%d], s[0:1], 16' % (SRD_V, SRD_V + 1))
A('s_load_dwordx2 s[%d:%d], s[0:1], 32' % (pWO, pWO + 1))
A('s_load_dwordx4 s[%d:%d], s[0:1], 48' % (pWG, pWG + 3))
A('s_load_dwordx2 s[%d:%d], s[0:1], 64' % (SRD_W2, SRD_W2 + 1))
A('s_mov_b32 %s, 0x05040100' % sSELLO)
A('s_mov_b32 %s, 0x07060302' % sSELHI)
A('s_mov_b32 %s, 0x%x' % (sONE, ONES))
A('s_mov_b32 %s, 0xffff0000' % sHI)
A('s_mov_b32 %s, 0x%x' % (sLG, LOG2E))
A('s_mov_b64 s[%d:%d], s[%d:%d]' % (SRD_V + 2, SRD_V + 3, SRD_K + 2, SRD_K + 3))
A('v_lshrrev_b32 %s, 5, %s' % (v(vPI), v(vL)))
A('v_mov_b32 %s, 0' % v(vZ))
A('s_getreg_b32 %s, hwreg(HW_REG_XCC_ID, 0, 4)' % sXT)
A('v_lshlrev_b32 %s, 1, %s' % (v(vT[5]), v(oW2)))
A('v_lshl_or_b32 %s, %s, 3, %s' % (v(vT[5]), v(vROW), v(vT[5])))
A('v_lshl_or_b32 %s, %s, 8, %s' % (v(vT[5]), v(vWv), v(vT[5])))
A('v_and_b32 %s, 31, %s' % (v(vT[7]), v(vL)))
A('v_lshlrev_b32 %s, 3, %s' % (v(vT[6]), v(vT[7])))
A('v_lshl_or_b32 %s, %s, 10, %s' % (v(vT[6]), v(vPI), v(vT[6])))
A('v_lshrrev_b32 %s, 4, v0' % v(vT[2]))
A('v_and_b32 %s, 2, %s' % (v(vT[3]), v(vWv)))
A('v_lshl_or_b32 %s, %s, 1, %s' % (v(vT[3]), v(vT[3]), v(vROW)))
A('v_lshlrev_b32 %s, 1, %s' % (v(vT[3]), v(vT[3])))
A('v_xor_b32 %s, %s, %s' % (v(vT[3]), v(vT[3]), v(vL15)))
A('v_lshlrev_b32 %s, 4, %s' % (v(vCN), v(vT[3])))
A('v_lshl_or_b32 %s, %s, 8, %s' % (v(oVD), v(vT[2]), v(vCN)))
A('s_add_u32 %s, %s, %d' % (sVM, sW, L_V // 1024))
A('s_lshl_b32 %s, %s, 10' % (sVM, sVM))
A('s_add_u32 %s, %s, 0x%x' % (sM0, sVM, L_W - L_V))
A('s_add_u32 s10, s16, %s' % sKV)
A('s_addc_u32 s11, s17, 0')
A('s_lshl2_add_u32 %s, %s, %s' % (sKV, sR, sKV))
A('s_mul_i32 %s, %s, %d' % (sA, sG, E1_G))
A('s_add_u32 %s, %s, 0x%x' % (sA, sA, WS_E1))
A('s_mulk_i32 %s, %d' % (sD, E1_K // 256))
A('s_lshl_b32 %s, %s, 9' % (sC, sE))
A('s_add_u32 %s, %s, %s' % (sB, sD, sC))
A('s_add_u32 %s, %s, %s' % (sB, sB, sA))
A('s_mov_b32 s31, 0')
A('s_lshl2_add_u32 %s, %s, %s' % (sIDX, sG, sE))
A('s_mov_b32 %s, 0' % sROLE)
A('v_lshlrev_b32 %s, 7, %s' % (v(vT[8]), v(vL)))
A('s_waitcnt vmcnt(%d)' % (7 + X2))
stamp(2)
s0, s1, m_, r_, t_ = vT[0], vT[1], vT[9], vT[10], vT[4]
A('v_dot2_f32_bf16 %s, %s, %s, 0' % (v(s0), v(vXF), sONE))
A('v_dot2_f32_bf16 %s, %s, %s, 0' % (v(s1), v(vXF), v(vXF)))
for j in range(1, 4):
    A('v_dot2c_f32_bf16 %s, %s, %s' % (v(s0), sONE, v(vXF + j)))
    A('v_dot2c_f32_bf16 %s, %s, %s' % (v(s1), v(vXF + j), v(vXF + j)))
A('v_permlane32_swap_b32 %s, %s' % (v(s0), v(s1)))
A('v_add_f32 %s, %s, %s' % (v(s0), v(s0), v(s1)))
allred_rows(s0, s1, 'add', (16,))
for ror in (8, 4, 2): dpp_add(s0, ror)
dpp(s1, s0, 'row_ror:1'); dpp(s0, s0, 'row_ror:1')
A('v_permlane32_swap_b32 %s, %s' % (v(s0), v(s1)))
ln_stats(s0, s1, m_, r_, t_)
A('s_waitcnt vmcnt(%d)' % (6 + X2))
lo16(s0, vXR); hi16(s1, vXR)
A('v_sub_f32 %s, %s, %s' % (v(s0), v(s0), v(m_)))
A('v_sub_f32 %s, %s, %s' % (v(s1), v(s1), v(m_)))
cvt(t_, s0, s1)
lo16(s0, t_); hi16(s1, t_)
A('v_mul_f32 %s, %s, %s' % (v(s0), v(s0), v(r_)))
A('v_mul_f32 %s, %s, %s' % (v(s1), v(s1), v(r_)))
cvt(vXR, s0, s1)
A('s_waitcnt vmcnt(%d)' % (4 + X2))
stamp(3)
for j in range(4):
    A('v_perm_b32 %s, %s, %s, %s' % (v(vFA + 2 * j), v(vWQb + j), v(vWQa + j), sSELLO))
    A('v_perm_b32 %s, %s, %s, %s' % (v(vFA + 2 * j + 1), v(vWQb + j), v(vWQa + j), sSELHI))
for e in range(8): A('v_dot2_f32_bf16 %s, %s, %s, 0' % (v(vY + e), v(vFA + e), v(vXR)))
for i in range(4): A('v_permlane32_swap_b32 %s, %s' % (v(vY + i), v(vY + 4 + i)))
for i in range(4): A('v_add_f32 %s, %s, %s' % (v(vY + i), v(vY + i), v(vY + 4 + i)))
for i in range(2): A('v_permlane16_swap_b32 %s, %s' % (v(vY + i), v(vY + 2 + i)))
for i in range(2): A('v_add_f32 %s, %s, %s' % (v(vY + i), v(vY + i), v(vY + 2 + i)))
dpp_add(vY, 8); dpp_add(vY + 1, 8)
A('ds_write_b64 %s, %s offset:%d' % (v(vT[5]), v(vY, 2), L_QACC))
A('s_waitcnt lgkmcnt(0)')
A('s_add_u32 %s, %s, 1' % (sTA, sTA))
A('s_barrier')
A('s_lshl4_add_u32 %s, %s, %s' % (sXT, sTA, sXT))
A('v_mov_b32 %s, %s' % (v(vG + 2), sTA))
A('v_mov_b32 %s, %s' % (v(vG + 3), sTB))
A('s_cmp_lg_u32 %s, 0' % sW)
A('s_cbranch_scc1 L_NOPUB1')
A('ds_read2st64_b64 %s, %s offset0:0 offset1:1' % (v(vY, 4), v(vT[6])) if False else 'ds_read2_b64 %s, %s offset0:%d offset1:%d' % (v(vY, 4), v(vT[6]), 0, 32))
A('ds_read2_b64 %s, %s offset0:%d offset1:%d' % (v(vY + 4, 4), v(vT[6]), 64, 96))
A('v_mov_b32 %s, %s' % (v(vG2), sXT))
A('s_add_u32 %s, %s, 0x%x' % (sC, sB, E1_FS))
A('s_waitcnt lgkmcnt(0)')
A('v_pk_add_f32 %s, %s, %s' % (v(vY, 2), v(vY, 2), v(vY + 2, 2)))
A('v_pk_add_f32 %s, %s, %s' % (v(vY + 4, 2), v(vY + 4, 2), v(vY + 6, 2)))
A('v_pk_add_f32 %s, %s, %s' % (v(vG, 2), v(vY, 2), v(vY + 4, 2)))
A('v_pk_add_f32 %s, %s, %s' % (v(vY, 2), v(vY, 2), v(vY + 4, 2)))
A('v_permlane32_swap_b32 %s, %s' % (v(vG), v(vY)))
A('v_permlane32_swap_b32 %s, %s' % (v(vG + 1), v(vY + 1)))
A('v_pk_add_f32 %s, %s, %s' % (v(vG, 2), v(vG, 2), v(vY, 2)))
A('s_mov_b32 exec_hi, 0')
stws(vG, oX, sB, False)
A('buffer_store_dword %s, %s, %s, %s offen' % (v(vG2), v(vT[8]), SRD_WS, sKV))
stws(vG, oX, sC, True)
set_exec(FULL)
A('L_NOPUB1:')
stamp(4)
A('s_barrier')
kdma(3); vdma(); vdma()
A('s_cmp_lt_u32 %s, 16' % sR)
A('s_cbranch_scc0 L_LA_G')
A('s_lshl_b32 %s, %s, 9' % (sF, sIDX))
A('s_add_u32 %s, %s, %s' % (sF, sF, sRB))
A('s_lshl_b32 %s, %s, 8' % (sF, sF))
A('v_lshl_or_b32 %s, %s, 10, %s' % (v(vT[2]), v(vT[2]), v(vCN)))
A('s_lshl_b32 s30, %s, 2' % s8K)
A('s_mov_b64 s[%d:%d], s[%d:%d]' % (pWG, pWG + 1, pWO, pWO + 1))
A('s_mov_b64 s[%d:%d], s[%d:%d]' % (pWU, pWU + 1, pWO, pWO + 1))
A('s_branch L_LA_GO')
A('L_LA_G:')
A('s_max_u32 %s, %s, 4' % (sC, sG))
A('s_sub_u32 %s, %s, %s' % (sC, sIDX, sC))
A('s_lshr_b32 %s, %s, 2' % (sROLE, sG))
A('s_add_u32 %s, %s, %s' % (sROLE, sROLE, sE))
A('s_cmp_eq_u32 %s, 8' % sROLE)
A('s_cselect_b32 %s, 2, 1' % sROLE)
A('s_lshl2_add_u32 %s, %s, %s' % (sIDX, sC, sRB))
A('s_mul_i32 %s, %s, 3584' % (sF, sRB))
A('s_add_u32 %s, %s, %s' % (sF, sF, sC))
A('s_lshl_b32 %s, %s, 7' % (sF, sF))
A('v_and_b32 %s, 0x70, %s' % (v(vCN), v(vCN)))
A('s_movk_i32 %s, 3584' % sC)
A('v_mad_u32_u24 %s, %s, %s, %s' % (v(vT[2]), v(vT[2]), sC, v(vCN)))
A('s_lshl_b32 s30, %s, 5' % sC)
A('L_LA_GO:')
A('v_cmp_lt_u32 vcc, 7, %s' % v(vT[3]))
A('v_add_u32 %s, %s, %s' % (v(vCN), sF, v(vT[2])))
A('v_mov_b32 %s, 0' % v(vCN + 1))
A('v_lshl_add_u64 %s, %s, 0, s[%d:%d]' % (v(vWA, 2), v(vCN, 2), pWG, pWG + 1))
A('v_lshl_add_u64 %s, %s, 0, s[%d:%d]' % (v(vCN + 2, 2), v(vCN, 2), pWU, pWU + 1))
A('v_cndmask_b32 %s, %s, %s, vcc' % (v(vWA), v(vWA), v(vCN + 2)))
A('v_cndmask_b32 %s, %s, %s, vcc' % (v(vWA + 1), v(vWA + 1), v(vCN + 3)))
A('v_mov_b32 %s, %s' % (v(vG2 + 3), sTA))
A('v_bfe_u32 %s, %s, 2, 2' % (v(vT[1]), v(vL)))
A('v_bfe_u32 %s, %s, 2, 3' % (v(vT[2]), v(vL)))
A('v_xor_b32 %s, %s, %s' % (v(vT[2]), v(vT[2]), v(vWv)))
A('v_and_b32 %s, 3, %s' % (v(vT[6]), v(vL)))
A('v_lshl_or_b32 %s, %s, 2, %s' % (v(vT[2]), v(vT[2]), v(vT[6])))
A('v_lshl_or_b32 %s, %s, 5, %s' % (v(vT[2]), v(vT[1]), v(vT[2])))
A('v_lshl_or_b32 %s, %s, 8, %s' % (v(vT[2]), v(vROW), v(vT[2])))
A('v_lshlrev_b32 %s, 3, %s' % (v(oTR), v(vT[2])))
A('v_and_b32 %s, 48, %s' % (v(vT[2]), v(vL)))
A('s_movk_i32 %s, %d' % (sC, QS))
A('v_mad_u32_u24 %s, %s, %s, %s' % (v(oFR), v(vT[6]), sC, v(vT[2])))
A('v_mad_u32_u24 %s, %s, %s, %s' % (v(oV), v(vT[1]), sC, v(vT[2])))
A('v_lshrrev_b32 %s, 1, v0' % v(vT[8]))
A('v_and_b32 %s, 0xf8, %s' % (v(vT[8]), v(vT[8])))
A('v_mad_u32_u24 %s, %s, %s, %s' % (v(vT[8]), v(vT[6]), sC, v(vT[8])))
A('v_lshl_or_b32 %s, %s, 5, %s' % (v(vT[4]), v(vWv), v(vT[7])))
A('v_mul_u32_u24 %s, %d, %s' % (v(vT[1]), 2 * E1_K, v(vPI)))
A('v_lshl_add_u32 %s, %s, 4, %s' % (v(vT[0]), v(vT[4]), v(vT[1])))
if NOFAST: A('s_add_u32 %s, %s, 0x%x' % (sA, sA, E1_FS))
A('s_add_u32 %s, %s, %d' % (sB, sA, E1_K))
A('v_lshl_or_b32 %s, %s, 1, %s' % (v(vT[1]), v(vT[4]), v(vPI)))
A('v_and_b32 %s, 6, %s' % (v(vT[4]), v(vWv)))
A('v_lshl_add_u32 %s, %s, 2, %s' % (v(vT[1]), v(vT[4]), v(vT[1])))
A('v_lshlrev_b32 %s, 1, %s' % (v(vT[1]), v(vT[1])))
A('v_xor_b32 %s, 64, %s' % (v(vA4 + 1), v(vA4)))
A('v_xor_b32 %s, 0x80, %s' % (v(vA4 + 2), v(vA4)))
A('v_xor_b32 %s, 64, %s' % (v(vA4 + 3), v(vA4 + 2)))
A('v_lshlrev_b32 %s, 5, %s' % (v(vT[7]), v(vT[6])))
A('v_lshl_add_u32 %s, %s, 2, %s' % (v(vT[3]), v(vWv), v(vT[7])))
A('v_lshlrev_b32 %s, 5, %s' % (v(vT[9]), v(vROW)))
A('v_lshl_or_b32 %s, %s, 15, %s' % (v(vT[10]), v(vROW), v(oW2)))
A('s_lshl_b32 %s, %s, 5' % (sKV, sG))
A('s_add_u32 %s, %s, %s' % (sKV, sKV, sW))
A('s_lshl_b32 %s, %s, 5' % (sKV, sKV))
A('s_add_u32 %s, %s, %s' % (sKV, sKV, sR))
A('s_add_u32 %s, %s, %s' % (sKV, sKV, s8K))
A('s_lshl_b32 %s, %s, 7' % (sKV, sKV))
A('s_mov_b32 %s, 0' % sFAST)
A('s_cmp_lg_u32 %s, 7' % sW)
A('s_cbranch_scc1 L_FL_DONE')
A('s_movk_i32 %s, 31' % sCNT)
A('s_mov_b32 s8, %s' % sXT); A('s_mov_b32 s9, %s' % sXT)
A('L_FL:')
if STAMPS:
    for pc in range(4):
        A('s_load_dwordx8 s[40:47], s[10:11], %d' % (32 * pc))
        A('s_waitcnt lgkmcnt(0)')
        for k in range(4):
            A('s_cmp_eq_u64 s[%d:%d], s[8:9]' % (40 + 2 * k, 41 + 2 * k))
            A('s_cbranch_scc0 L_FL_NO')
else:
    A('s_load_dwordx16 s[64:79], s[10:11], 0')
    A('s_load_dwordx16 s[80:95], s[10:11], 64')
    A('s_waitcnt lgkmcnt(0)')
    for k in range(16):
        A('s_cmp_eq_u64 s[%d:%d], s[8:9]' % (64 + 2 * k, 65 + 2 * k))
        A('s_cbranch_scc0 L_FL_NO')
A('s_mov_b32 %s, %d' % (sFAST, 0 if NOFAST else 1))
A('s_branch L_FL_W')
A('L_FL_NO:')
if FSLEEP: A('s_sleep %d' % FSLEEP)
A('s_addk_i32 s10, 128')
A('s_sub_u32 %s, %s, 1' % (sCNT, sCNT))
A('s_cbranch_scc0 L_FL')
A('L_FL_W:')
A('v_mov_b32 %s, %s' % (v(vP1), sFAST))
A('ds_write_b32 %s, %s offset:%d' % (v(vZ), v(vP1), L_FLG))
A('L_FL_DONE:')
A('s_barrier')
stamp(5)
e1l = [ldws(vP0, vT[0], sA), ldws(vP0 + 4, vT[0], sB)]
for l in e1l: A(l)
A('s_barrier')
vdma(); vdma()
A(ldws(vCS, vT[10], sKV))
A('s_waitcnt vmcnt(3)')
for j in range(4): A('ds_read_b128 %s, %s offset:%d' % (v(vK + 4 * j, 4), v(vA4 + j), L_K))
for i, gq in enumerate((vP0, vP0 + 4)): chk_tags(i, gq, vY + i)
A('v_or_b32 %s, %s, %s' % (v(vY), v(vY), v(vY + 1)))
A('v_cmp_ne_u32 vcc, 0, %s' % v(vY))
A('s_cbranch_vccnz L_E1_RETRY')
A('L_E1_OK:')
stamp(15)
A('v_pk_add_f32 %s, %s, %s' % (v(vP0, 2), v(vP0, 2), v(vP0 + 4, 2)))
A('s_cmp_lg_u32 %s, 0' % sROLE)
A('v_permlane32_swap_b32 %s, %s' % (v(vP0), v(vP0 + 1)))
A('v_add_f32 %s, %s, %s' % (v(vP0), v(vP0), v(vP0 + 1)))
cvt(vP0, vP0, vP0)
A('ds_write_b16 %s, %s offset:%d' % (v(vT[1]), v(vP0), L_Q))
A('s_cbranch_scc1 L_NT1')
tone(); tone()
A('L_NT1:')
bar()
for j in range(4): A('ds_read_b128 %s, %s offset:%d' % (v(vFB + 4 * j, 4), v(oFR), L_Q + 64 * j))
A('ds_read_b32 %s, %s offset:%d' % (v(vFA + 8), v(vZ), L_FLG))
stamp(6)
A('v_mov_b32 %s, 0x%x' % (v(vCN), SCALE))
for j in range(4):
    A('s_waitcnt lgkmcnt(%d)' % (4 - j))
    mfma(vACC, vK + 4 * j, vFB + 4 * j, j == 0)
A('s_waitcnt lgkmcnt(0)')
A('v_readfirstlane_b32 %s, %s' % (sFAST, v(vFA + 8)))
S = vY
for h in range(2): cvt(vT[4 + h], vACC + 2 * h, vACC + 2 * h + 1)
for h in range(2): lo16(S + 2 * h, vT[4 + h]); hi16(S + 2 * h + 1, vT[4 + h])
for i in range(4): A('v_mul_f32 %s, %s, %s' % (v(S + i), v(vCN), v(S + i)))
for h in range(2): cvt(vT[4 + h], S + 2 * h, S + 2 * h + 1)
for h in range(2): lo16(S + 2 * h, vT[4 + h]); hi16(S + 2 * h + 1, vT[4 + h])
A('v_max3_f32 %s, %s, %s, %s' % (v(vT[4]), v(S), v(S + 1), v(S + 2)))
A('v_max_f32 %s, %s, %s' % (v(vT[4]), v(vT[4]), v(S + 3)))
allred_rows(vT[4], vT[5], 'max')
A('ds_write_b32 %s, %s offset:%d' % (v(vT[3]), v(vT[4]), L_MAX))
A('s_cmp_lg_u32 %s, 0' % sROLE)
bar()
A('ds_read_b128 %s, %s offset:%d' % (v(vFA, 4), v(vT[7]), L_MAX))
A('ds_read_b128 %s, %s offset:%d' % (v(vFA + 4, 4), v(vT[7]), L_MAX + 16))
A('s_cbranch_scc1 L_NT2')
tone(); tone()
A('L_NT2:')
A('s_waitcnt lgkmcnt(0)')
A('v_max3_f32 %s, %s, %s, %s' % (v(vT[4]), v(vFA), v(vFA + 1), v(vFA + 2)))
A('v_max3_f32 %s, %s, %s, %s' % (v(vT[5]), v(vFA + 3), v(vFA + 4), v(vFA + 5)))
A('v_max3_f32 %s, %s, %s, %s' % (v(vT[4]), v(vT[4]), v(vFA + 6), v(vFA + 7)))
A('v_max_f32 %s, %s, %s' % (v(vT[4]), v(vT[4]), v(vT[5])))
A('v_mul_f32 %s, %s, %s' % (v(vCN), sLG, v(vT[4])))
for i in range(4): A('v_fma_f32 %s, %s, %s, -%s' % (v(S + i), v(S + i), sLG, v(vCN)))
for i in range(4): A('v_exp_f32 %s, %s' % (v(S + i), v(S + i)))
A('v_lshrrev_b32 %s, 2, %s' % (v(vCN + 1), v(vT[2])))
cvt(S + 4, S, S + 1)
A('v_add_f32 %s, %s, %s' % (v(vT[4]), v(S), v(S + 1)))
cvt(S + 5, S + 2, S + 3)
A('v_add_f32 %s, %s, %s' % (v(vT[5]), v(S + 2), v(S + 3)))
A('ds_write_b64 %s, %s offset:%d' % (v(vT[8]), v(S + 4, 2), L_P))
A('ds_bpermute_b32 %s, %s, %s' % (v(vP1), v(vCN + 1), v(vCN)))
A('v_add_f32 %s, %s, %s' % (v(vT[4]), v(vT[4]), v(vT[5])))
allred_rows(vT[4], vT[5], 'add')
A('ds_write_b32 %s, %s offset:%d' % (v(vT[3]), v(vT[4]), L_LS))
stamp(7)
A('s_cmp_eq_u32 %s, 0' % sROLE)
A('s_waitcnt vmcnt(5)')
A('s_cbranch_scc1 L_WV')
A('s_waitcnt vmcnt(1)')
A('L_WV:')
bar()
A('ds_read_b128 %s, %s offset:%d' % (v(vY, 4), v(vT[9]), L_LS))
A('ds_read_b128 %s, %s offset:%d' % (v(vY + 4, 4), v(vT[9]), L_LS + 16))
for b in range(4):
    A('ds_read_b128 %s, %s offset:%d' % (v(vFB + 4 * b, 4), v(oV), L_P + 64 * b))
    A('ds_read_b64_tr_b16 %s, %s offset:%d' % (v(vFA + 4 * b, 2), v(oTR), L_V + 8192 * b))
    A('ds_read_b64_tr_b16 %s, %s offset:%d' % (v(vFA + 4 * b + 2, 2), v(oTR), L_V + 8192 * b + 1024))
A('s_lshl3_add_u32 %s, %s, %s' % (sA, sIDX, sW))
A('s_addk_i32 %s, %d' % (sA, WS_E2 // 4096))
A('s_lshl_b32 %s, %s, 12' % (sA, sA))
A('s_waitcnt lgkmcnt(12)')
A('v_pk_add_f32 %s, %s, %s' % (v(vY, 2), v(vY, 2), v(vY + 2, 2)))
A('v_pk_add_f32 %s, %s, %s' % (v(vY + 4, 2), v(vY + 4, 2), v(vY + 6, 2)))
A('v_pk_add_f32 %s, %s, %s' % (v(vY, 2), v(vY, 2), v(vY + 4, 2)))
A('v_add_f32 %s, %s, %s' % (v(vY), v(vY), v(vY + 1)))
for b in range(4):
    A('s_waitcnt lgkmcnt(%d)' % (9 - 3 * b))
    mfma(vACC, vFB + 4 * b, vFA + 4 * b, b == 0)
A('v_log_f32 %s, %s' % (v(vG2 + 2), v(vY)))
A('v_rcp_f32 %s, %s' % (v(vY), v(vY)))
A('v_lshl_or_b32 %s, %s, 3, %s' % (v(vT[3]), v(vPI), v(vCC)))
A('v_add_f32 %s, %s, %s' % (v(vG2 + 2), v(vG2 + 2), v(vP1)))
A('v_lshl_or_b32 %s, %s, 4, %s' % (v(vT[3]), v(vWv), v(vT[3])))
A('v_lshlrev_b32 %s, 1, %s' % (v(vT[3]), v(vT[3])))
A('v_mul_f32 %s, %s, %s' % (v(vG2), v(vACC), v(vY)))
movdpp(vG2 + 1, vG2, 'row_ror:8')
set_exec(0x00ff00ff00ff00ff)
st_grp(vG2, vT[10], sKV)
set_exec(FULL)
stamp(8)
A('s_cmp_eq_u32 %s, 1' % sROLE)
A('s_cbranch_scc1 L_GT')
A('s_cmp_eq_u32 %s, 2' % sROLE)
A('s_cbranch_scc1 L_FIN0')
g4 = [vP0, vP0 + 4, vP1, vP1 + 4]
l4 = [ldws(g4[i], oX, sA, 1024 * i) for i in range(4)]
for l in l4: A(l)
A('v_add_u32 %s, 0x%x, %s' % (v(vT[1]), L_W, v(oTR)))
A('s_lshl3_add_u32 %s, %s, %s' % (sKV, sRB, sW))
A('s_lshl_b32 %s, %s, 5' % (sKV, sKV))
A('s_add_u32 %s, %s, %s' % (sKV, sKV, sIDX))
A('s_addk_i32 %s, %d' % (sKV, WS_E3 // 128))
A('s_lshl_b32 %s, %s, 7' % (sKV, sKV))
def lammax():
    A('v_max3_f32 %s, %s, %s, %s' % (v(vT[5]), v(g4[0] + 2), v(g4[1] + 2), v(g4[2] + 2)))
    A('v_max_f32 %s, %s, %s' % (v(vT[5]), v(vT[5]), v(g4[3] + 2)))
mpoll(l4, g4, chk_lam, first_in_flight=True, extra=lammax)
stamp(10)
dpp_add(vT[5], 8, 'max')
allred_rows(vT[5], vT[6], 'max')
for i in range(4): A('v_sub_f32 %s, %s, %s' % (v(g4[i] + 2), v(g4[i] + 2), v(vT[5])))
for i in range(4): A('v_exp_f32 %s, %s' % (v(g4[i] + 2), v(g4[i] + 2)))
A('v_mul_f32 %s, %s, %s' % (v(vP0), v(vP0 + 2), v(vP0)))
A('v_mul_f32 %s, %s, %s' % (v(vP0 + 1), v(vP0 + 2), v(vP0 + 1)))
for i in range(1, 4):
    A('v_fmac_f32 %s, %s, %s' % (v(vP0), v(g4[i] + 2), v(g4[i])))
    A('v_fmac_f32 %s, %s, %s' % (v(vP0 + 1), v(g4[i] + 2), v(g4[i] + 1)))
    A('v_add_f32 %s, %s, %s' % (v(vP0 + 2), v(vP0 + 2), v(g4[i] + 2)))
A('v_mov_b32 %s, %s' % (v(vP0 + 3), v(vP0 + 2)))
A('v_permlane32_swap_b32 %s, %s' % (v(vP0), v(vP0 + 1)))
A('v_permlane32_swap_b32 %s, %s' % (v(vP0 + 2), v(vP0 + 3)))
A('v_add_f32 %s, %s, %s' % (v(vP0), v(vP0), v(vP0 + 1)))
A('v_add_f32 %s, %s, %s' % (v(vP0 + 2), v(vP0 + 2), v(vP0 + 3)))
A('v_mov_b32 %s, %s' % (v(vP0 + 1), v(vP0)))
A('v_mov_b32 %s, %s' % (v(vP0 + 3), v(vP0 + 2)))
A('v_permlane16_swap_b32 %s, %s' % (v(vP0), v(vP0 + 1)))
A('v_permlane16_swap_b32 %s, %s' % (v(vP0 + 2), v(vP0 + 3)))
A('v_add_f32 %s, %s, %s' % (v(vP0 + 2), v(vP0 + 2), v(vP0 + 3)))
A('v_add_f32 %s, %s, %s' % (v(vP0), v(vP0), v(vP0 + 1)))
dpp_add(vP0 + 2, 8); dpp_add(vP0, 8)
A('v_rcp_f32 %s, %s' % (v(vP0 + 2), v(vP0 + 2)))
A('v_mul_f32 %s, %s, %s' % (v(vP0), v(vP0), v(vP0 + 2)))
cvt(vP0, vP0, vP0)
A('ds_write_b16 %s, %s offset:%d' % (v(vT[3]), v(vP0), L_ACC))
bar()
stamp(9)
for b in range(4):
    A('ds_read_b128 %s, %s offset:%d' % (v(vFB + 4 * b, 4), v(vT[2]), L_ACC + 64 * b))
    A('ds_read_b64_tr_b16 %s, %s offset:%d' % (v(vW1 + 4 * b, 2), v(vT[1]), 8192 * b))
    A('ds_read_b64_tr_b16 %s, %s offset:%d' % (v(vW1 + 4 * b + 2, 2), v(vT[1]), 8192 * b + 1024))
for b in range(4):
    A('s_waitcnt lgkmcnt(%d)' % (9 - 3 * b))
    mfma(vACC, vFB + 4 * b, vW1 + 4 * b, b == 0)
A('s_cmp_eq_u32 %s, 0' % sRB)
movdpp(vG + 1, vACC, 'row_ror:8')
A('v_mov_b32 %s, %s' % (v(vG), v(vACC + 1)))
set_exec(0xff)
stws(vG, oX, sKV)
set_exec(FULL)
stamp(11)
A('s_cbranch_scc1 L_RED')
A('L_FIN0:')
fin()
A('L_END0:')
A('s_endpgm')
A('L_GT:')
a.hist = []
A('s_mul_i32 s%d, %s, 14' % (SRD_W2 + 2, W3)); A('s_mov_b32 s%d, %s' % (SRD_W2 + 3, W3))
A('s_barrier')
for i in range(4): tone()
A('s_lshl_b32 %s, %s, 5' % (sC, sW))
A('s_and_b32 %s, %s, 0x80' % (sD, sC))
A('s_lshl_b32 %s, %s, 1' % (sC, sC))
A('s_and_b32 %s, %s, 64' % (sC, sC))
A('s_or_b32 %s, %s, %s' % (sC, sC, sD))
A('v_xor_b32 %s, %s, %s' % (v(vT[5]), sC, v(oX)))
A('s_add_u32 %s, %s, %d' % (sC, sW, L_K // 2048))
A('s_lshl_b32 m0, %s, 11' % sC)
A('s_lshl3_add_u32 %s, %s, %s' % (sD, sIDX, sW))
A('s_lshl_b32 %s, %s, 11' % (sD, sD))
A('buffer_load_dwordx4 %s, %s, %s offen nt lds' % (v(vT[5]), srd(SRD_W2), sD))
A('v_xor_b32 %s, 32, %s' % (v(vT[5]), v(vT[5])))
A('buffer_load_dwordx4 %s, %s, %s offen offset:1024 nt lds' % (v(vT[5]), srd(SRD_W2), sD))
A('s_branch L_ROLE_G')
A('L_PAGE0_END:')
if not STAMPS:
    a.raw('.if (L_PAGE0_END - %s_kernel) > 4096\n.error "page 0 overflow"\n.endif' % NAME)
    a.raw('.fill (4096 - (L_PAGE0_END - %s_kernel)) / 4, 4, 0xbf800000' % NAME)
A('L_ROLE_G:')
a.hist = []
A('s_lshl_b32 %s, %s, 12' % (sJ := 's28', sIDX))
A('s_add_u32 %s, %s, 0x%x' % (sJ, sJ, WS_E4))
A('v_lshlrev_b32 %s, 4, v0' % v(vT[5]))
A('v_and_b32 %s, 0xff0, %s' % (v(vT[5]), v(vT[5])))
A(ldws(vCS, vT[5], sJ))
A('s_lshl_b32 %s, %s, 8' % (sC, sRB))
A('buffer_load_ushort %s, %s, %s, %s offen' % (v(vXR), v(vT[3]), srd(SRD_X), sC))
A('s_and_b32 %s, %s, 1' % (sE, sW))
A('s_lshl_b32 %s, %s, 2' % (sE, sE))
A('s_lshr_b32 %s, %s, 1' % (sD, sW))
A('s_or_b32 %s, %s, %s' % (sC, sE, sD))
A('s_xor_b32 %s, %s, %s' % (sC, sC, sW))
A('s_lshl_b32 %s, %s, 5' % (sC, sC))
A('v_xor_b32 %s, %s, %s' % (v(vT[1]), sC, v(oTR)))
A('v_add_u32 %s, 0x%x, %s' % (v(vT[1]), L_W, v(vT[1])))
sDST = 's33'
A('s_andn2_b32 %s, %s, 3' % (sDST, sIDX))
A('s_add_u32 %s, %s, %s' % (sDST, sDST, sD))
A('s_lshl_b32 %s, %s, 12' % (sDST, sDST))
A('s_add_u32 %s, %s, 0x%x' % (sDST, sDST, WS_E4))
A('s_add_u32 %s, %s, %s' % (sE, sE, sRB))
A('v_lshrrev_b32 %s, 1, %s' % (v(vT[4]), v(vCC)))
A('v_lshlrev_b32 %s, 8, %s' % (v(vT[4]), v(vT[4])))
A('v_and_b32 %s, 1, %s' % (v(vT[6]), v(vL)))
A('v_lshl_or_b32 %s, %s, 4, %s' % (v(vT[4]), v(vT[6]), v(vT[4])))
A('v_lshl_add_u32 %s, %s, 5, %s' % (v(vT[4]), sE, v(vT[4])))
A('s_lshl_b32 %s, %s, 4' % (sE, sE))
A('s_add_u32 %s, %s, 2048' % (sE, sE))
A('v_mov_b32 %s, %s' % (v(vT[7]), sE))
A('v_cmp_eq_u32 s[10:11], 8, %s' % v(vL))
A('v_and_b32 %s, 8, %s' % (v(vT[6]), v(vL)))
A('v_cmp_ne_u32 %s, 0, %s' % (sMSK, v(vT[6])))
A('v_cndmask_b32 %s, %s, %s, s[10:11]' % (v(oFR), v(vT[4]), v(vT[7])))
A('s_add_u32 %s, %s, 1024' % (sE, sDST))
A('v_and_b32 %s, 14, %s' % (v(oWQ), v(vL)))
A('v_lshlrev_b32 %s, 3, %s' % (v(oWQ), v(oWQ)))
A('s_lshl3_add_u32 %s, %s, %s' % (sA, sRB, sW))
A('s_addk_i32 %s, %d' % (sA, WS_E3 // 4096))
A('s_lshl_b32 %s, %s, 12' % (sA, sA))
A('s_lshl_b32 %s, %s, 16' % (sB, sW))
A('s_lshl_b32 %s, %s, 7' % (sC, sIDX))
A('s_add_u32 %s, %s, %s' % (sB, sB, sC))
A('s_add_u32 %s, %s, 0x%x' % (sB, sB, WS_E5))
A('v_lshl_or_b32 %s, %s, 14, %s' % (v(oV), v(vROW), v(oW2)))
A('v_bfe_u32 %s, %s, 3, 1' % (v(vT[6]), v(vL)))
A('v_lshl_or_b32 %s, %s, 1, %s' % (v(vT[6]), v(vROW), v(vT[6])))
A('v_bfe_u32 %s, %s, 2, 1' % (v(vT[7]), v(vL)))
A('v_and_b32 %s, 3, %s' % (v(oK), v(vT[6])))
A('v_lshl_or_b32 %s, %s, 2, %s' % (v(oK), v(vT[7]), v(oK)))
A('v_lshl_or_b32 %s, %s, 3, %s' % (v(vT[6]), v(vT[7]), v(vT[6])))
A('v_lshlrev_b32 %s, 2, %s' % (v(vT[7]), v(vWv)))
A('v_xor_b32 %s, %s, %s' % (v(oK), v(oK), v(vT[7])))
A('v_lshlrev_b32 %s, 5, %s' % (v(oK), v(oK)))
A('v_lshl_or_b32 %s, %s, 10, %s' % (v(oK), v(vT[6]), v(oK)))
A('v_and_b32 %s, 3, %s' % (v(vT[6]), v(vL)))
A('v_lshl_or_b32 %s, %s, 3, %s' % (v(oK), v(vT[6]), v(oK)))
A('v_cmp_eq_u32 s[98:99], 1, %s' % v(vROW))
for i in range(4): A('v_mov_b32 %s, %s' % (v(vA4 + i), sONE))
A('s_waitcnt vmcnt(0)')
A('s_barrier')
stamp(9)
for l in l4: A(l)
for b in range(4):
    A('ds_read_b64_tr_b16 %s, %s offset:%d' % (v(vW1 + 4 * b, 2), v(vT[1]), 8192 * b))
    A('ds_read_b64_tr_b16 %s, %s offset:%d' % (v(vW1 + 4 * b + 2, 2), v(vT[1]), 8192 * b + 1024))
for t4 in range(4):
    if t4: A('v_xor_b32 %s, %d, %s' % (v(vT[6]), 32 * t4, v(oK)))
    A('ds_read_b64_tr_b16 %s, %s offset:%d' % (v(vW2 + 2 * t4, 2), v(vT[6] if t4 else oK), L_K))
lo16(vXR, vXR)
A('s_waitcnt lgkmcnt(0)')
for b in range(4): mfma(vACC, vA4, vW1 + 4 * b, b == 0)
A('v_mov_b32 %s, %s' % (v(vG), v(vACC)))
movdpp(vG + 1, vACC, 'row_ror:8')
set_exec(0xff)
st_grp(vG, vT[4], sE)
set_exec(FULL)
stamp(10)
mpoll(l4, g4, chk_tags, first_in_flight=True)
stamp(11)
A('v_pk_add_f32 %s, %s, %s' % (v(vP0, 2), v(vP0, 2), v(vP0 + 4, 2)))
A('v_pk_add_f32 %s, %s, %s' % (v(vP1, 2), v(vP1, 2), v(vP1 + 4, 2)))
A('v_pk_add_f32 %s, %s, %s' % (v(vP0, 2), v(vP0, 2), v(vP1, 2)))
red8(vP0)
resid1(vP0, vXR)
A('ds_write_b16 %s, %s offset:%d' % (v(vT[3]), v(vP0), L_ACC))
bar()
for b in range(4): A('ds_read_b128 %s, %s offset:%d' % (v(vFB + 4 * b, 4), v(vT[2]), L_ACC + 64 * b))
A('s_bitcmp1_b32 %s, 0' % sW)
A('s_cbranch_scc1 L_ST_UP')
for b in range(4):
    A('s_waitcnt lgkmcnt(%d)' % (3 - b))
    mfma(vACC, vFB + 4 * b, vW1 + 4 * b, b == 0)
    mfma(vY, vFB + 4 * b, vFB + 4 * b, b == 0)
A('s_branch L_ST_GO')
A('L_ST_UP:')
a.hist = []
for b in range(4):
    A('s_waitcnt lgkmcnt(%d)' % (3 - b))
    mfma(vACC, vFB + 4 * b, vW1 + 4 * b, b == 0)
    mfma(vY, vFB + 4 * b, vA4, b == 0)
A('L_ST_GO:')
movdpp(vG + 1, vACC, 'row_ror:8')
A('v_cndmask_b32 %s, %s, %s, s[10:11]' % (v(vG), v(vACC + 1), v(vY)))
set_exec(0x1ff)
st_grp(vG, oFR, sDST)
set_exec(FULL)
stamp(12)
mpoll([ldws(vP0, oX, sJ), ldws(vP0 + 4, oWQ, sJ, 2048), ldws(vCS, oX, sJ, 1024)], [vP0, vP0 + 4, vCS], chk_tags)
stamp(13)
PR = ((vP0 + 4, vP0 + 5), (vP0, vP0 + 2), (vP0 + 1, vP0 + 3), (vCS, vCS + 2), (vCS + 1, vCS + 3))
for r, d in PR: dpp(r, r, 'quad_perm:[2,3,0,1]')
for r, d in PR: A('v_add_f32_dpp %s, %s, %s row_shr:4 row_mask:0xf bank_mask:0xa' % (v(d), v(r), v(r)))
for r, d in PR: A('v_add_f32_dpp %s, %s, %s row_shl:4 row_mask:0xf bank_mask:0x5' % (v(d), v(r), v(r)))
movdpp(vP0 + 4, vP0 + 5, 'row_ror:8')
A('v_cndmask_b32 %s, %s, %s, %s' % (v(vP0 + 6), v(vP0 + 4), v(vP0 + 5), sMSK))
A('v_cndmask_b32 %s, %s, %s, %s' % (v(vP0 + 7), v(vP0 + 5), v(vP0 + 4), sMSK))
ln_stats(vP0 + 6, vP0 + 7, vT[5], vT[6], vT[7])
for i in range(2): A('v_fma_f32 %s, -%s, %s, %s' % (v(vP0 + i), v(vT[5]), v(vCS + 2 + i), v(vP0 + 2 + i)))
for i in range(2): A('v_mul_f32 %s, %s, %s' % (v(vP0 + i), v(vP0 + i), v(vT[6])))
cvt(vT[7], vP0, vP0 + 1)
lo16(vP0, vT[7]); hi16(vP0 + 1, vT[7])
A('v_max_f32 %s, 0, %s' % (v(vP0 + 2), v(vP0)))
A('v_max_f32 %s, 0, %s' % (v(vP0 + 3), v(vP0 + 1)))
A('v_cndmask_b32 %s, %s, %s, %s' % (v(vP0), v(vP0 + 2), v(vP0), sMSK))
A('v_cndmask_b32 %s, %s, %s, %s' % (v(vP0 + 1), v(vP0 + 3), v(vP0 + 1), sMSK))
dpp(vP0, vP0, 'row_ror:8', 'mul'); dpp(vP0 + 1, vP0 + 1, 'row_ror:8', 'mul')
cvt(vT[7], vP0, vP0 + 1)
movdpp(vX4, vT[7], 'quad_perm:[0,0,2,2]'); movdpp(vX4 + 1, vT[7], 'quad_perm:[1,1,3,3]')
for t4 in range(4):
    A('v_mfma_f32_16x16x16_bf16 %s, %s, %s, 0' % (v(vFA + 4 * t4, 4), v(vX4, 2), v(vW2 + 2 * t4, 2)))
A('v_cndmask_b32 %s, %s, %s, s[98:99]' % (v(vG), v(vFA), v(vFA + 4)))
A('s_mov_b32 exec_lo, 0')
A('v_mov_b32 %s, %s' % (v(vG), v(vFA + 8)))
A('s_mov_b32 exec_hi, %s' % sHI)
A('v_mov_b32 %s, %s' % (v(vG), v(vFA + 12)))
set_exec(FULL)
movdpp(vG + 1, vG, 'row_ror:8')
set_exec(0x00ff00ff00ff00ff)
stws(vG, oV, sB)
set_exec(FULL)
stamp(14)
fin()
A('L_RED:')
a.hist = []
A('s_load_dwordx2 s[20:21], s[0:1], 72')
A('s_mov_b64 s[22:23], s[%d:%d]' % (SRD_X + 2, SRD_X + 3))
A('v_lshlrev_b32 %s, 4, v0' % v(vT[4]))
A('v_and_b32 %s, 0xff0, %s' % (v(vT[0]), v(vT[4])))
A('s_add_u32 %s, %s, %d' % (sA, sIDX, WS_E3 // 4096))
A('s_lshl_b32 %s, %s, 12' % (sA, sA))
A('v_lshlrev_b32 %s, 1, %s' % (v(vT[1]), v(vL15)))
A('s_lshl_b32 %s, %s, 5' % (sD, sIDX))
A('buffer_load_ushort %s, %s, %s, %s offen' % (v(vX4), v(vT[1]), srd(SRD_X), sD))
A('v_lshl_or_b32 %s, %s, 3, %s' % (v(vT[2]), v(vPI), v(vCC)))
A('v_lshl_or_b32 %s, %s, 3, %s' % (v(vT[2]), v(vT[2]), v(vWv)))
A('v_lshlrev_b32 %s, 2, %s' % (v(vT[2]), v(vT[2])))
A('v_lshlrev_b32 %s, 5, %s' % (v(vT[3]), v(vL15)))
A('v_lshl_or_b32 %s, %s, 3, %s' % (v(vT[3]), v(vROW), v(vT[3])))
A('s_add_u32 %s, %s, %d' % (sB, sIDX, WS_E5 // 16384))
A('s_lshl_b32 %s, %s, 14' % (sB, sB))
A('s_cmp_lt_u32 %s, 6' % sW)
A('s_cselect_b32 %s, %s, 0' % (sC, s8K))
A('s_cselect_b32 %s, 1.0, 0' % sE)
A('s_add_u32 %s, %s, %s' % (sC, sC, sB))
mpoll([ldws(vP0, vT[0], sA)], [vP0], chk_tags)
red8(vP0)
A('ds_write_b32 %s, %s offset:%d' % (v(vT[2]), v(vP0), L_R1))
lo16(vX4, vX4)
bar()
A('ds_read_b64 %s, %s offset:%d' % (v(vP1, 2), v(vT[3]), L_R1))
A('s_waitcnt lgkmcnt(0)')
A('v_add_f32 %s, %s, %s' % (v(vP1), v(vP1), v(vP1 + 1)))
allred_rows(vP1, vP1 + 1, 'add', (16,))
resid1(vP1, vX4)
lo16(vX4, vP1)
stamp(12)
mpoll([ldws(vP0, vT[4], sB), ldws(vP0 + 4, vT[4], sC)], [vP0, vP0 + 4], chk_tags)
stamp(13)
A('s_cmp_lt_u32 %s, 6' % sW)
A('s_cbranch_scc0 L_R_ONE')
A('v_pk_add_f32 %s, %s, %s' % (v(vP0, 2), v(vP0, 2), v(vP0 + 4, 2)))
A('L_R_ONE:')
red8(vP0)
A('ds_write_b32 %s, %s offset:%d' % (v(vT[2]), v(vP0), L_R2))
bar()
A('s_cmp_lg_u32 %s, 0' % sW)
A('s_cbranch_scc1 L_FIN')
A('ds_read_b64 %s, %s offset:%d' % (v(vP0, 2), v(vT[3]), L_R2))
A('s_waitcnt lgkmcnt(0)')
A('v_add_f32 %s, %s, %s' % (v(vP0), v(vP0), v(vP0 + 1)))
allred_rows(vP0, vP0 + 1, 'add')
resid1(vP0, vX4)
set_exec(0xffff)
A('buffer_store_short %s, %s, %s, %s offen' % (v(vP0), v(vT[1]), SRD_OUT, sD))
A('s_cmp_lg_u32 %s, 0' % sIDX)
A('s_cbranch_scc1 L_NOEP')
set_exec(1)
A('buffer_store_dword %s, %s, %s, 0 offen offset:%d' % (v(vG + 2), v(vT[1]), SRD_WS, WS_EPOCH))
if DIAG >= 0:
    stamp(14)
    A('s_waitcnt lgkmcnt(0)')
    A('s_sub_u32 s68, s66, s64')
    A('s_lshl_b32 s68, s68, 3')
    A('s_min_u32 s68, s68, 20000')
    A('s_memrealtime s[70:71]')
    A('s_waitcnt lgkmcnt(0)')
    A('L_DG:')
    A('s_memrealtime s[72:73]')
    A('s_waitcnt lgkmcnt(0)')
    A('s_sub_u32 s69, s72, s70')
    A('s_cmp_lt_u32 s69, s68')
    A('s_cbranch_scc1 L_DG')
A('L_NOEP:')
set_exec(FULL)
if DIAG < 0: stamp(14)
A('L_FIN:')
if STAMPS:
    A('s_waitcnt lgkmcnt(0)')
    A('v_mov_b32 %s, 0' % v(vT[8]))
    for i in range(16): A('v_writelane_b32 %s, s%d, %d' % (v(vT[8]), 64 + 2 * i, i))
    A('s_lshl_b32 %s, s2, 9' % sB)
    A('s_lshl_b32 %s, %s, 6' % (sC, sW))
    A('s_add_u32 %s, %s, %s' % (sB, sB, sC))
    A('s_add_u32 %s, %s, 0x%x' % (sB, sB, WS_ST))
    A('v_lshlrev_b32 %s, 2, %s' % (v(vT[9]), v(vL)))
    set_exec(0xffff)
    A('buffer_store_dword %s, %s, %s, %s offen' % (v(vT[8]), v(vT[9]), SRD_WS, sB))
A('s_endpgm')
A('L_E1_RETRY:')
a.hist = []
A('s_mov_b32 %s, 0x%x' % (sC, (-E1_FS if NOFAST else E1_FS) & 0xffffffff))
def flip():
    A('s_add_u32 %s, %s, %s' % (sA, sA, sC))
    A('s_add_u32 %s, %s, %s' % (sB, sB, sC))
    A('s_sub_u32 %s, 0, %s' % (sC, sC))
mpoll(e1l, [vP0, vP0 + 4], chk_tags, each=flip)
A('s_branch L_E1_OK')
a.raw('.p2align 12, 0')
nv = (NVGPR + 7) // 8 * 8
a.raw('''.section .rodata,"a"
.p2align 6
.amdhsa_kernel %s_kernel
  .amdhsa_next_free_vgpr %d
  .amdhsa_next_free_sgpr 102
  .amdhsa_accum_offset %d
  .amdhsa_group_segment_fixed_size 0
  .amdhsa_kernarg_size 96
  .amdhsa_user_sgpr_count 2
  .amdhsa_user_sgpr_kernarg_segment_ptr 1
  .amdhsa_system_sgpr_workgroup_id_x 1
  .amdhsa_float_denorm_mode_32 3
.end_amdhsa_kernel''' % (NAME, nv, nv))
open(OUT, 'w').write(a.text())
print('wrote', OUT, 'vgprs', NVGPR)
```

```python
import sys
from asmlib import Asm

NAME = 'sequential_preLN__sliding_block_cached__glu_gated_reglu__decode'
STAMPS = '--stamps' in sys.argv
NOFAST = '--nofast' in sys.argv
def OPT(name, d=0):
    for a_ in sys.argv:
        if a_.startswith('--%s=' % name): return int(a_.split('=')[1])
    return d
LS3 = OPT('ls3', 128); LS5 = OPT('ls5', 128); NC = OPT('nc', 1)
GD = OPT('gd', 0); GS6 = OPT('gs6', 0)
FSLEEP = OPT('fsleep', 2); PF = OPT('pf', 0)
OUT = [a for a in sys.argv[1:] if not a.startswith('--')]
OUT = OUT[0] if OUT else 'cdna_kernels/%s.s' % NAME

WS_EPOCH = 0
WS_FL = 0x8000
WS_E1 = 0x10000; E1_K = 4352; E1_G = 4 * E1_K; E1_FS = 0x24000
WS_E3 = 0x1000000
WS_E4 = 0x80000
WS_E2 = 0x100000
WS_E5 = 0x4000000
WS_ST = 0x500000
WS_SIZE = 0x8000000
QS = 272
L_QACC = 0; L_Q = 2048; L_P = L_Q + 4 * QS
L_MAX = L_P + 4 * QS; L_LS = L_MAX + 128
L_R1 = L_LS + 128; L_R2 = L_R1 + 512; L_ACC = L_R2 + 512
L_FLG = L_ACC + 256
L_V = 8192; L_K = L_V + 32768; L_W = L_K + 32768
LDS_BYTES = L_W + 32768
LOG2E = 0x3fb8aa3b; SCALE = 0x3db504f3; EPS = 0x3727c5ac; INV512 = 0x3b000000; ONES = 0x3f803f80
SPIN = 1 << 21

a = Asm(); A = a
sW, sG, sR = 's3', 's4', 's5'
sTAG = 's[6:7]'; sTA, sTB = 's6', 's7'
sMSK = 's[8:9]'
sSELLO, sSELHI = 's12', 's13'
sCNT = 's14'; sONE = 's15'
SRD_WS = 's[16:19]'; SRD_OUT = 's[20:23]'
sA, sB, sC, sD = 's24', 's25', 's26', 's27'
sKV = 's28'; sJ = 's29'; sSTEP = 's30'; sIDX = 's31'; sRB = 's32'; sM0 = 's33'
sXT = 's34'; sROLE = 's35'
SRD_X, SRD_WQ, SRD_K, SRD_V, SRD_W2 = 36, 40, 44, 48, 52
pWO, pWG, pWU = 56, 60, 62
sHI = 's58'; sE = 's59'; sFAST = 's96'; sF = 's97'; sVM = 's98'; sVS = 's99'; s8K = 's100'; sLG = 's101'
MS = ['s[40:41]', 's[42:43]', 's[44:45]', 's[46:47]']
def srd(n): return 's[%d:%d]' % (n, n + 3)
W3 = 's%d' % (SRD_X + 3)

class V:
    n = 0
    @classmethod
    def alloc(cls, k=1, align=1):
        cls.n = (cls.n + align - 1) // align * align
        r = cls.n; cls.n += k
        return r
def v(r, k=1): return 'v%d' % r if k == 1 else 'v[%d:%d]' % (r, r + k - 1)
vTID = V.alloc(); vL = V.alloc(); vZ = V.alloc()
vWv = V.alloc(); vPI = V.alloc(); vL15 = V.alloc(); vROW = V.alloc(); vCC = V.alloc()
vT = [V.alloc() for _ in range(12)]
oX, oXR, oWQ, oK, oV, oW2, oTR, oFR = [V.alloc() for _ in range(8)]
vK = V.alloc(16, 4); vW1 = vK
vFB = V.alloc(16, 4); vFA = V.alloc(16, 4)
vXF = vFB; vWQa = vFB + 4; vWQb = vFB + 8
vW2 = V.alloc(8, 4); vY = V.alloc(8, 4); vACC = V.alloc(4, 4)
vG = V.alloc(4, 4); vG2 = V.alloc(4, 4)
vP0 = V.alloc(8, 4); vP1 = V.alloc(8, 4)
vCS = V.alloc(4, 4); vA4 = V.alloc(4, 4); vCN = V.alloc(4, 4)
vXR = V.alloc(2, 2); vX4 = V.alloc(2, 2); vWA = V.alloc(2, 2); oVD = V.alloc(); vDUM = V.alloc()
NVGPR = V.n

DIAG = OPT('diag', -1); DG = OPT('dg', 0)
def stamp(i):
    if STAMPS: A('s_memrealtime s[%d:%d]' % (64 + 2 * i, 65 + 2 * i))
    if DIAG >= 0 and i == 0: A('s_memrealtime s[64:65]')
    if DIAG >= 0 and i == DIAG: A('s_memrealtime s[66:67]')
lab = [0]
def newlab(p='L'):
    lab[0] += 1
    return '%s%d' % (p, lab[0])
def dpp(d, s, mod, op='add'):
    A('v_%s_f32_dpp %s, %s, %s %s row_mask:0xf bank_mask:0xf' % (op, v(d), v(s), v(s), mod))
def dpp_add(d, ror, op='add'): dpp(d, d, 'row_ror:%d' % ror, op)
def movdpp(d, s, mod): A('v_mov_b32_dpp %s, %s %s row_mask:0xf bank_mask:0xf' % (v(d), v(s), mod))
def allred_rows(x, t, op='add', which=(16, 32)):
    for wdt in which:
        A('v_mov_b32 %s, %s' % (v(t), v(x)))
        A('v_permlane%d_swap_b32 %s, %s' % (wdt, v(x), v(t)))
        A('v_%s_f32 %s, %s, %s' % (op, v(x), v(x), v(t)))
def hi16(d, s): A('v_and_b32 %s, %s, %s' % (v(d), sHI, v(s)))
def lo16(d, s): A('v_lshlrev_b32 %s, 16, %s' % (v(d), v(s)))
def cvt(d, x, y): A('v_cvt_pk_bf16_f32 %s, %s, %s' % (v(d), v(x), v(y)))
def bf16r(d, s): cvt(d, s, s); hi16(d, d)
def ln_stats(vsum, vsq, vm, vr, t):
    A('v_mul_f32 %s, 0x%x, %s' % (v(vsum), INV512, v(vsum)))
    A('v_mul_f32 %s, 0x%x, %s' % (v(vsq), INV512, v(vsq)))
    A('v_fma_f32 %s, -%s, %s, %s' % (v(vsq), v(vsum), v(vsum), v(vsq)))
    A('v_max_f32 %s, 0, %s' % (v(vsq), v(vsq)))
    cvt(t, vsum, vsq)
    lo16(vm, t); hi16(vr, t)
    A('v_add_f32 %s, 0x%x, %s' % (v(vr), EPS, v(vr)))
    bf16r(vr, vr)
    A('v_sqrt_f32 %s, %s' % (v(vr), v(vr)))
    bf16r(vr, vr)
    A('v_rcp_f32 %s, %s' % (v(vr), v(vr)))
FULL = (1 << 64) - 1
def set_exec(mask):
    lo, hi = mask & 0xffffffff, mask >> 32
    if mask == FULL: A('s_mov_b64 exec, -1')
    elif hi == 0 and lo <= 64: A('s_mov_b64 exec, %d' % lo)
    elif hi == 0 and lo < 0x80000000: A('s_mov_b64 exec, 0x%x' % lo)
    elif lo == hi:
        A('s_mov_b32 exec_lo, 0x%x' % lo); A('s_mov_b32 exec_hi, exec_lo')
    else: raise ValueError
def mpoll(loads, grans, check, first_in_flight=False, extra=None, each=None):
    top = newlab('P'); done = newlab('D'); chk = newlab('C')
    A('s_mov_b32 %s, %d' % (sCNT, SPIN))
    if not first_in_flight:
        for l in loads: A(l)
    A('s_branch %s' % chk)
    A('%s:' % top)
    if each: each()
    for i, l in enumerate(loads):
        sk = newlab('K')
        A('s_mov_b64 exec, %s' % MS[i])
        A('s_cbranch_execz %s' % sk)
        A(l)
        A('%s:' % sk)
    A('s_mov_b64 exec, -1')
    A('%s:' % chk)
    A('s_waitcnt vmcnt(0)')
    for i, gq in enumerate(grans): check(i, gq, vY + i)
    for i, gq in enumerate(grans): A('v_cmp_ne_u32 %s, 0, %s' % (MS[i], v(vY + i)))
    if extra: extra()
    A('s_sub_u32 %s, %s, 1' % (sCNT, sCNT))
    A('s_cbranch_scc1 %s' % done)
    A('s_or_b64 vcc, %s, %s' % (MS[0], MS[1 if len(grans) > 1 else 0]))
    for i in range(2, len(grans)): A('s_or_b64 vcc, vcc, %s' % MS[i])
    A('s_cbranch_scc1 %s' % top)
    A('%s:' % done)
def chk_tags(i, gq, t):
    A('v_xor_b32 %s, %s, %s' % (v(t), sTA, v(gq + 2)))
    A('v_xor_b32 %s, %s, %s' % (v(t + 4), sTB, v(gq + 3)))
    A('v_or_b32 %s, %s, %s' % (v(t), v(t), v(t + 4)))
def chk_lam(i, gq, t):
    A('v_xor_b32 %s, %s, %s' % (v(t), sTA, v(gq + 3)))
    A('v_xor_b32_dpp %s, %s, %s quad_perm:[1,0,3,2] row_mask:0xf bank_mask:0xf' % (v(t + 4), v(gq + 2), v(gq + 2)))
    A('v_or_b32 %s, %s, %s' % (v(t), v(t), v(t + 4)))
def ldws(dst, voff, soff, imm=0):
    return 'buffer_load_dwordx4 %s, %s, %s, %s offen%s sc1' % (v(dst, 4), v(voff), SRD_WS, soff, (' offset:%d' % imm) if imm else '')
def stws(src, voff, soff, sc1=True):
    A('buffer_store_dwordx4 %s, %s, %s, %s offen%s' % (v(src, 4), v(voff), SRD_WS, soff, ' sc1' if sc1 else ''))
def st_grp(src, voff, soff):
    l1 = newlab('S'); l2 = newlab('S')
    A('s_cmp_eq_u32 %s, 0' % sFAST)
    A('s_cbranch_scc1 %s' % l1)
    stws(src, voff, soff, False)
    A('s_branch %s' % l2)
    A('%s:' % l1)
    stws(src, voff, soff, True)
    A('%s:' % l2)
def red8(x):
    A('v_permlane32_swap_b32 %s, %s' % (v(x), v(x + 1)))
    A('v_add_f32 %s, %s, %s' % (v(x), v(x), v(x + 1)))
    allred_rows(x, x + 1, 'add', (16,))
    dpp_add(x, 8)
def resid1(x, base):
    bf16r(x, x)
    A('v_add_f32 %s, %s, %s' % (v(x), v(x), v(base)))
    cvt(x, x, x)
def bar():
    A('s_waitcnt lgkmcnt(0)')
    A('s_barrier')
def mfma(acc, x, y, first): A('v_mfma_f32_16x16x32_bf16 %s, %s, %s, %s' % (v(acc, 4), v(x, 4), v(y, 4), '0' if first else v(acc, 4)))
def kdma(i):
    if i: A('v_xor_b32 %s, 0x%x, %s' % (v(vT[11]), 64 * i, v(oK)))
    A('buffer_load_dwordx4 %s, %s, %s offen offset:%d nt lds' % (v(vT[11] if i else oK), srd(SRD_K), sVS, 1024 * i))
def vdma():
    A('s_mov_b32 m0, %s' % sVM)
    A('s_add_u32 %s, %s, %s' % (sVM, sVM, s8K))
    A('buffer_load_dwordx4 %s, %s, %s offen nt lds' % (v(oVD), srd(SRD_V), sVS))
    A('s_add_u32 %s, %s, %s' % (sVS, sVS, s8K))
def tone():
    A('s_mov_b32 m0, %s' % sM0)
    A('s_add_u32 %s, %s, %s' % (sM0, sM0, s8K))
    A('global_load_lds_dwordx4 %s, off nt' % v(vWA, 2))
    A('v_lshl_add_u64 %s, %s, 0, s[30:31]' % (v(vWA, 2), v(vWA, 2)))
def ddma():
    A('s_mul_i32 s%d, %s, 14' % (SRD_W2 + 2, W3)); A('s_mov_b32 s%d, %s' % (SRD_W2 + 3, W3))
    A('s_lshl_b32 %s, %s, 5' % (sC, sW))
    A('s_and_b32 %s, %s, 0x80' % (sD, sC))
    A('s_lshl_b32 %s, %s, 1' % (sC, sC))
    A('s_and_b32 %s, %s, 64' % (sC, sC))
    A('s_or_b32 %s, %s, %s' % (sC, sC, sD))
    A('v_xor_b32 %s, %s, %s' % (v(vT[11]), sC, v(oX)))
    A('s_add_u32 %s, %s, %d' % (sC, sW, L_K // 2048))
    A('s_lshl_b32 m0, %s, 11' % sC)
    A('s_lshl3_add_u32 %s, %s, %s' % (sD, sIDX, sW))
    A('s_lshl_b32 %s, %s, 11' % (sD, sD))
    A('buffer_load_dwordx4 %s, %s, %s offen nt lds' % (v(vT[11]), srd(SRD_W2), sD))
    A('v_xor_b32 %s, 32, %s' % (v(vT[11]), v(vT[11])))
    A('buffer_load_dwordx4 %s, %s, %s offen offset:1024 nt lds' % (v(vT[11]), srd(SRD_W2), sD))
def fin():
    if STAMPS: A('s_branch L_FIN')
    else: A('s_endpgm')

head = []
for l in open('cdna_kernels/%s.s.ref' % NAME).read().split('\n'):
    if not l.startswith(';'): break
    head.append('; @launch grid=(256,1,1) block=(512,1,1) lds=%d' % LDS_BYTES if l.startswith('; @launch') else l)
a.raw('\n'.join(head))
a.raw('.amdgcn_target "amdgcn-amd-amdhsa--gfx950"\n.text\n.globl %s_kernel\n.p2align 12\n.type %s_kernel,@function\n%s_kernel:' % (NAME, NAME, NAME))
sIDX = 's29'
A('s_load_dwordx2 s[%d:%d], s[0:1], 24' % (SRD_WQ, SRD_WQ + 1))
A('s_load_dwordx2 s[%d:%d], s[0:1], 0' % (SRD_X, SRD_X + 1))
A('s_load_dwordx2 s[16:17], s[0:1], 88')
A('s_load_dwordx2 s[%d:%d], s[0:1], 8' % (SRD_K, SRD_K + 1))
A('s_lshr_b32 %s, s2, 3' % sR)
A('s_cmp_ge_u32 %s, 32' % sR)
A('s_cbranch_scc1 L_END0')
def pf():
    A('s_getpc_b64 s[10:11]')
    A('s_and_b32 s10, s10, 0xfffff000')
    if PF == 3: A('s_addk_i32 s10, 4096')
    A('v_lshlrev_b32 %s, 3, v0' % v(vT[1]))
    A('global_load_dword %s, %s, s[10:11]' % (v(vDUM), v(vT[1])))
if PF == 1: pf()
A('v_readfirstlane_b32 %s, v0' % sW)
A('v_and_b32 %s, 63, v0' % v(vL))
A('s_and_b32 %s, s2, 7' % sG)
A('s_and_b32 %s, %s, 3' % (sRB, sR))
A('s_lshr_b32 %s, %s, 2' % (sE, sR))
if STAMPS:
    for i in range(16): A('s_mov_b64 s[%d:%d], 0' % (64 + 2 * i, 65 + 2 * i))
stamp(0)
A('v_lshrrev_b32 %s, 3, v0' % v(vT[0]))
A('v_and_b32 %s, 7, v0' % v(vCC))
A('v_lshlrev_b32 %s, 4, %s' % (v(oW2), v(vCC)))
A('v_lshl_or_b32 %s, %s, 14, %s' % (v(oWQ), v(vT[0]), v(oW2)))
A('s_lshl_b32 %s, %s, 20' % (sA, sRB))
A('s_lshl_b32 %s, %s, 10' % (sC, sG))
A('s_add_u32 %s, %s, %s' % (sA, sA, sC))
A('s_lshl_b32 %s, %s, 7' % (sC, sE))
A('s_add_u32 %s, %s, %s' % (sA, sA, sC))
A('s_movk_i32 %s, 8192' % s8K)
A('s_add_u32 %s, %s, %s' % (sB, sA, s8K))
A('s_mov_b32 %s, 0x20000' % W3)
A('s_lshl_b32 s%d, %s, 5' % (SRD_WQ + 2, W3)); A('s_mov_b32 s%d, %s' % (SRD_WQ + 3, W3))
A('s_movk_i32 s%d, 1024' % (SRD_X + 2))
A('v_lshlrev_b32 %s, 4, %s' % (v(oX), v(vL)))
A('v_lshlrev_b32 %s, 2, %s' % (v(oXR), v(vT[0])))
A('s_lshl_b32 %s, %s, 8' % (sD, sRB))
A('s_waitcnt lgkmcnt(0)')
A('buffer_load_dwordx4 %s, %s, %s, 0 offen' % (v(vXF, 4), v(oX), srd(SRD_X)))
A('buffer_load_dword %s, %s, %s, %s offen' % (v(vXR), v(oXR), srd(SRD_X), sD))
A('buffer_load_dwordx4 %s, %s, %s, %s offen nt' % (v(vWQa, 4), v(oWQ), srd(SRD_WQ), sA))
A('buffer_load_dwordx4 %s, %s, %s, %s offen nt' % (v(vWQb, 4), v(oWQ), srd(SRD_WQ), sB))
A('s_load_dwordx2 %s, s[16:17], %d' % (sTAG, WS_EPOCH))
A('s_lshr_b32 %s, %s, 6' % (sW, sW))
A('s_lshl_b32 s18, %s, 10' % W3); A('s_mov_b32 s19, %s' % W3)
A('s_add_u32 %s, %s, 8' % (sKV, sG))
A('s_lshl_b32 %s, %s, 12' % (sKV, sKV))
A('v_lshlrev_b32 %s, 3, v0' % v(vT[1]))
A('buffer_load_dword %s, %s, %s, %s offen sc1' % (v(vDUM), v(vT[1]), SRD_WS, sKV))
if PF >= 2: pf()
X2 = 1 if PF >= 2 else 0
A('v_lshrrev_b32 %s, 6, v0' % v(vWv))
A('v_and_b32 %s, 15, %s' % (v(vL15), v(vL)))
A('v_lshrrev_b32 %s, 4, %s' % (v(vROW), v(vL)))
A('s_lshl_b32 %s, %s, 8' % (sVS, sG))
A('s_add_u32 %s, %s, %s' % (sVS, sVS, sR))
A('s_addk_i32 %s, 224' % sVS)
A('s_lshl_b32 %s, %s, 15' % (sVS, sVS))
A('v_xor_b32 %s, %s, %s' % (v(vT[1]), v(vL15), v(vROW)))
A('v_lshlrev_b32 %s, 4, %s' % (v(vT[1]), v(vT[1])))
A('v_lshl_or_b32 %s, %s, 12, %s' % (v(vT[2]), v(vWv), v(vT[1])))
A('v_lshl_or_b32 %s, %s, 8, %s' % (v(oK), v(vROW), v(vT[2])))
A('v_lshl_or_b32 %s, %s, 8, %s' % (v(vA4), v(vL15), v(vT[2])))
A('s_lshl_b32 s%d, %s, 9' % (SRD_K + 2, W3)); A('s_mov_b32 s%d, %s' % (SRD_K + 3, W3))
A('s_add_u32 %s, %s, %d' % (sF, sW, L_K // 4096))
A('s_lshl_b32 m0, %s, 12' % sF)
A('s_barrier')
for i in range(3): kdma(i)
stamp(1)
A('s_load_dwordx2 s[%d:%d], s[0:1], 16' % (SRD_V, SRD_V + 1))
A('s_load_dwordx2 s[%d:%d], s[0:1], 32' % (pWO, pWO + 1))
A('s_load_dwordx4 s[%d:%d], s[0:1], 48' % (pWG, pWG + 3))
A('s_load_dwordx2 s[%d:%d], s[0:1], 64' % (SRD_W2, SRD_W2 + 1))
A('s_mov_b32 %s, 0x05040100' % sSELLO)
A('s_mov_b32 %s, 0x07060302' % sSELHI)
A('s_mov_b32 %s, 0x%x' % (sONE, ONES))
A('s_mov_b32 %s, 0xffff0000' % sHI)
A('s_mov_b32 %s, 0x%x' % (sLG, LOG2E))
A('s_mov_b64 s[%d:%d], s[%d:%d]' % (SRD_V + 2, SRD_V + 3, SRD_K + 2, SRD_K + 3))
A('v_lshrrev_b32 %s, 5, %s' % (v(vPI), v(vL)))
A('v_mov_b32 %s, 0' % v(vZ))
A('s_getreg_b32 %s, hwreg(HW_REG_XCC_ID, 0, 4)' % sXT)
A('v_lshlrev_b32 %s, 1, %s' % (v(vT[5]), v(oW2)))
A('v_lshl_or_b32 %s, %s, 3, %s' % (v(vT[5]), v(vROW), v(vT[5])))
A('v_lshl_or_b32 %s, %s, 8, %s' % (v(vT[5]), v(vWv), v(vT[5])))
A('v_and_b32 %s, 31, %s' % (v(vT[7]), v(vL)))
A('v_lshlrev_b32 %s, 3, %s' % (v(vT[6]), v(vT[7])))
A('v_lshl_or_b32 %s, %s, 10, %s' % (v(vT[6]), v(vPI), v(vT[6])))
A('v_lshrrev_b32 %s, 4, v0' % v(vT[2]))
A('v_and_b32 %s, 2, %s' % (v(vT[3]), v(vWv)))
A('v_lshl_or_b32 %s, %s, 1, %s' % (v(vT[3]), v(vT[3]), v(vROW)))
A('v_lshlrev_b32 %s, 1, %s' % (v(vT[3]), v(vT[3])))
A('v_xor_b32 %s, %s, %s' % (v(vT[3]), v(vT[3]), v(vL15)))
A('v_lshlrev_b32 %s, 4, %s' % (v(vCN), v(vT[3])))
A('v_lshl_or_b32 %s, %s, 8, %s' % (v(oVD), v(vT[2]), v(vCN)))
A('s_add_u32 %s, %s, %d' % (sVM, sW, L_V // 1024))
A('s_lshl_b32 %s, %s, 10' % (sVM, sVM))
A('s_add_u32 %s, %s, 0x%x' % (sM0, sVM, L_W - L_V))
A('s_add_u32 s10, s16, %s' % sKV)
A('s_addc_u32 s11, s17, 0')
A('s_lshl2_add_u32 %s, %s, %s' % (sKV, sR, sKV))
A('s_mul_i32 %s, %s, %d' % (sA, sG, E1_G))
A('s_add_u32 %s, %s, 0x%x' % (sA, sA, WS_E1))
A('s_mulk_i32 %s, %d' % (sD, E1_K // 256))
A('s_lshl_b32 %s, %s, 9' % (sC, sE))
A('s_add_u32 %s, %s, %s' % (sB, sD, sC))
A('s_add_u32 %s, %s, %s' % (sB, sB, sA))
A('s_mov_b32 s31, 0')
A('s_lshl2_add_u32 %s, %s, %s' % (sIDX, sG, sE))
A('s_mov_b32 %s, 0' % sROLE)
A('v_lshlrev_b32 %s, 7, %s' % (v(vT[8]), v(vL)))
A('s_waitcnt vmcnt(%d)' % (7 + X2))
stamp(2)
s0, s1, m_, r_, t_ = vT[0], vT[1], vT[9], vT[10], vT[4]
A('v_dot2_f32_bf16 %s, %s, %s, 0' % (v(s0), v(vXF), sONE))
A('v_dot2_f32_bf16 %s, %s, %s, 0' % (v(s1), v(vXF), v(vXF)))
for j in range(1, 4):
    A('v_dot2c_f32_bf16 %s, %s, %s' % (v(s0), sONE, v(vXF + j)))
    A('v_dot2c_f32_bf16 %s, %s, %s' % (v(s1), v(vXF + j), v(vXF + j)))
A('v_permlane32_swap_b32 %s, %s' % (v(s0), v(s1)))
A('v_add_f32 %s, %s, %s' % (v(s0), v(s0), v(s1)))
allred_rows(s0, s1, 'add', (16,))
for ror in (8, 4, 2): dpp_add(s0, ror)
dpp(s1, s0, 'row_ror:1'); dpp(s0, s0, 'row_ror:1')
A('v_permlane32_swap_b32 %s, %s' % (v(s0), v(s1)))
ln_stats(s0, s1, m_, r_, t_)
A('s_waitcnt vmcnt(%d)' % (6 + X2))
lo16(s0, vXR); hi16(s1, vXR)
A('v_sub_f32 %s, %s, %s' % (v(s0), v(s0), v(m_)))
A('v_sub_f32 %s, %s, %s' % (v(s1), v(s1), v(m_)))
cvt(t_, s0, s1)
lo16(s0, t_); hi16(s1, t_)
A('v_mul_f32 %s, %s, %s' % (v(s0), v(s0), v(r_)))
A('v_mul_f32 %s, %s, %s' % (v(s1), v(s1), v(r_)))
cvt(vXR, s0, s1)
A('s_waitcnt vmcnt(%d)' % (4 + X2))
stamp(3)
for j in range(4):
    A('v_perm_b32 %s, %s, %s, %s' % (v(vFA + 2 * j), v(vWQb + j), v(vWQa + j), sSELLO))
    A('v_perm_b32 %s, %s, %s, %s' % (v(vFA + 2 * j + 1), v(vWQb + j), v(vWQa + j), sSELHI))
for e in range(8): A('v_dot2_f32_bf16 %s, %s, %s, 0' % (v(vY + e), v(vFA + e), v(vXR)))
for i in range(4): A('v_permlane32_swap_b32 %s, %s' % (v(vY + i), v(vY + 4 + i)))
for i in range(4): A('v_add_f32 %s, %s, %s' % (v(vY + i), v(vY + i), v(vY + 4 + i)))
for i in range(2): A('v_permlane16_swap_b32 %s, %s' % (v(vY + i), v(vY + 2 + i)))
for i in range(2): A('v_add_f32 %s, %s, %s' % (v(vY + i), v(vY + i), v(vY + 2 + i)))
dpp_add(vY, 8); dpp_add(vY + 1, 8)
A('ds_write_b64 %s, %s offset:%d' % (v(vT[5]), v(vY, 2), L_QACC))
A('s_waitcnt lgkmcnt(0)')
A('s_add_u32 %s, %s, 1' % (sTA, sTA))
A('s_barrier')
A('s_lshl4_add_u32 %s, %s, %s' % (sXT, sTA, sXT))
A('v_mov_b32 %s, %s' % (v(vG + 2), sTA))
A('v_mov_b32 %s, %s' % (v(vG + 3), sTB))
A('s_cmp_lg_u32 %s, 0' % sW)
A('s_cbranch_scc1 L_NOPUB1')
A('ds_read2st64_b64 %s, %s offset0:0 offset1:1' % (v(vY, 4), v(vT[6])) if False else 'ds_read2_b64 %s, %s offset0:%d offset1:%d' % (v(vY, 4), v(vT[6]), 0, 32))
A('ds_read2_b64 %s, %s offset0:%d offset1:%d' % (v(vY + 4, 4), v(vT[6]), 64, 96))
A('v_mov_b32 %s, %s' % (v(vG2), sXT))
A('s_add_u32 %s, %s, 0x%x' % (sC, sB, E1_FS))
A('s_waitcnt lgkmcnt(0)')
A('v_pk_add_f32 %s, %s, %s' % (v(vY, 2), v(vY, 2), v(vY + 2, 2)))
A('v_pk_add_f32 %s, %s, %s' % (v(vY + 4, 2), v(vY + 4, 2), v(vY + 6, 2)))
A('v_pk_add_f32 %s, %s, %s' % (v(vG, 2), v(vY, 2), v(vY + 4, 2)))
A('v_pk_add_f32 %s, %s, %s' % (v(vY, 2), v(vY, 2), v(vY + 4, 2)))
A('v_permlane32_swap_b32 %s, %s' % (v(vG), v(vY)))
A('v_permlane32_swap_b32 %s, %s' % (v(vG + 1), v(vY + 1)))
A('v_pk_add_f32 %s, %s, %s' % (v(vG, 2), v(vG, 2), v(vY, 2)))
A('s_mov_b32 exec_hi, 0')
stws(vG, oX, sB, False)
A('buffer_store_dword %s, %s, %s, %s offen' % (v(vG2), v(vT[8]), SRD_WS, sKV))
stws(vG, oX, sC, True)
set_exec(FULL)
A('L_NOPUB1:')
stamp(4)
A('s_barrier')
kdma(3); vdma(); vdma()
A('s_cmp_lt_u32 %s, 16' % sR)
A('s_cbranch_scc0 L_LA_G')
A('s_lshl_b32 %s, %s, 9' % (sF, sIDX))
A('s_add_u32 %s, %s, %s' % (sF, sF, sRB))
A('s_lshl_b32 %s, %s, 8' % (sF, sF))
A('v_lshl_or_b32 %s, %s, 10, %s' % (v(vT[2]), v(vT[2]), v(vCN)))
A('s_lshl_b32 s30, %s, 2' % s8K)
A('s_mov_b64 s[%d:%d], s[%d:%d]' % (pWG, pWG + 1, pWO, pWO + 1))
A('s_mov_b64 s[%d:%d], s[%d:%d]' % (pWU, pWU + 1, pWO, pWO + 1))
A('s_branch L_LA_GO')
A('L_LA_G:')
A('s_max_u32 %s, %s, 4' % (sC, sG))
A('s_sub_u32 %s, %s, %s' % (sC, sIDX, sC))
A('s_lshr_b32 %s, %s, 2' % (sROLE, sG))
A('s_add_u32 %s, %s, %s' % (sROLE, sROLE, sE))
A('s_cmp_eq_u32 %s, 8' % sROLE)
A('s_cselect_b32 %s, 2, 1' % sROLE)
A('s_lshl2_add_u32 %s, %s, %s' % (sIDX, sC, sRB))
A('s_mul_i32 %s, %s, 3584' % (sF, sRB))
A('s_add_u32 %s, %s, %s' % (sF, sF, sC))
A('s_lshl_b32 %s, %s, 7' % (sF, sF))
A('v_and_b32 %s, 0x70, %s' % (v(vCN), v(vCN)))
A('s_movk_i32 %s, 3584' % sC)
A('v_mad_u32_u24 %s, %s, %s, %s' % (v(vT[2]), v(vT[2]), sC, v(vCN)))
A('s_lshl_b32 s30, %s, 5' % sC)
A('L_LA_GO:')
A('v_cmp_lt_u32 vcc, 7, %s' % v(vT[3]))
A('v_add_u32 %s, %s, %s' % (v(vCN), sF, v(vT[2])))
A('v_mov_b32 %s, 0' % v(vCN + 1))
A('v_lshl_add_u64 %s, %s, 0, s[%d:%d]' % (v(vWA, 2), v(vCN, 2), pWG, pWG + 1))
A('v_lshl_add_u64 %s, %s, 0, s[%d:%d]' % (v(vCN + 2, 2), v(vCN, 2), pWU, pWU + 1))
A('v_cndmask_b32 %s, %s, %s, vcc' % (v(vWA), v(vWA), v(vCN + 2)))
A('v_cndmask_b32 %s, %s, %s, vcc' % (v(vWA + 1), v(vWA + 1), v(vCN + 3)))
A('v_mov_b32 %s, %s' % (v(vG2 + 3), sTA))
A('v_bfe_u32 %s, %s, 2, 2' % (v(vT[1]), v(vL)))
A('v_bfe_u32 %s, %s, 2, 3' % (v(vT[2]), v(vL)))
A('v_xor_b32 %s, %s, %s' % (v(vT[2]), v(vT[2]), v(vWv)))
A('v_and_b32 %s, 3, %s' % (v(vT[6]), v(vL)))
A('v_lshl_or_b32 %s, %s, 2, %s' % (v(vT[2]), v(vT[2]), v(vT[6])))
A('v_lshl_or_b32 %s, %s, 5, %s' % (v(vT[2]), v(vT[1]), v(vT[2])))
A('v_lshl_or_b32 %s, %s, 8, %s' % (v(vT[2]), v(vROW), v(vT[2])))
A('v_lshlrev_b32 %s, 3, %s' % (v(oTR), v(vT[2])))
A('v_and_b32 %s, 48, %s' % (v(vT[2]), v(vL)))
A('s_movk_i32 %s, %d' % (sC, QS))
A('v_mad_u32_u24 %s, %s, %s, %s' % (v(oFR), v(vT[6]), sC, v(vT[2])))
A('v_mad_u32_u24 %s, %s, %s, %s' % (v(oV), v(vT[1]), sC, v(vT[2])))
A('v_lshrrev_b32 %s, 1, v0' % v(vT[8]))
A('v_and_b32 %s, 0xf8, %s' % (v(vT[8]), v(vT[8])))
A('v_mad_u32_u24 %s, %s, %s, %s' % (v(vT[8]), v(vT[6]), sC, v(vT[8])))
A('v_lshl_or_b32 %s, %s, 5, %s' % (v(vT[4]), v(vWv), v(vT[7])))
A('v_mul_u32_u24 %s, %d, %s' % (v(vT[1]), 2 * E1_K, v(vPI)))
A('v_lshl_add_u32 %s, %s, 4, %s' % (v(vT[0]), v(vT[4]), v(vT[1])))
if NOFAST: A('s_add_u32 %s, %s, 0x%x' % (sA, sA, E1_FS))
A('s_add_u32 %s, %s, %d' % (sB, sA, E1_K))
A('v_lshl_or_b32 %s, %s, 1, %s' % (v(vT[1]), v(vT[4]), v(vPI)))
A('v_and_b32 %s, 6, %s' % (v(vT[4]), v(vWv)))
A('v_lshl_add_u32 %s, %s, 2, %s' % (v(vT[1]), v(vT[4]), v(vT[1])))
A('v_lshlrev_b32 %s, 1, %s' % (v(vT[1]), v(vT[1])))
A('v_xor_b32 %s, 64, %s' % (v(vA4 + 1), v(vA4)))
A('v_xor_b32 %s, 0x80, %s' % (v(vA4 + 2), v(vA4)))
A('v_xor_b32 %s, 64, %s' % (v(vA4 + 3), v(vA4 + 2)))
A('v_lshlrev_b32 %s, 5, %s' % (v(vT[7]), v(vT[6])))
A('v_lshl_add_u32 %s, %s, 2, %s' % (v(vT[3]), v(vWv), v(vT[7])))
A('v_lshlrev_b32 %s, 5, %s' % (v(vT[9]), v(vROW)))
A('v_lshl_or_b32 %s, %s, 15, %s' % (v(vT[10]), v(vROW), v(oW2)))
A('s_lshl_b32 %s, %s, 5' % (sKV, sG))
A('s_add_u32 %s, %s, %s' % (sKV, sKV, sW))
A('s_lshl_b32 %s, %s, 5' % (sKV, sKV))
A('s_add_u32 %s, %s, %s' % (sKV, sKV, sR))
A('s_add_u32 %s, %s, %s' % (sKV, sKV, s8K))
A('s_lshl_b32 %s, %s, 7' % (sKV, sKV))
A('s_mov_b32 %s, 0' % sFAST)
A('s_cmp_lg_u32 %s, 7' % sW)
A('s_cbranch_scc1 L_FL_DONE')
A('s_movk_i32 %s, 31' % sCNT)
A('s_mov_b32 s8, %s' % sXT); A('s_mov_b32 s9, %s' % sXT)
A('L_FL:')
if STAMPS:
    for pc in range(4):
        A('s_load_dwordx8 s[40:47], s[10:11], %d' % (32 * pc))
        A('s_waitcnt lgkmcnt(0)')
        for k in range(4):
            A('s_cmp_eq_u64 s[%d:%d], s[8:9]' % (40 + 2 * k, 41 + 2 * k))
            A('s_cbranch_scc0 L_FL_NO')
else:
    A('s_load_dwordx16 s[64:79], s[10:11], 0')
    A('s_load_dwordx16 s[80:95], s[10:11], 64')
    A('s_waitcnt lgkmcnt(0)')
    for k in range(16):
        A('s_cmp_eq_u64 s[%d:%d], s[8:9]' % (64 + 2 * k, 65 + 2 * k))
        A('s_cbranch_scc0 L_FL_NO')
A('s_mov_b32 %s, %d' % (sFAST, 0 if NOFAST else 1))
A('s_branch L_FL_W')
A('L_FL_NO:')
if FSLEEP: A('s_sleep %d' % FSLEEP)
A('s_addk_i32 s10, 128')
A('s_sub_u32 %s, %s, 1' % (sCNT, sCNT))
A('s_cbranch_scc0 L_FL')
A('L_FL_W:')
A('v_mov_b32 %s, %s' % (v(vP1), sFAST))
A('ds_write_b32 %s, %s offset:%d' % (v(vZ), v(vP1), L_FLG))
A('L_FL_DONE:')
A('s_barrier')
stamp(5)
e1l = [ldws(vP0, vT[0], sA), ldws(vP0 + 4, vT[0], sB)]
for l in e1l: A(l)
A('s_barrier')
vdma(); vdma()
A(ldws(vCS, vT[10], sKV))
A('s_waitcnt vmcnt(3)')
for j in range(4): A('ds_read_b128 %s, %s offset:%d' % (v(vK + 4 * j, 4), v(vA4 + j), L_K))
for i, gq in enumerate((vP0, vP0 + 4)): chk_tags(i, gq, vY + i)
A('v_or_b32 %s, %s, %s' % (v(vY), v(vY), v(vY + 1)))
A('v_cmp_ne_u32 vcc, 0, %s' % v(vY))
A('s_cbranch_vccnz L_E1_RETRY')
A('L_E1_OK:')
stamp(15)
A('v_pk_add_f32 %s, %s, %s' % (v(vP0, 2), v(vP0, 2), v(vP0 + 4, 2)))
A('s_cmp_lg_u32 %s, 0' % sROLE)
A('v_permlane32_swap_b32 %s, %s' % (v(vP0), v(vP0 + 1)))
A('v_add_f32 %s, %s, %s' % (v(vP0), v(vP0), v(vP0 + 1)))
cvt(vP0, vP0, vP0)
A('ds_write_b16 %s, %s offset:%d' % (v(vT[1]), v(vP0), L_Q))
A('s_cbranch_scc1 L_NT1')
tone(); tone()
A('L_NT1:')
bar()
for j in range(4): A('ds_read_b128 %s, %s offset:%d' % (v(vFB + 4 * j, 4), v(oFR), L_Q + 64 * j))
A('ds_read_b32 %s, %s offset:%d' % (v(vFA + 8), v(vZ), L_FLG))
stamp(6)
A('v_mov_b32 %s, 0x%x' % (v(vCN), SCALE))
for j in range(4):
    A('s_waitcnt lgkmcnt(%d)' % (4 - j))
    mfma(vACC, vK + 4 * j, vFB + 4 * j, j == 0)
A('s_waitcnt lgkmcnt(0)')
A('v_readfirstlane_b32 %s, %s' % (sFAST, v(vFA + 8)))
S = vY
for h in range(2): cvt(vT[4 + h], vACC + 2 * h, vACC + 2 * h + 1)
for h in range(2): lo16(S + 2 * h, vT[4 + h]); hi16(S + 2 * h + 1, vT[4 + h])
for i in range(4): A('v_mul_f32 %s, %s, %s' % (v(S + i), v(vCN), v(S + i)))
for h in range(2): cvt(vT[4 + h], S + 2 * h, S + 2 * h + 1)
for h in range(2): lo16(S + 2 * h, vT[4 + h]); hi16(S + 2 * h + 1, vT[4 + h])
A('v_max3_f32 %s, %s, %s, %s' % (v(vT[4]), v(S), v(S + 1), v(S + 2)))
A('v_max_f32 %s, %s, %s' % (v(vT[4]), v(vT[4]), v(S + 3)))
allred_rows(vT[4], vT[5], 'max')
A('ds_write_b32 %s, %s offset:%d' % (v(vT[3]), v(vT[4]), L_MAX))
A('s_cmp_lg_u32 %s, 0' % sROLE)
bar()
A('ds_read_b128 %s, %s offset:%d' % (v(vFA, 4), v(vT[7]), L_MAX))
A('ds_read_b128 %s, %s offset:%d' % (v(vFA + 4, 4), v(vT[7]), L_MAX + 16))
if GD:
    A('s_cbranch_scc0 L_NT2A')
    A('s_cmp_eq_u32 %s, 2' % sROLE)
    A('s_cbranch_scc1 L_NT2')
    ddma()
    if GS6 < 2:
        for i in range(GS6): tone()
        A('s_branch L_NT2')
    A('L_NT2A:')
else:
    A('s_cbranch_scc1 L_NT2')
tone(); tone()
A('L_NT2:')
A('s_waitcnt lgkmcnt(0)')
A('v_max3_f32 %s, %s, %s, %s' % (v(vT[4]), v(vFA), v(vFA + 1), v(vFA + 2)))
A('v_max3_f32 %s, %s, %s, %s' % (v(vT[5]), v(vFA + 3), v(vFA + 4), v(vFA + 5)))
A('v_max3_f32 %s, %s, %s, %s' % (v(vT[4]), v(vT[4]), v(vFA + 6), v(vFA + 7)))
A('v_max_f32 %s, %s, %s' % (v(vT[4]), v(vT[4]), v(vT[5])))
A('v_mul_f32 %s, %s, %s' % (v(vCN), sLG, v(vT[4])))
for i in range(4): A('v_fma_f32 %s, %s, %s, -%s' % (v(S + i), v(S + i), sLG, v(vCN)))
for i in range(4): A('v_exp_f32 %s, %s' % (v(S + i), v(S + i)))
A('v_lshrrev_b32 %s, 2, %s' % (v(vCN + 1), v(vT[2])))
cvt(S + 4, S, S + 1)
A('v_add_f32 %s, %s, %s' % (v(vT[4]), v(S), v(S + 1)))
cvt(S + 5, S + 2, S + 3)
A('v_add_f32 %s, %s, %s' % (v(vT[5]), v(S + 2), v(S + 3)))
A('ds_write_b64 %s, %s offset:%d' % (v(vT[8]), v(S + 4, 2), L_P))
A('ds_bpermute_b32 %s, %s, %s' % (v(vP1), v(vCN + 1), v(vCN)))
A('v_add_f32 %s, %s, %s' % (v(vT[4]), v(vT[4]), v(vT[5])))
allred_rows(vT[4], vT[5], 'add')
A('ds_write_b32 %s, %s offset:%d' % (v(vT[3]), v(vT[4]), L_LS))
stamp(7)
A('s_cmp_eq_u32 %s, 0' % sROLE)
A('s_waitcnt vmcnt(5)')
A('s_cbranch_scc1 L_WV')
if GD:
    A('s_cmp_eq_u32 %s, 1' % sROLE)
    A('s_waitcnt vmcnt(%d)' % (3 + GS6))
    A('s_cbranch_scc1 L_WV')
A('s_waitcnt vmcnt(1)')
A('L_WV:')
bar()
A('ds_read_b128 %s, %s offset:%d' % (v(vY, 4), v(vT[9]), L_LS))
A('ds_read_b128 %s, %s offset:%d' % (v(vY + 4, 4), v(vT[9]), L_LS + 16))
for b in range(4):
    A('ds_read_b128 %s, %s offset:%d' % (v(vFB + 4 * b, 4), v(oV), L_P + 64 * b))
    A('ds_read_b64_tr_b16 %s, %s offset:%d' % (v(vFA + 4 * b, 2), v(oTR), L_V + 8192 * b))
    A('ds_read_b64_tr_b16 %s, %s offset:%d' % (v(vFA + 4 * b + 2, 2), v(oTR), L_V + 8192 * b + 1024))
A('s_lshl3_add_u32 %s, %s, %s' % (sA, sIDX, sW))
A('s_addk_i32 %s, %d' % (sA, WS_E2 // 4096))
A('s_lshl_b32 %s, %s, 12' % (sA, sA))
A('s_waitcnt lgkmcnt(12)')
A('v_pk_add_f32 %s, %s, %s' % (v(vY, 2), v(vY, 2), v(vY + 2, 2)))
A('v_pk_add_f32 %s, %s, %s' % (v(vY + 4, 2), v(vY + 4, 2), v(vY + 6, 2)))
A('v_pk_add_f32 %s, %s, %s' % (v(vY, 2), v(vY, 2), v(vY + 4, 2)))
A('v_add_f32 %s, %s, %s' % (v(vY), v(vY), v(vY + 1)))
for b in range(4):
    A('s_waitcnt lgkmcnt(%d)' % (9 - 3 * b))
    mfma(vACC, vFB + 4 * b, vFA + 4 * b, b == 0)
A('v_log_f32 %s, %s' % (v(vG2 + 2), v(vY)))
A('v_rcp_f32 %s, %s' % (v(vY), v(vY)))
A('v_lshl_or_b32 %s, %s, 3, %s' % (v(vT[3]), v(vPI), v(vCC)))
A('v_add_f32 %s, %s, %s' % (v(vG2 + 2), v(vG2 + 2), v(vP1)))
A('v_lshl_or_b32 %s, %s, 4, %s' % (v(vT[3]), v(vWv), v(vT[3])))
A('v_lshlrev_b32 %s, 1, %s' % (v(vT[3]), v(vT[3])))
A('v_mul_f32 %s, %s, %s' % (v(vG2), v(vACC), v(vY)))
movdpp(vG2 + 1, vG2, 'row_ror:8')
set_exec(0x00ff00ff00ff00ff)
st_grp(vG2, vT[10], sKV)
set_exec(FULL)
stamp(8)
A('s_cmp_eq_u32 %s, 1' % sROLE)
A('s_cbranch_scc1 L_GT')
A('s_cmp_eq_u32 %s, 2' % sROLE)
A('s_cbranch_scc1 L_FIN0')
g4 = [vP0, vP0 + 4, vP1, vP1 + 4]
l4 = [ldws(g4[i], oX, sA, 1024 * i) for i in range(4)]
for l in l4: A(l)
A('v_add_u32 %s, 0x%x, %s' % (v(vT[1]), L_W, v(oTR)))
A('s_lshl3_add_u32 %s, %s, %s' % (sKV, sRB, sW))
A('s_lshl_b32 %s, %s, 5' % (sKV, sKV))
A('s_add_u32 %s, %s, %s' % (sKV, sKV, sIDX))
A('s_mulk_i32 %s, %d' % (sKV, LS3))
A('s_add_u32 %s, %s, 0x%x' % (sKV, sKV, WS_E3))
if NC > 1:
    A('v_lshrrev_b32 %s, 3, %s' % (v(vT[4]), v(vL)))
    A('v_mul_u32_u24 %s, %d, %s' % (v(vT[4]), 1024 * LS3, v(vT[4])))
    A('v_add_u32 %s, %s, %s' % (v(vT[4]), v(vT[4]), v(oW2)))
    A('v_and_b32 %s, 8, %s' % (v(vT[6]), v(vL)))
    A('v_cmp_ne_u32 %s, 0, %s' % (sMSK, v(vT[6])))
def lammax():
    A('v_max3_f32 %s, %s, %s, %s' % (v(vT[5]), v(g4[0] + 2), v(g4[1] + 2), v(g4[2] + 2)))
    A('v_max_f32 %s, %s, %s' % (v(vT[5]), v(vT[5]), v(g4[3] + 2)))
mpoll(l4, g4, chk_lam, first_in_flight=True, extra=lammax)
stamp(10)
dpp_add(vT[5], 8, 'max')
allred_rows(vT[5], vT[6], 'max')
for i in range(4): A('v_sub_f32 %s, %s, %s' % (v(g4[i] + 2), v(g4[i] + 2), v(vT[5])))
for i in range(4): A('v_exp_f32 %s, %s' % (v(g4[i] + 2), v(g4[i] + 2)))
A('v_mul_f32 %s, %s, %s' % (v(vP0), v(vP0 + 2), v(vP0)))
A('v_mul_f32 %s, %s, %s' % (v(vP0 + 1), v(vP0 + 2), v(vP0 + 1)))
for i in range(1, 4):
    A('v_fmac_f32 %s, %s, %s' % (v(vP0), v(g4[i] + 2), v(g4[i])))
    A('v_fmac_f32 %s, %s, %s' % (v(vP0 + 1), v(g4[i] + 2), v(g4[i] + 1)))
    A('v_add_f32 %s, %s, %s' % (v(vP0 + 2), v(vP0 + 2), v(g4[i] + 2)))
A('v_mov_b32 %s, %s' % (v(vP0 + 3), v(vP0 + 2)))
A('v_permlane32_swap_b32 %s, %s' % (v(vP0), v(vP0 + 1)))
A('v_permlane32_swap_b32 %s, %s' % (v(vP0 + 2), v(vP0 + 3)))
A('v_add_f32 %s, %s, %s' % (v(vP0), v(vP0), v(vP0 + 1)))
A('v_add_f32 %s, %s, %s' % (v(vP0 + 2), v(vP0 + 2), v(vP0 + 3)))
A('v_mov_b32 %s, %s' % (v(vP0 + 1), v(vP0)))
A('v_mov_b32 %s, %s' % (v(vP0 + 3), v(vP0 + 2)))
A('v_permlane16_swap_b32 %s, %s' % (v(vP0), v(vP0 + 1)))
A('v_permlane16_swap_b32 %s, %s' % (v(vP0 + 2), v(vP0 + 3)))
A('v_add_f32 %s, %s, %s' % (v(vP0 + 2), v(vP0 + 2), v(vP0 + 3)))
A('v_add_f32 %s, %s, %s' % (v(vP0), v(vP0), v(vP0 + 1)))
dpp_add(vP0 + 2, 8); dpp_add(vP0, 8)
A('v_rcp_f32 %s, %s' % (v(vP0 + 2), v(vP0 + 2)))
A('v_mul_f32 %s, %s, %s' % (v(vP0), v(vP0), v(vP0 + 2)))
cvt(vP0, vP0, vP0)
A('ds_write_b16 %s, %s offset:%d' % (v(vT[3]), v(vP0), L_ACC))
bar()
stamp(9)
for b in range(4):
    A('ds_read_b128 %s, %s offset:%d' % (v(vFB + 4 * b, 4), v(vT[2]), L_ACC + 64 * b))
    A('ds_read_b64_tr_b16 %s, %s offset:%d' % (v(vW1 + 4 * b, 2), v(vT[1]), 8192 * b))
    A('ds_read_b64_tr_b16 %s, %s offset:%d' % (v(vW1 + 4 * b + 2, 2), v(vT[1]), 8192 * b + 1024))
for b in range(4):
    A('s_waitcnt lgkmcnt(%d)' % (9 - 3 * b))
    mfma(vACC, vFB + 4 * b, vW1 + 4 * b, b == 0)
A('s_cmp_eq_u32 %s, 0' % sRB)
if NC > 1:
    movdpp(vT[6], vACC, 'row_ror:8')
    A('v_cndmask_b32 %s, %s, %s, %s' % (v(vG), v(vACC + 1), v(vT[6]), sMSK))
    A('v_cndmask_b32 %s, %s, %s, %s' % (v(vG + 1), v(vT[6]), v(vACC + 1), sMSK))
    stws(vG, vT[4], sKV)
else:
    movdpp(vG + 1, vACC, 'row_ror:8')
    A('v_mov_b32 %s, %s' % (v(vG), v(vACC + 1)))
    set_exec(0xff)
    stws(vG, oX, sKV)
    set_exec(FULL)
stamp(11)
A('s_cbranch_scc1 L_RED')
A('L_FIN0:')
fin()
A('L_END0:')
A('s_endpgm')
A('L_GT:')
a.hist = []
A('s_barrier')
for i in range(4 - GS6): tone()
if not GD: ddma()
if DG: A('s_memrealtime s[64:65]')
A('s_branch L_ROLE_G')
A('L_PAGE0_END:')
if not STAMPS:
    a.raw('.if (L_PAGE0_END - %s_kernel) > 4096\n.error "page 0 overflow"\n.endif' % NAME)
    a.raw('.fill (4096 - (L_PAGE0_END - %s_kernel)) / 4, 4, 0xbf800000' % NAME)
A('L_ROLE_G:')
a.hist = []
if DG == 1: A('s_memrealtime s[66:67]')
A('s_lshl_b32 %s, %s, 12' % (sJ := 's28', sIDX))
A('s_add_u32 %s, %s, 0x%x' % (sJ, sJ, WS_E4))
A('v_lshlrev_b32 %s, 4, v0' % v(vT[5]))
A('v_and_b32 %s, 0xff0, %s' % (v(vT[5]), v(vT[5])))
A(ldws(vCS, vT[5], sJ))
A('s_lshl_b32 %s, %s, 8' % (sC, sRB))
A('buffer_load_ushort %s, %s, %s, %s offen' % (v(vXR), v(vT[3]), srd(SRD_X), sC))
A('s_and_b32 %s, %s, 1' % (sE, sW))
A('s_lshl_b32 %s, %s, 2' % (sE, sE))
A('s_lshr_b32 %s, %s, 1' % (sD, sW))
A('s_or_b32 %s, %s, %s' % (sC, sE, sD))
A('s_xor_b32 %s, %s, %s' % (sC, sC, sW))
A('s_lshl_b32 %s, %s, 5' % (sC, sC))
A('v_xor_b32 %s, %s, %s' % (v(vT[1]), sC, v(oTR)))
A('v_add_u32 %s, 0x%x, %s' % (v(vT[1]), L_W, v(vT[1])))
sDST = 's33'
A('s_andn2_b32 %s, %s, 3' % (sDST, sIDX))
A('s_add_u32 %s, %s, %s' % (sDST, sDST, sD))
A('s_lshl_b32 %s, %s, 12' % (sDST, sDST))
A('s_add_u32 %s, %s, 0x%x' % (sDST, sDST, WS_E4))
A('s_add_u32 %s, %s, %s' % (sE, sE, sRB))
A('v_lshrrev_b32 %s, 1, %s' % (v(vT[4]), v(vCC)))
A('v_lshlrev_b32 %s, 8, %s' % (v(vT[4]), v(vT[4])))
A('v_and_b32 %s, 1, %s' % (v(vT[6]), v(vL)))
A('v_lshl_or_b32 %s, %s, 4, %s' % (v(vT[4]), v(vT[6]), v(vT[4])))
A('v_lshl_add_u32 %s, %s, 5, %s' % (v(vT[4]), sE, v(vT[4])))
A('s_lshl_b32 %s, %s, 4' % (sE, sE))
A('s_add_u32 %s, %s, 2048' % (sE, sE))
A('v_mov_b32 %s, %s' % (v(vT[7]), sE))
A('v_cmp_eq_u32 s[10:11], 8, %s' % v(vL))
A('v_and_b32 %s, 8, %s' % (v(vT[6]), v(vL)))
A('v_cmp_ne_u32 %s, 0, %s' % (sMSK, v(vT[6])))
A('v_cndmask_b32 %s, %s, %s, s[10:11]' % (v(oFR), v(vT[4]), v(vT[7])))
A('s_add_u32 %s, %s, 1024' % (sE, sDST))
A('v_and_b32 %s, 14, %s' % (v(oWQ), v(vL)))
A('v_lshlrev_b32 %s, 3, %s' % (v(oWQ), v(oWQ)))
A('s_lshl3_add_u32 %s, %s, %s' % (sA, sRB, sW))
if NC > 1:
    A('s_lshl_b32 %s, %s, 5' % (sC, sG))
    A('s_add_u32 %s, %s, %s' % (sA, sA, sC))
A('s_mul_i32 %s, %s, %d' % (sA, sA, 32 * LS3))
A('s_add_u32 %s, %s, 0x%x' % (sA, sA, WS_E3))
for i_, r_ in enumerate(('s48', 's49', 's50')): A('s_add_u32 %s, %s, %d' % (r_, sA, 8 * LS3 * (i_ + 1)))
A('v_lshrrev_b32 %s, 3, %s' % (v(vT[0]), v(vL)))
A('v_mul_u32_u24 %s, %d, %s' % (v(vT[0]), LS3, v(vT[0])))
A('v_add_u32 %s, %s, %s' % (v(vT[0]), v(vT[0]), v(oW2)))
l4 = [ldws(g4[i], vT[0], (sA, 's48', 's49', 's50')[i]) for i in range(4)]
A('s_lshl_b32 %s, %s, 9' % (sB, sW))
A('s_add_u32 %s, %s, %s' % (sB, sB, sIDX))
A('s_mul_i32 %s, %s, %d' % (sB, sB, LS5))
A('s_add_u32 %s, %s, 0x%x' % (sB, sB, WS_E5))
A('v_mul_u32_u24 %s, %d, %s' % (v(oV), 128 * LS5, v(vROW)))
A('v_add_u32 %s, %s, %s' % (v(oV), v(oV), v(oW2)))
A('v_bfe_u32 %s, %s, 3, 1' % (v(vT[6]), v(vL)))
A('v_lshl_or_b32 %s, %s, 1, %s' % (v(vT[6]), v(vROW), v(vT[6])))
A('v_bfe_u32 %s, %s, 2, 1' % (v(vT[7]), v(vL)))
A('v_and_b32 %s, 3, %s' % (v(oK), v(vT[6])))
A('v_lshl_or_b32 %s, %s, 2, %s' % (v(oK), v(vT[7]), v(oK)))
A('v_lshl_or_b32 %s, %s, 3, %s' % (v(vT[6]), v(vT[7]), v(vT[6])))
A('v_lshlrev_b32 %s, 2, %s' % (v(vT[7]), v(vWv)))
A('v_xor_b32 %s, %s, %s' % (v(oK), v(oK), v(vT[7])))
A('v_lshlrev_b32 %s, 5, %s' % (v(oK), v(oK)))
A('v_lshl_or_b32 %s, %s, 10, %s' % (v(oK), v(vT[6]), v(oK)))
A('v_and_b32 %s, 3, %s' % (v(vT[6]), v(vL)))
A('v_lshl_or_b32 %s, %s, 3, %s' % (v(oK), v(vT[6]), v(oK)))
A('v_cmp_eq_u32 s[98:99], 1, %s' % v(vROW))
for i in range(4): A('v_mov_b32 %s, %s' % (v(vA4 + i), sONE))
A('s_waitcnt vmcnt(0)')
A('s_barrier')
if DG == 2: A('s_memrealtime s[66:67]')
stamp(9)
for l in l4: A(l)
for b in range(4):
    A('ds_read_b64_tr_b16 %s, %s offset:%d' % (v(vW1 + 4 * b, 2), v(vT[1]), 8192 * b))
    A('ds_read_b64_tr_b16 %s, %s offset:%d' % (v(vW1 + 4 * b + 2, 2), v(vT[1]), 8192 * b + 1024))
for t4 in range(4):
    if t4: A('v_xor_b32 %s, %d, %s' % (v(vT[6]), 32 * t4, v(oK)))
    A('ds_read_b64_tr_b16 %s, %s offset:%d' % (v(vW2 + 2 * t4, 2), v(vT[6] if t4 else oK), L_K))
lo16(vXR, vXR)
A('s_waitcnt lgkmcnt(0)')
for b in range(4): mfma(vACC, vA4, vW1 + 4 * b, b == 0)
A('v_mov_b32 %s, %s' % (v(vG), v(vACC)))
movdpp(vG + 1, vACC, 'row_ror:8')
set_exec(0xff)
st_grp(vG, vT[4], sE)
set_exec(FULL)
stamp(10)
mpoll(l4, g4, chk_tags, first_in_flight=True)
if DG == 3: A('s_memrealtime s[66:67]')
stamp(11)
A('v_pk_add_f32 %s, %s, %s' % (v(vP0, 2), v(vP0, 2), v(vP0 + 4, 2)))
A('v_pk_add_f32 %s, %s, %s' % (v(vP1, 2), v(vP1, 2), v(vP1 + 4, 2)))
A('v_pk_add_f32 %s, %s, %s' % (v(vP0, 2), v(vP0, 2), v(vP1, 2)))
red8(vP0)
resid1(vP0, vXR)
A('ds_write_b16 %s, %s offset:%d' % (v(vT[3]), v(vP0), L_ACC))
bar()
for b in range(4): A('ds_read_b128 %s, %s offset:%d' % (v(vFB + 4 * b, 4), v(vT[2]), L_ACC + 64 * b))
A('s_bitcmp1_b32 %s, 0' % sW)
A('s_cbranch_scc1 L_ST_UP')
for b in range(4):
    A('s_waitcnt lgkmcnt(%d)' % (3 - b))
    mfma(vACC, vFB + 4 * b, vW1 + 4 * b, b == 0)
    mfma(vY, vFB + 4 * b, vFB + 4 * b, b == 0)
A('s_branch L_ST_GO')
A('L_ST_UP:')
a.hist = []
for b in range(4):
    A('s_waitcnt lgkmcnt(%d)' % (3 - b))
    mfma(vACC, vFB + 4 * b, vW1 + 4 * b, b == 0)
    mfma(vY, vFB + 4 * b, vA4, b == 0)
A('L_ST_GO:')
movdpp(vG + 1, vACC, 'row_ror:8')
A('v_cndmask_b32 %s, %s, %s, s[10:11]' % (v(vG), v(vACC + 1), v(vY)))
set_exec(0x1ff)
st_grp(vG, oFR, sDST)
set_exec(FULL)
stamp(12)
mpoll([ldws(vP0, oX, sJ), ldws(vP0 + 4, oWQ, sJ, 2048), ldws(vCS, oX, sJ, 1024)], [vP0, vP0 + 4, vCS], chk_tags)
stamp(13)
PR = ((vP0 + 4, vP0 + 5), (vP0, vP0 + 2), (vP0 + 1, vP0 + 3), (vCS, vCS + 2), (vCS + 1, vCS + 3))
for r, d in PR: dpp(r, r, 'quad_perm:[2,3,0,1]')
for r, d in PR: A('v_add_f32_dpp %s, %s, %s row_shr:4 row_mask:0xf bank_mask:0xa' % (v(d), v(r), v(r)))
for r, d in PR: A('v_add_f32_dpp %s, %s, %s row_shl:4 row_mask:0xf bank_mask:0x5' % (v(d), v(r), v(r)))
movdpp(vP0 + 4, vP0 + 5, 'row_ror:8')
A('v_cndmask_b32 %s, %s, %s, %s' % (v(vP0 + 6), v(vP0 + 4), v(vP0 + 5), sMSK))
A('v_cndmask_b32 %s, %s, %s, %s' % (v(vP0 + 7), v(vP0 + 5), v(vP0 + 4), sMSK))
ln_stats(vP0 + 6, vP0 + 7, vT[5], vT[6], vT[7])
for i in range(2): A('v_fma_f32 %s, -%s, %s, %s' % (v(vP0 + i), v(vT[5]), v(vCS + 2 + i), v(vP0 + 2 + i)))
for i in range(2): A('v_mul_f32 %s, %s, %s' % (v(vP0 + i), v(vP0 + i), v(vT[6])))
cvt(vT[7], vP0, vP0 + 1)
lo16(vP0, vT[7]); hi16(vP0 + 1, vT[7])
A('v_max_f32 %s, 0, %s' % (v(vP0 + 2), v(vP0)))
A('v_max_f32 %s, 0, %s' % (v(vP0 + 3), v(vP0 + 1)))
A('v_cndmask_b32 %s, %s, %s, %s' % (v(vP0), v(vP0 + 2), v(vP0), sMSK))
A('v_cndmask_b32 %s, %s, %s, %s' % (v(vP0 + 1), v(vP0 + 3), v(vP0 + 1), sMSK))
dpp(vP0, vP0, 'row_ror:8', 'mul'); dpp(vP0 + 1, vP0 + 1, 'row_ror:8', 'mul')
cvt(vT[7], vP0, vP0 + 1)
movdpp(vX4, vT[7], 'quad_perm:[0,0,2,2]'); movdpp(vX4 + 1, vT[7], 'quad_perm:[1,1,3,3]')
for t4 in range(4):
    A('v_mfma_f32_16x16x16_bf16 %s, %s, %s, 0' % (v(vFA + 4 * t4, 4), v(vX4, 2), v(vW2 + 2 * t4, 2)))
A('v_cndmask_b32 %s, %s, %s, s[98:99]' % (v(vG), v(vFA), v(vFA + 4)))
A('s_mov_b32 exec_lo, 0')
A('v_mov_b32 %s, %s' % (v(vG), v(vFA + 8)))
A('s_mov_b32 exec_hi, %s' % sHI)
A('v_mov_b32 %s, %s' % (v(vG), v(vFA + 12)))
set_exec(FULL)
movdpp(vG + 1, vG, 'row_ror:8')
set_exec(0x00ff00ff00ff00ff)
stws(vG, oV, sB)
set_exec(FULL)
if DG:
    A('s_waitcnt lgkmcnt(0)')
    A('s_sub_u32 s68, s66, s64')
    A('s_lshl_b32 s68, s68, 3')
    A('s_min_u32 s68, s68, 20000')
    A('s_memrealtime s[70:71]')
    A('s_waitcnt lgkmcnt(0)')
    A('L_DG2:')
    A('s_memrealtime s[72:73]')
    A('s_waitcnt lgkmcnt(0)')
    A('s_sub_u32 s69, s72, s70')
    A('s_cmp_lt_u32 s69, s68')
    A('s_cbranch_scc1 L_DG2')
stamp(14)
fin()
A('L_RED:')
a.hist = []
A('s_load_dwordx2 s[20:21], s[0:1], 72')
A('s_mov_b64 s[22:23], s[%d:%d]' % (SRD_X + 2, SRD_X + 3))
A('v_lshrrev_b32 %s, 3, v0' % v(vT[4]))
A('v_and_b32 %s, 31, %s' % (v(vT[0]), v(vT[4])))
A('v_mul_u32_u24 %s, %d, %s' % (v(vT[0]), LS3, v(vT[0])))
A('v_add_u32 %s, %s, %s' % (v(vT[0]), v(vT[0]), v(oW2)))
A('v_mul_u32_u24 %s, %d, %s' % (v(vT[4]), LS5, v(vT[4])))
A('v_add_u32 %s, %s, %s' % (v(vT[4]), v(vT[4]), v(oW2)))
A('s_lshl_b32 %s, %s, 5' % (sA, sG))
A('s_add_u32 %s, %s, %s' % (sA, sIDX, sA if NC > 1 else '0'))
A('s_mul_i32 %s, %s, %d' % (sA, sA, 32 * LS3))
A('s_add_u32 %s, %s, 0x%x' % (sA, sA, WS_E3))
A('v_lshlrev_b32 %s, 1, %s' % (v(vT[1]), v(vL15)))
A('s_lshl_b32 %s, %s, 5' % (sD, sIDX))
A('buffer_load_ushort %s, %s, %s, %s offen' % (v(vX4), v(vT[1]), srd(SRD_X), sD))
A('v_lshl_or_b32 %s, %s, 3, %s' % (v(vT[2]), v(vPI), v(vCC)))
A('v_lshl_or_b32 %s, %s, 3, %s' % (v(vT[2]), v(vT[2]), v(vWv)))
A('v_lshlrev_b32 %s, 2, %s' % (v(vT[2]), v(vT[2])))
A('v_lshlrev_b32 %s, 5, %s' % (v(vT[3]), v(vL15)))
A('v_lshl_or_b32 %s, %s, 3, %s' % (v(vT[3]), v(vROW), v(vT[3])))
A('s_mul_i32 %s, %s, %d' % (sB, sIDX, 128 * LS5))
A('s_add_u32 %s, %s, 0x%x' % (sB, sB, WS_E5))
A('s_cmp_lt_u32 %s, 6' % sW)
A('s_cselect_b32 %s, %d, 0' % (sC, 64 * LS5))
A('s_cselect_b32 %s, 1.0, 0' % sE)
A('s_add_u32 %s, %s, %s' % (sC, sC, sB))
mpoll([ldws(vP0, vT[0], sA)], [vP0], chk_tags)
red8(vP0)
A('ds_write_b32 %s, %s offset:%d' % (v(vT[2]), v(vP0), L_R1))
lo16(vX4, vX4)
bar()
A('ds_read_b64 %s, %s offset:%d' % (v(vP1, 2), v(vT[3]), L_R1))
A('s_waitcnt lgkmcnt(0)')
A('v_add_f32 %s, %s, %s' % (v(vP1), v(vP1), v(vP1 + 1)))
allred_rows(vP1, vP1 + 1, 'add', (16,))
resid1(vP1, vX4)
lo16(vX4, vP1)
stamp(12)
mpoll([ldws(vP0, vT[4], sB), ldws(vP0 + 4, vT[4], sC)], [vP0, vP0 + 4], chk_tags)
stamp(13)
A('s_cmp_lt_u32 %s, 6' % sW)
A('s_cbranch_scc0 L_R_ONE')
A('v_pk_add_f32 %s, %s, %s' % (v(vP0, 2), v(vP0, 2), v(vP0 + 4, 2)))
A('L_R_ONE:')
red8(vP0)
A('ds_write_b32 %s, %s offset:%d' % (v(vT[2]), v(vP0), L_R2))
bar()
A('s_cmp_lg_u32 %s, 0' % sW)
A('s_cbranch_scc1 L_FIN')
A('ds_read_b64 %s, %s offset:%d' % (v(vP0, 2), v(vT[3]), L_R2))
A('s_waitcnt lgkmcnt(0)')
A('v_add_f32 %s, %s, %s' % (v(vP0), v(vP0), v(vP0 + 1)))
allred_rows(vP0, vP0 + 1, 'add')
resid1(vP0, vX4)
set_exec(0xffff)
A('buffer_store_short %s, %s, %s, %s offen' % (v(vP0), v(vT[1]), SRD_OUT, sD))
A('s_cmp_lg_u32 %s, 0' % sIDX)
A('s_cbranch_scc1 L_NOEP')
set_exec(1)
A('buffer_store_dword %s, %s, %s, 0 offen offset:%d' % (v(vG + 2), v(vT[1]), SRD_WS, WS_EPOCH))
if DIAG >= 0:
    stamp(14)
    A('s_waitcnt lgkmcnt(0)')
    A('s_sub_u32 s68, s66, s64')
    A('s_lshl_b32 s68, s68, 3')
    A('s_min_u32 s68, s68, 20000')
    A('s_memrealtime s[70:71]')
    A('s_waitcnt lgkmcnt(0)')
    A('L_DG:')
    A('s_memrealtime s[72:73]')
    A('s_waitcnt lgkmcnt(0)')
    A('s_sub_u32 s69, s72, s70')
    A('s_cmp_lt_u32 s69, s68')
    A('s_cbranch_scc1 L_DG')
A('L_NOEP:')
set_exec(FULL)
if DIAG < 0: stamp(14)
A('L_FIN:')
if STAMPS:
    A('s_waitcnt lgkmcnt(0)')
    A('v_mov_b32 %s, 0' % v(vT[8]))
    for i in range(16): A('v_writelane_b32 %s, s%d, %d' % (v(vT[8]), 64 + 2 * i, i))
    A('s_lshl_b32 %s, s2, 9' % sB)
    A('s_lshl_b32 %s, %s, 6' % (sC, sW))
    A('s_add_u32 %s, %s, %s' % (sB, sB, sC))
    A('s_add_u32 %s, %s, 0x%x' % (sB, sB, WS_ST))
    A('v_lshlrev_b32 %s, 2, %s' % (v(vT[9]), v(vL)))
    set_exec(0xffff)
    A('buffer_store_dword %s, %s, %s, %s offen' % (v(vT[8]), v(vT[9]), SRD_WS, sB))
A('s_endpgm')
A('L_E1_RETRY:')
a.hist = []
A('s_mov_b32 %s, 0x%x' % (sC, (-E1_FS if NOFAST else E1_FS) & 0xffffffff))
def flip():
    A('s_add_u32 %s, %s, %s' % (sA, sA, sC))
    A('s_add_u32 %s, %s, %s' % (sB, sB, sC))
    A('s_sub_u32 %s, 0, %s' % (sC, sC))
mpoll(e1l, [vP0, vP0 + 4], chk_tags, each=flip)
A('s_branch L_E1_OK')
a.raw('.p2align 12, 0')
nv = (NVGPR + 7) // 8 * 8
a.raw('''.section .rodata,"a"
.p2align 6
.amdhsa_kernel %s_kernel
  .amdhsa_next_free_vgpr %d
  .amdhsa_next_free_sgpr 102
  .amdhsa_accum_offset %d
  .amdhsa_group_segment_fixed_size 0
  .amdhsa_kernarg_size 96
  .amdhsa_user_sgpr_count 2
  .amdhsa_user_sgpr_kernarg_segment_ptr 1
  .amdhsa_system_sgpr_workgroup_id_x 1
  .amdhsa_float_denorm_mode_32 3
.end_amdhsa_kernel''' % (NAME, nv, nv))
open(OUT, 'w').write(a.text())
print('wrote', OUT, 'vgprs', NVGPR)
```

```python
import sys
from asmlib import Asm

NAME = 'sequential_preLN__sliding_block_cached__glu_gated_reglu__decode'
STAMPS = '--stamps' in sys.argv
NOFAST = '--nofast' in sys.argv
def OPT(name, d=0):
    for a_ in sys.argv:
        if a_.startswith('--%s=' % name): return int(a_.split('=')[1])
    return d
WPRE = OPT('wpre', 1)
LS3 = OPT('ls3', 1152); LS5 = OPT('ls5', 128); NC = OPT('nc', 1)
GD = OPT('gd', 0); GS6 = OPT('gs6', 0)
FSLEEP = OPT('fsleep', 2); PF = OPT('pf', 0)
OUT = [a for a in sys.argv[1:] if not a.startswith('--')]
OUT = OUT[0] if OUT else 'cdna_kernels/%s.s' % NAME

WS_EPOCH = 0
WS_FL = 0x8000
WS_E1 = 0x10000; E1_K = 4352; E1_G = 4 * E1_K; E1_FS = 0x24000
WS_E3 = 0x200000
WS_E4 = 0x80000
WS_E2 = 0x100000
WS_E5 = 0x380000
WS_ST = 0x500000
WS_SIZE = 0x800000
QS = 272
L_QACC = 0; L_Q = 2048; L_P = L_Q + 4 * QS
L_MAX = L_P + 4 * QS; L_LS = L_MAX + 128
L_R1 = L_LS + 128; L_R2 = L_R1 + 512; L_ACC = L_R2 + 512
L_FLG = L_ACC + 256
L_V = 8192; L_K = L_V + 32768; L_W = L_K + 32768
LDS_BYTES = L_W + 32768
LOG2E = 0x3fb8aa3b; SCALE = 0x3db504f3; EPS = 0x3727c5ac; INV512 = 0x3b000000; ONES = 0x3f803f80
SPIN = 1 << 21

a = Asm(); A = a
sW, sG, sR = 's3', 's4', 's5'
sTAG = 's[6:7]'; sTA, sTB = 's6', 's7'
sMSK = 's[8:9]'
sSELLO, sSELHI = 's12', 's13'
sCNT = 's14'; sONE = 's15'
SRD_WS = 's[16:19]'; SRD_OUT = 's[20:23]'
sA, sB, sC, sD = 's24', 's25', 's26', 's27'
sKV = 's28'; sJ = 's29'; sSTEP = 's30'; sIDX = 's31'; sRB = 's32'; sM0 = 's33'
sXT = 's34'; sROLE = 's35'
SRD_X, SRD_WQ, SRD_K, SRD_V, SRD_W2 = 36, 40, 44, 48, 52
pWO, pWG, pWU = 56, 60, 62
sHI = 's58'; sE = 's59'; sFAST = 's96'; sF = 's97'; sVM = 's98'; sVS = 's99'; s8K = 's100'; sLG = 's101'
MS = ['s[40:41]', 's[42:43]', 's[44:45]', 's[46:47]']
def srd(n): return 's[%d:%d]' % (n, n + 3)
W3 = 's%d' % (SRD_X + 3)

class V:
    n = 0
    @classmethod
    def alloc(cls, k=1, align=1):
        cls.n = (cls.n + align - 1) // align * align
        r = cls.n; cls.n += k
        return r
def v(r, k=1): return 'v%d' % r if k == 1 else 'v[%d:%d]' % (r, r + k - 1)
vTID = V.alloc(); vL = V.alloc(); vZ = V.alloc()
vWv = V.alloc(); vPI = V.alloc(); vL15 = V.alloc(); vROW = V.alloc(); vCC = V.alloc()
vT = [V.alloc() for _ in range(12)]
oX, oXR, oWQ, oK, oV, oW2, oTR, oFR = [V.alloc() for _ in range(8)]
vK = V.alloc(16, 4); vW1 = vK
vFB = V.alloc(16, 4); vFA = V.alloc(16, 4)
vXF = vFB; vWQa = vFB + 4; vWQb = vFB + 8
vW2 = V.alloc(8, 4); vY = V.alloc(8, 4); vACC = V.alloc(4, 4)
vG = V.alloc(4, 4); vG2 = V.alloc(4, 4)
vP0 = V.alloc(8, 4); vP1 = V.alloc(8, 4)
vCS = V.alloc(4, 4); vA4 = V.alloc(4, 4); vCN = V.alloc(4, 4)
vXR = V.alloc(2, 2); vX4 = V.alloc(2, 2); vWA = V.alloc(2, 2); oVD = V.alloc(); vDUM = V.alloc()
NVGPR = V.n

DIAG = OPT('diag', -1); DG = OPT('dg', 0)
def stamp(i):
    if STAMPS: A('s_memrealtime s[%d:%d]' % (64 + 2 * i, 65 + 2 * i))
    if DIAG >= 0 and i == 0: A('s_memrealtime s[64:65]')
    if DIAG >= 0 and i == DIAG: A('s_memrealtime s[66:67]')
lab = [0]
def newlab(p='L'):
    lab[0] += 1
    return '%s%d' % (p, lab[0])
def dpp(d, s, mod, op='add'):
    A('v_%s_f32_dpp %s, %s, %s %s row_mask:0xf bank_mask:0xf' % (op, v(d), v(s), v(s), mod))
def dpp_add(d, ror, op='add'): dpp(d, d, 'row_ror:%d' % ror, op)
def movdpp(d, s, mod): A('v_mov_b32_dpp %s, %s %s row_mask:0xf bank_mask:0xf' % (v(d), v(s), mod))
def allred_rows(x, t, op='add', which=(16, 32)):
    for wdt in which:
        A('v_mov_b32 %s, %s' % (v(t), v(x)))
        A('v_permlane%d_swap_b32 %s, %s' % (wdt, v(x), v(t)))
        A('v_%s_f32 %s, %s, %s' % (op, v(x), v(x), v(t)))
def hi16(d, s): A('v_and_b32 %s, %s, %s' % (v(d), sHI, v(s)))
def lo16(d, s): A('v_lshlrev_b32 %s, 16, %s' % (v(d), v(s)))
def cvt(d, x, y): A('v_cvt_pk_bf16_f32 %s, %s, %s' % (v(d), v(x), v(y)))
def bf16r(d, s): cvt(d, s, s); hi16(d, d)
def ln_stats(vsum, vsq, vm, vr, t):
    A('v_mul_f32 %s, 0x%x, %s' % (v(vsum), INV512, v(vsum)))
    A('v_mul_f32 %s, 0x%x, %s' % (v(vsq), INV512, v(vsq)))
    A('v_fma_f32 %s, -%s, %s, %s' % (v(vsq), v(vsum), v(vsum), v(vsq)))
    A('v_max_f32 %s, 0, %s' % (v(vsq), v(vsq)))
    cvt(t, vsum, vsq)
    lo16(vm, t); hi16(vr, t)
    A('v_add_f32 %s, 0x%x, %s' % (v(vr), EPS, v(vr)))
    bf16r(vr, vr)
    A('v_sqrt_f32 %s, %s' % (v(vr), v(vr)))
    bf16r(vr, vr)
    A('v_rcp_f32 %s, %s' % (v(vr), v(vr)))
FULL = (1 << 64) - 1
def set_exec(mask):
    lo, hi = mask & 0xffffffff, mask >> 32
    if mask == FULL: A('s_mov_b64 exec, -1')
    elif hi == 0 and lo <= 64: A('s_mov_b64 exec, %d' % lo)
    elif hi == 0 and lo < 0x80000000: A('s_mov_b64 exec, 0x%x' % lo)
    elif lo == hi:
        A('s_mov_b32 exec_lo, 0x%x' % lo); A('s_mov_b32 exec_hi, exec_lo')
    else: raise ValueError
def mpoll(loads, grans, check, first_in_flight=False, extra=None, each=None):
    top = newlab('P'); done = newlab('D'); chk = newlab('C')
    A('s_mov_b32 %s, %d' % (sCNT, SPIN))
    if not first_in_flight:
        for l in loads: A(l)
    A('s_branch %s' % chk)
    A('%s:' % top)
    if each: each()
    for i, l in enumerate(loads):
        sk = newlab('K')
        A('s_mov_b64 exec, %s' % MS[i])
        A('s_cbranch_execz %s' % sk)
        A(l)
        A('%s:' % sk)
    A('s_mov_b64 exec, -1')
    A('%s:' % chk)
    A('s_waitcnt vmcnt(0)')
    for i, gq in enumerate(grans): check(i, gq, vY + i)
    for i, gq in enumerate(grans): A('v_cmp_ne_u32 %s, 0, %s' % (MS[i], v(vY + i)))
    if extra: extra()
    A('s_sub_u32 %s, %s, 1' % (sCNT, sCNT))
    A('s_cbranch_scc1 %s' % done)
    A('s_or_b64 vcc, %s, %s' % (MS[0], MS[1 if len(grans) > 1 else 0]))
    for i in range(2, len(grans)): A('s_or_b64 vcc, vcc, %s' % MS[i])
    A('s_cbranch_scc1 %s' % top)
    A('%s:' % done)
def chk_tags(i, gq, t):
    A('v_xor_b32 %s, %s, %s' % (v(t), sTA, v(gq + 2)))
    A('v_xor_b32 %s, %s, %s' % (v(t + 4), sTB, v(gq + 3)))
    A('v_or_b32 %s, %s, %s' % (v(t), v(t), v(t + 4)))
def chk_lam(i, gq, t):
    A('v_xor_b32 %s, %s, %s' % (v(t), sTA, v(gq + 3)))
    A('v_xor_b32_dpp %s, %s, %s quad_perm:[1,0,3,2] row_mask:0xf bank_mask:0xf' % (v(t + 4), v(gq + 2), v(gq + 2)))
    A('v_or_b32 %s, %s, %s' % (v(t), v(t), v(t + 4)))
def ldws(dst, voff, soff, imm=0):
    return 'buffer_load_dwordx4 %s, %s, %s, %s offen%s sc1' % (v(dst, 4), v(voff), SRD_WS, soff, (' offset:%d' % imm) if imm else '')
def stws(src, voff, soff, sc1=True):
    A('buffer_store_dwordx4 %s, %s, %s, %s offen%s' % (v(src, 4), v(voff), SRD_WS, soff, ' sc1' if sc1 else ''))
def st_grp(src, voff, soff):
    l1 = newlab('S'); l2 = newlab('S')
    A('s_cmp_eq_u32 %s, 0' % sFAST)
    A('s_cbranch_scc1 %s' % l1)
    stws(src, voff, soff, False)
    A('s_branch %s' % l2)
    A('%s:' % l1)
    stws(src, voff, soff, True)
    A('%s:' % l2)
def red8(x):
    A('v_permlane32_swap_b32 %s, %s' % (v(x), v(x + 1)))
    A('v_add_f32 %s, %s, %s' % (v(x), v(x), v(x + 1)))
    allred_rows(x, x + 1, 'add', (16,))
    dpp_add(x, 8)
def resid1(x, base):
    bf16r(x, x)
    A('v_add_f32 %s, %s, %s' % (v(x), v(x), v(base)))
    cvt(x, x, x)
def bar():
    A('s_waitcnt lgkmcnt(0)')
    A('s_barrier')
def mfma(acc, x, y, first): A('v_mfma_f32_16x16x32_bf16 %s, %s, %s, %s' % (v(acc, 4), v(x, 4), v(y, 4), '0' if first else v(acc, 4)))
def kdma(i):
    if i: A('v_xor_b32 %s, 0x%x, %s' % (v(vT[11]), 64 * i, v(oK)))
    A('buffer_load_dwordx4 %s, %s, %s offen offset:%d nt lds' % (v(vT[11] if i else oK), srd(SRD_K), sVS, 1024 * i))
def vdma():
    A('s_mov_b32 m0, %s' % sVM)
    A('s_add_u32 %s, %s, %s' % (sVM, sVM, s8K))
    A('buffer_load_dwordx4 %s, %s, %s offen nt lds' % (v(oVD), srd(SRD_V), sVS))
    A('s_add_u32 %s, %s, %s' % (sVS, sVS, s8K))
def tone():
    A('s_mov_b32 m0, %s' % sM0)
    A('s_add_u32 %s, %s, %s' % (sM0, sM0, s8K))
    A('global_load_lds_dwordx4 %s, off nt' % v(vWA, 2))
    A('v_lshl_add_u64 %s, %s, 0, s[30:31]' % (v(vWA, 2), v(vWA, 2)))
def ddma():
    A('s_mul_i32 s%d, %s, 14' % (SRD_W2 + 2, W3)); A('s_mov_b32 s%d, %s' % (SRD_W2 + 3, W3))
    A('s_lshl_b32 %s, %s, 5' % (sC, sW))
    A('s_and_b32 %s, %s, 0x80' % (sD, sC))
    A('s_lshl_b32 %s, %s, 1' % (sC, sC))
    A('s_and_b32 %s, %s, 64' % (sC, sC))
    A('s_or_b32 %s, %s, %s' % (sC, sC, sD))
    A('v_xor_b32 %s, %s, %s' % (v(vT[11]), sC, v(oX)))
    A('s_add_u32 %s, %s, %d' % (sC, sW, L_K // 2048))
    A('s_lshl_b32 m0, %s, 11' % sC)
    A('s_lshl3_add_u32 %s, %s, %s' % (sD, sIDX, sW))
    A('s_lshl_b32 %s, %s, 11' % (sD, sD))
    A('buffer_load_dwordx4 %s, %s, %s offen nt lds' % (v(vT[11]), srd(SRD_W2), sD))
    A('v_xor_b32 %s, 32, %s' % (v(vT[11]), v(vT[11])))
    A('buffer_load_dwordx4 %s, %s, %s offen offset:1024 nt lds' % (v(vT[11]), srd(SRD_W2), sD))
def fin():
    if STAMPS: A('s_branch L_FIN')
    else: A('s_endpgm')

head = []
for l in open('cdna_kernels/%s.s.ref' % NAME).read().split('\n'):
    if not l.startswith(';'): break
    head.append('; @launch grid=(256,1,1) block=(512,1,1) lds=%d' % LDS_BYTES if l.startswith('; @launch') else l)
a.raw('\n'.join(head))
a.raw('.amdgcn_target "amdgcn-amd-amdhsa--gfx950"\n.text\n.globl %s_kernel\n.p2align 12\n.type %s_kernel,@function\n%s_kernel:' % (NAME, NAME, NAME))
sIDX = 's29'
A('s_load_dwordx2 s[%d:%d], s[0:1], 24' % (SRD_WQ, SRD_WQ + 1))
A('s_load_dwordx2 s[%d:%d], s[0:1], 0' % (SRD_X, SRD_X + 1))
A('s_load_dwordx2 s[16:17], s[0:1], 88')
A('s_load_dwordx2 s[%d:%d], s[0:1], 8' % (SRD_K, SRD_K + 1))
A('s_lshr_b32 %s, s2, 3' % sR)
A('s_cmp_ge_u32 %s, 32' % sR)
A('s_cbranch_scc1 L_END0')
def pf():
    A('s_getpc_b64 s[10:11]')
    A('s_and_b32 s10, s10, 0xfffff000')
    if PF == 3: A('s_addk_i32 s10, 4096')
    A('v_lshlrev_b32 %s, 3, v0' % v(vT[1]))
    A('global_load_dword %s, %s, s[10:11]' % (v(vDUM), v(vT[1])))
if PF == 1: pf()
A('v_readfirstlane_b32 %s, v0' % sW)
A('v_and_b32 %s, 63, v0' % v(vL))
A('s_and_b32 %s, s2, 7' % sG)
A('s_and_b32 %s, %s, 3' % (sRB, sR))
A('s_lshr_b32 %s, %s, 2' % (sE, sR))
if STAMPS:
    for i in range(16): A('s_mov_b64 s[%d:%d], 0' % (64 + 2 * i, 65 + 2 * i))
stamp(0)
A('v_lshrrev_b32 %s, 3, v0' % v(vT[0]))
A('v_and_b32 %s, 7, v0' % v(vCC))
A('v_lshlrev_b32 %s, 4, %s' % (v(oW2), v(vCC)))
A('v_lshl_or_b32 %s, %s, 14, %s' % (v(oWQ), v(vT[0]), v(oW2)))
A('s_lshl_b32 %s, %s, 20' % (sA, sRB))
A('s_lshl_b32 %s, %s, 10' % (sC, sG))
A('s_add_u32 %s, %s, %s' % (sA, sA, sC))
A('s_lshl_b32 %s, %s, 7' % (sC, sE))
A('s_add_u32 %s, %s, %s' % (sA, sA, sC))
A('s_movk_i32 %s, 8192' % s8K)
A('s_add_u32 %s, %s, %s' % (sB, sA, s8K))
A('s_mov_b32 %s, 0x20000' % W3)
A('s_lshl_b32 s%d, %s, 5' % (SRD_WQ + 2, W3)); A('s_mov_b32 s%d, %s' % (SRD_WQ + 3, W3))
A('s_movk_i32 s%d, 1024' % (SRD_X + 2))
A('v_lshlrev_b32 %s, 4, %s' % (v(oX), v(vL)))
A('v_lshlrev_b32 %s, 2, %s' % (v(oXR), v(vT[0])))
A('s_lshl_b32 %s, %s, 8' % (sD, sRB))
A('s_waitcnt lgkmcnt(0)')
A('buffer_load_dwordx4 %s, %s, %s, 0 offen' % (v(vXF, 4), v(oX), srd(SRD_X)))
A('buffer_load_dword %s, %s, %s, %s offen' % (v(vXR), v(oXR), srd(SRD_X), sD))
A('buffer_load_dwordx4 %s, %s, %s, %s offen nt' % (v(vWQa, 4), v(oWQ), srd(SRD_WQ), sA))
A('buffer_load_dwordx4 %s, %s, %s, %s offen nt' % (v(vWQb, 4), v(oWQ), srd(SRD_WQ), sB))
A('s_load_dwordx2 %s, s[16:17], %d' % (sTAG, WS_EPOCH))
A('s_lshr_b32 %s, %s, 6' % (sW, sW))
A('s_lshl_b32 s18, %s, 6' % W3); A('s_mov_b32 s19, %s' % W3)
A('s_add_u32 %s, %s, 8' % (sKV, sG))
A('s_lshl_b32 %s, %s, 12' % (sKV, sKV))
A('v_lshlrev_b32 %s, 3, v0' % v(vT[1]))
A('buffer_load_dword %s, %s, %s, %s offen sc1' % (v(vDUM), v(vT[1]), SRD_WS, sKV))
if PF >= 2: pf()
X2 = 1 if PF >= 2 else 0
A('v_lshrrev_b32 %s, 6, v0' % v(vWv))
A('v_and_b32 %s, 15, %s' % (v(vL15), v(vL)))
A('v_lshrrev_b32 %s, 4, %s' % (v(vROW), v(vL)))
A('s_lshl_b32 %s, %s, 8' % (sVS, sG))
A('s_add_u32 %s, %s, %s' % (sVS, sVS, sR))
A('s_addk_i32 %s, 224' % sVS)
A('s_lshl_b32 %s, %s, 15' % (sVS, sVS))
A('v_xor_b32 %s, %s, %s' % (v(vT[1]), v(vL15), v(vROW)))
A('v_lshlrev_b32 %s, 4, %s' % (v(vT[1]), v(vT[1])))
A('v_lshl_or_b32 %s, %s, 12, %s' % (v(vT[2]), v(vWv), v(vT[1])))
A('v_lshl_or_b32 %s, %s, 8, %s' % (v(oK), v(vROW), v(vT[2])))
A('v_lshl_or_b32 %s, %s, 8, %s' % (v(vA4), v(vL15), v(vT[2])))
A('s_lshl_b32 s%d, %s, 9' % (SRD_K + 2, W3)); A('s_mov_b32 s%d, %s' % (SRD_K + 3, W3))
A('s_add_u32 %s, %s, %d' % (sF, sW, L_K // 4096))
A('s_lshl_b32 m0, %s, 12' % sF)
A('s_barrier')
for i in range(3): kdma(i)
stamp(1)
A('s_load_dwordx2 s[%d:%d], s[0:1], 16' % (SRD_V, SRD_V + 1))
A('s_load_dwordx2 s[%d:%d], s[0:1], 32' % (pWO, pWO + 1))
A('s_load_dwordx4 s[%d:%d], s[0:1], 48' % (pWG, pWG + 3))
A('s_load_dwordx2 s[%d:%d], s[0:1], 64' % (SRD_W2, SRD_W2 + 1))
A('s_mov_b32 %s, 0x05040100' % sSELLO)
A('s_mov_b32 %s, 0x07060302' % sSELHI)
A('s_mov_b32 %s, 0x%x' % (sONE, ONES))
A('s_mov_b32 %s, 0xffff0000' % sHI)
A('s_mov_b32 %s, 0x%x' % (sLG, LOG2E))
A('s_mov_b64 s[%d:%d], s[%d:%d]' % (SRD_V + 2, SRD_V + 3, SRD_K + 2, SRD_K + 3))
A('v_lshrrev_b32 %s, 5, %s' % (v(vPI), v(vL)))
A('v_mov_b32 %s, 0' % v(vZ))
A('s_getreg_b32 %s, hwreg(HW_REG_XCC_ID, 0, 4)' % sXT)
A('v_lshlrev_b32 %s, 1, %s' % (v(vT[5]), v(oW2)))
A('v_lshl_or_b32 %s, %s, 3, %s' % (v(vT[5]), v(vROW), v(vT[5])))
A('v_lshl_or_b32 %s, %s, 8, %s' % (v(vT[5]), v(vWv), v(vT[5])))
A('v_and_b32 %s, 31, %s' % (v(vT[7]), v(vL)))
A('v_lshlrev_b32 %s, 3, %s' % (v(vT[6]), v(vT[7])))
A('v_lshl_or_b32 %s, %s, 10, %s' % (v(vT[6]), v(vPI), v(vT[6])))
A('v_lshrrev_b32 %s, 4, v0' % v(vT[2]))
A('v_and_b32 %s, 2, %s' % (v(vT[3]), v(vWv)))
A('v_lshl_or_b32 %s, %s, 1, %s' % (v(vT[3]), v(vT[3]), v(vROW)))
A('v_lshlrev_b32 %s, 1, %s' % (v(vT[3]), v(vT[3])))
A('v_xor_b32 %s, %s, %s' % (v(vT[3]), v(vT[3]), v(vL15)))
A('v_lshlrev_b32 %s, 4, %s' % (v(vCN), v(vT[3])))
A('v_lshl_or_b32 %s, %s, 8, %s' % (v(oVD), v(vT[2]), v(vCN)))
A('s_add_u32 %s, %s, %d' % (sVM, sW, L_V // 1024))
A('s_lshl_b32 %s, %s, 10' % (sVM, sVM))
A('s_add_u32 %s, %s, 0x%x' % (sM0, sVM, L_W - L_V))
A('s_add_u32 s10, s16, %s' % sKV)
A('s_addc_u32 s11, s17, 0')
A('s_lshl2_add_u32 %s, %s, %s' % (sKV, sR, sKV))
A('s_mul_i32 %s, %s, %d' % (sA, sG, E1_G))
A('s_add_u32 %s, %s, 0x%x' % (sA, sA, WS_E1))
A('s_mulk_i32 %s, %d' % (sD, E1_K // 256))
A('s_lshl_b32 %s, %s, 9' % (sC, sE))
A('s_add_u32 %s, %s, %s' % (sB, sD, sC))
A('s_add_u32 %s, %s, %s' % (sB, sB, sA))
A('s_mov_b32 s31, 0')
A('s_lshl2_add_u32 %s, %s, %s' % (sIDX, sG, sE))
A('s_mov_b32 %s, 0' % sROLE)
A('v_lshlrev_b32 %s, 7, %s' % (v(vT[8]), v(vL)))
A('s_waitcnt vmcnt(%d)' % (7 + X2))
stamp(2)
s0, s1, m_, r_, t_ = vT[0], vT[1], vT[9], vT[10], vT[4]
A('v_dot2_f32_bf16 %s, %s, %s, 0' % (v(s0), v(vXF), sONE))
A('v_dot2_f32_bf16 %s, %s, %s, 0' % (v(s1), v(vXF), v(vXF)))
for j in range(1, 4):
    A('v_dot2c_f32_bf16 %s, %s, %s' % (v(s0), sONE, v(vXF + j)))
    A('v_dot2c_f32_bf16 %s, %s, %s' % (v(s1), v(vXF + j), v(vXF + j)))
A('v_permlane32_swap_b32 %s, %s' % (v(s0), v(s1)))
A('v_add_f32 %s, %s, %s' % (v(s0), v(s0), v(s1)))
allred_rows(s0, s1, 'add', (16,))
for ror in (8, 4, 2): dpp_add(s0, ror)
dpp(s1, s0, 'row_ror:1'); dpp(s0, s0, 'row_ror:1')
A('v_permlane32_swap_b32 %s, %s' % (v(s0), v(s1)))
ln_stats(s0, s1, m_, r_, t_)
A('s_waitcnt vmcnt(%d)' % (6 + X2))
lo16(s0, vXR); hi16(s1, vXR)
A('v_sub_f32 %s, %s, %s' % (v(s0), v(s0), v(m_)))
A('v_sub_f32 %s, %s, %s' % (v(s1), v(s1), v(m_)))
cvt(t_, s0, s1)
lo16(s0, t_); hi16(s1, t_)
A('v_mul_f32 %s, %s, %s' % (v(s0), v(s0), v(r_)))
A('v_mul_f32 %s, %s, %s' % (v(s1), v(s1), v(r_)))
cvt(vXR, s0, s1)
A('s_waitcnt vmcnt(%d)' % (4 + X2))
stamp(3)
for j in range(4):
    A('v_perm_b32 %s, %s, %s, %s' % (v(vFA + 2 * j), v(vWQb + j), v(vWQa + j), sSELLO))
    A('v_perm_b32 %s, %s, %s, %s' % (v(vFA + 2 * j + 1), v(vWQb + j), v(vWQa + j), sSELHI))
for e in range(8): A('v_dot2_f32_bf16 %s, %s, %s, 0' % (v(vY + e), v(vFA + e), v(vXR)))
for i in range(4): A('v_permlane32_swap_b32 %s, %s' % (v(vY + i), v(vY + 4 + i)))
for i in range(4): A('v_add_f32 %s, %s, %s' % (v(vY + i), v(vY + i), v(vY + 4 + i)))
for i in range(2): A('v_permlane16_swap_b32 %s, %s' % (v(vY + i), v(vY + 2 + i)))
for i in range(2): A('v_add_f32 %s, %s, %s' % (v(vY + i), v(vY + i), v(vY + 2 + i)))
dpp_add(vY, 8); dpp_add(vY + 1, 8)
A('ds_write_b64 %s, %s offset:%d' % (v(vT[5]), v(vY, 2), L_QACC))
A('s_waitcnt lgkmcnt(0)')
A('s_add_u32 %s, %s, 1' % (sTA, sTA))
A('s_barrier')
A('s_lshl4_add_u32 %s, %s, %s' % (sXT, sTA, sXT))
A('v_mov_b32 %s, %s' % (v(vG + 2), sTA))
A('v_mov_b32 %s, %s' % (v(vG + 3), sTB))
A('s_cmp_lg_u32 %s, 0' % sW)
A('s_cbranch_scc1 L_NOPUB1')
A('ds_read2st64_b64 %s, %s offset0:0 offset1:1' % (v(vY, 4), v(vT[6])) if False else 'ds_read2_b64 %s, %s offset0:%d offset1:%d' % (v(vY, 4), v(vT[6]), 0, 32))
A('ds_read2_b64 %s, %s offset0:%d offset1:%d' % (v(vY + 4, 4), v(vT[6]), 64, 96))
A('v_mov_b32 %s, %s' % (v(vG2), sXT))
A('s_add_u32 %s, %s, 0x%x' % (sC, sB, E1_FS))
A('s_waitcnt lgkmcnt(0)')
A('v_pk_add_f32 %s, %s, %s' % (v(vY, 2), v(vY, 2), v(vY + 2, 2)))
A('v_pk_add_f32 %s, %s, %s' % (v(vY + 4, 2), v(vY + 4, 2), v(vY + 6, 2)))
A('v_pk_add_f32 %s, %s, %s' % (v(vG, 2), v(vY, 2), v(vY + 4, 2)))
A('v_pk_add_f32 %s, %s, %s' % (v(vY, 2), v(vY, 2), v(vY + 4, 2)))
A('v_permlane32_swap_b32 %s, %s' % (v(vG), v(vY)))
A('v_permlane32_swap_b32 %s, %s' % (v(vG + 1), v(vY + 1)))
A('v_pk_add_f32 %s, %s, %s' % (v(vG, 2), v(vG, 2), v(vY, 2)))
A('s_mov_b32 exec_hi, 0')
stws(vG, oX, sB, False)
A('buffer_store_dword %s, %s, %s, %s offen' % (v(vG2), v(vT[8]), SRD_WS, sKV))
stws(vG, oX, sC, True)
set_exec(FULL)
A('L_NOPUB1:')
stamp(4)
A('s_barrier')
kdma(3); vdma(); vdma()
A('s_cmp_lt_u32 %s, 16' % sR)
A('s_cbranch_scc0 L_LA_G')
A('s_lshl_b32 %s, %s, 9' % (sF, sIDX))
A('s_add_u32 %s, %s, %s' % (sF, sF, sRB))
A('s_lshl_b32 %s, %s, 8' % (sF, sF))
A('v_lshl_or_b32 %s, %s, 10, %s' % (v(vT[2]), v(vT[2]), v(vCN)))
A('s_lshl_b32 s30, %s, 2' % s8K)
A('s_mov_b64 s[%d:%d], s[%d:%d]' % (pWG, pWG + 1, pWO, pWO + 1))
A('s_mov_b64 s[%d:%d], s[%d:%d]' % (pWU, pWU + 1, pWO, pWO + 1))
A('s_branch L_LA_GO')
A('L_LA_G:')
A('s_max_u32 %s, %s, 4' % (sC, sG))
A('s_sub_u32 %s, %s, %s' % (sC, sIDX, sC))
A('s_lshr_b32 %s, %s, 2' % (sROLE, sG))
A('s_add_u32 %s, %s, %s' % (sROLE, sROLE, sE))
A('s_cmp_eq_u32 %s, 8' % sROLE)
A('s_cselect_b32 %s, 2, 1' % sROLE)
A('s_lshl2_add_u32 %s, %s, %s' % (sIDX, sC, sRB))
A('s_mul_i32 %s, %s, 3584' % (sF, sRB))
A('s_add_u32 %s, %s, %s' % (sF, sF, sC))
A('s_lshl_b32 %s, %s, 7' % (sF, sF))
A('v_and_b32 %s, 0x70, %s' % (v(vCN), v(vCN)))
A('s_movk_i32 %s, 3584' % sC)
A('v_mad_u32_u24 %s, %s, %s, %s' % (v(vT[2]), v(vT[2]), sC, v(vCN)))
A('s_lshl_b32 s30, %s, 5' % sC)
A('L_LA_GO:')
A('v_cmp_lt_u32 vcc, 7, %s' % v(vT[3]))
A('v_add_u32 %s, %s, %s' % (v(vCN), sF, v(vT[2])))
A('v_mov_b32 %s, 0' % v(vCN + 1))
A('v_lshl_add_u64 %s, %s, 0, s[%d:%d]' % (v(vWA, 2), v(vCN, 2), pWG, pWG + 1))
A('v_lshl_add_u64 %s, %s, 0, s[%d:%d]' % (v(vCN + 2, 2), v(vCN, 2), pWU, pWU + 1))
A('v_cndmask_b32 %s, %s, %s, vcc' % (v(vWA), v(vWA), v(vCN + 2)))
A('v_cndmask_b32 %s, %s, %s, vcc' % (v(vWA + 1), v(vWA + 1), v(vCN + 3)))
A('v_mov_b32 %s, %s' % (v(vG2 + 3), sTA))
A('v_bfe_u32 %s, %s, 2, 2' % (v(vT[1]), v(vL)))
A('v_bfe_u32 %s, %s, 2, 3' % (v(vT[2]), v(vL)))
A('v_xor_b32 %s, %s, %s' % (v(vT[2]), v(vT[2]), v(vWv)))
A('v_and_b32 %s, 3, %s' % (v(vT[6]), v(vL)))
A('v_lshl_or_b32 %s, %s, 2, %s' % (v(vT[2]), v(vT[2]), v(vT[6])))
A('v_lshl_or_b32 %s, %s, 5, %s' % (v(vT[2]), v(vT[1]), v(vT[2])))
A('v_lshl_or_b32 %s, %s, 8, %s' % (v(vT[2]), v(vROW), v(vT[2])))
A('v_lshlrev_b32 %s, 3, %s' % (v(oTR), v(vT[2])))
A('v_and_b32 %s, 48, %s' % (v(vT[2]), v(vL)))
A('s_movk_i32 %s, %d' % (sC, QS))
A('v_mad_u32_u24 %s, %s, %s, %s' % (v(oFR), v(vT[6]), sC, v(vT[2])))
A('v_mad_u32_u24 %s, %s, %s, %s' % (v(oV), v(vT[1]), sC, v(vT[2])))
A('v_lshrrev_b32 %s, 1, v0' % v(vT[8]))
A('v_and_b32 %s, 0xf8, %s' % (v(vT[8]), v(vT[8])))
A('v_mad_u32_u24 %s, %s, %s, %s' % (v(vT[8]), v(vT[6]), sC, v(vT[8])))
A('v_lshl_or_b32 %s, %s, 5, %s' % (v(vT[4]), v(vWv), v(vT[7])))
A('v_mul_u32_u24 %s, %d, %s' % (v(vT[1]), 2 * E1_K, v(vPI)))
A('v_lshl_add_u32 %s, %s, 4, %s' % (v(vT[0]), v(vT[4]), v(vT[1])))
if NOFAST: A('s_add_u32 %s, %s, 0x%x' % (sA, sA, E1_FS))
A('s_add_u32 %s, %s, %d' % (sB, sA, E1_K))
A('v_lshl_or_b32 %s, %s, 1, %s' % (v(vT[1]), v(vT[4]), v(vPI)))
A('v_and_b32 %s, 6, %s' % (v(vT[4]), v(vWv)))
A('v_lshl_add_u32 %s, %s, 2, %s' % (v(vT[1]), v(vT[4]), v(vT[1])))
A('v_lshlrev_b32 %s, 1, %s' % (v(vT[1]), v(vT[1])))
A('v_xor_b32 %s, 64, %s' % (v(vA4 + 1), v(vA4)))
A('v_xor_b32 %s, 0x80, %s' % (v(vA4 + 2), v(vA4)))
A('v_xor_b32 %s, 64, %s' % (v(vA4 + 3), v(vA4 + 2)))
A('v_lshlrev_b32 %s, 5, %s' % (v(vT[7]), v(vT[6])))
A('v_lshl_add_u32 %s, %s, 2, %s' % (v(vT[3]), v(vWv), v(vT[7])))
A('v_lshlrev_b32 %s, 5, %s' % (v(vT[9]), v(vROW)))
A('v_lshl_or_b32 %s, %s, 15, %s' % (v(vT[10]), v(vROW), v(oW2)))
A('s_lshl_b32 %s, %s, 5' % (sKV, sG))
A('s_add_u32 %s, %s, %s' % (sKV, sKV, sW))
A('s_lshl_b32 %s, %s, 5' % (sKV, sKV))
A('s_add_u32 %s, %s, %s' % (sKV, sKV, sR))
A('s_add_u32 %s, %s, %s' % (sKV, sKV, s8K))
A('s_lshl_b32 %s, %s, 7' % (sKV, sKV))
A('s_mov_b32 %s, 0' % sFAST)
A('s_cmp_lg_u32 %s, 7' % sW)
A('s_cbranch_scc1 L_FL_DONE')
A('s_movk_i32 %s, 31' % sCNT)
A('s_mov_b32 s8, %s' % sXT); A('s_mov_b32 s9, %s' % sXT)
A('L_FL:')
if STAMPS:
    for pc in range(4):
        A('s_load_dwordx8 s[40:47], s[10:11], %d' % (32 * pc))
        A('s_waitcnt lgkmcnt(0)')
        for k in range(4):
            A('s_cmp_eq_u64 s[%d:%d], s[8:9]' % (40 + 2 * k, 41 + 2 * k))
            A('s_cbranch_scc0 L_FL_NO')
else:
    A('s_load_dwordx16 s[64:79], s[10:11], 0')
    A('s_load_dwordx16 s[80:95], s[10:11], 64')
    A('s_waitcnt lgkmcnt(0)')
    for k in range(16):
        A('s_cmp_eq_u64 s[%d:%d], s[8:9]' % (64 + 2 * k, 65 + 2 * k))
        A('s_cbranch_scc0 L_FL_NO')
A('s_mov_b32 %s, %d' % (sFAST, 0 if NOFAST else 1))
A('s_branch L_FL_W')
A('L_FL_NO:')
if FSLEEP: A('s_sleep %d' % FSLEEP)
A('s_addk_i32 s10, 128')
A('s_sub_u32 %s, %s, 1' % (sCNT, sCNT))
A('s_cbranch_scc0 L_FL')
A('L_FL_W:')
A('v_mov_b32 %s, %s' % (v(vP1), sFAST))
A('ds_write_b32 %s, %s offset:%d' % (v(vZ), v(vP1), L_FLG))
A('L_FL_DONE:')
A('s_barrier')
stamp(5)
e1l = [ldws(vP0, vT[0], sA), ldws(vP0 + 4, vT[0], sB)]
for l in e1l: A(l)
A('s_barrier')
vdma(); vdma()
A(ldws(vCS, vT[10], sKV))
A('s_waitcnt vmcnt(3)')
for j in range(4): A('ds_read_b128 %s, %s offset:%d' % (v(vK + 4 * j, 4), v(vA4 + j), L_K))
for i, gq in enumerate((vP0, vP0 + 4)): chk_tags(i, gq, vY + i)
A('v_or_b32 %s, %s, %s' % (v(vY), v(vY), v(vY + 1)))
A('v_cmp_ne_u32 vcc, 0, %s' % v(vY))
A('s_cbranch_vccnz L_E1_RETRY')
A('L_E1_OK:')
stamp(15)
A('v_pk_add_f32 %s, %s, %s' % (v(vP0, 2), v(vP0, 2), v(vP0 + 4, 2)))
A('s_cmp_lg_u32 %s, 0' % sROLE)
A('v_permlane32_swap_b32 %s, %s' % (v(vP0), v(vP0 + 1)))
A('v_add_f32 %s, %s, %s' % (v(vP0), v(vP0), v(vP0 + 1)))
cvt(vP0, vP0, vP0)
A('ds_write_b16 %s, %s offset:%d' % (v(vT[1]), v(vP0), L_Q))
A('s_cbranch_scc1 L_NT1')
tone(); tone()
A('L_NT1:')
bar()
for j in range(4): A('ds_read_b128 %s, %s offset:%d' % (v(vFB + 4 * j, 4), v(oFR), L_Q + 64 * j))
A('ds_read_b32 %s, %s offset:%d' % (v(vFA + 8), v(vZ), L_FLG))
stamp(6)
A('v_mov_b32 %s, 0x%x' % (v(vCN), SCALE))
for j in range(4):
    A('s_waitcnt lgkmcnt(%d)' % (4 - j))
    mfma(vACC, vK + 4 * j, vFB + 4 * j, j == 0)
A('s_waitcnt lgkmcnt(0)')
A('v_readfirstlane_b32 %s, %s' % (sFAST, v(vFA + 8)))
S = vY
for h in range(2): cvt(vT[4 + h], vACC + 2 * h, vACC + 2 * h + 1)
for h in range(2): lo16(S + 2 * h, vT[4 + h]); hi16(S + 2 * h + 1, vT[4 + h])
for i in range(4): A('v_mul_f32 %s, %s, %s' % (v(S + i), v(vCN), v(S + i)))
for h in range(2): cvt(vT[4 + h], S + 2 * h, S + 2 * h + 1)
for h in range(2): lo16(S + 2 * h, vT[4 + h]); hi16(S + 2 * h + 1, vT[4 + h])
A('v_max3_f32 %s, %s, %s, %s' % (v(vT[4]), v(S), v(S + 1), v(S + 2)))
A('v_max_f32 %s, %s, %s' % (v(vT[4]), v(vT[4]), v(S + 3)))
allred_rows(vT[4], vT[5], 'max')
A('ds_write_b32 %s, %s offset:%d' % (v(vT[3]), v(vT[4]), L_MAX))
A('s_cmp_lg_u32 %s, 0' % sROLE)
bar()
A('ds_read_b128 %s, %s offset:%d' % (v(vFA, 4), v(vT[7]), L_MAX))
A('ds_read_b128 %s, %s offset:%d' % (v(vFA + 4, 4), v(vT[7]), L_MAX + 16))
if GD:
    A('s_cbranch_scc0 L_NT2A')
    A('s_cmp_eq_u32 %s, 2' % sROLE)
    A('s_cbranch_scc1 L_NT2')
    ddma()
    if GS6 < 2:
        for i in range(GS6): tone()
        A('s_branch L_NT2')
    A('L_NT2A:')
else:
    A('s_cbranch_scc1 L_NT2')
tone(); tone()
A('L_NT2:')
A('s_waitcnt lgkmcnt(0)')
A('v_max3_f32 %s, %s, %s, %s' % (v(vT[4]), v(vFA), v(vFA + 1), v(vFA + 2)))
A('v_max3_f32 %s, %s, %s, %s' % (v(vT[5]), v(vFA + 3), v(vFA + 4), v(vFA + 5)))
A('v_max3_f32 %s, %s, %s, %s' % (v(vT[4]), v(vT[4]), v(vFA + 6), v(vFA + 7)))
A('v_max_f32 %s, %s, %s' % (v(vT[4]), v(vT[4]), v(vT[5])))
A('v_mul_f32 %s, %s, %s' % (v(vCN), sLG, v(vT[4])))
for i in range(4): A('v_fma_f32 %s, %s, %s, -%s' % (v(S + i), v(S + i), sLG, v(vCN)))
for i in range(4): A('v_exp_f32 %s, %s' % (v(S + i), v(S + i)))
A('v_lshrrev_b32 %s, 2, %s' % (v(vCN + 1), v(vT[2])))
cvt(S + 4, S, S + 1)
A('v_add_f32 %s, %s, %s' % (v(vT[4]), v(S), v(S + 1)))
cvt(S + 5, S + 2, S + 3)
A('v_add_f32 %s, %s, %s' % (v(vT[5]), v(S + 2), v(S + 3)))
A('ds_write_b64 %s, %s offset:%d' % (v(vT[8]), v(S + 4, 2), L_P))
A('ds_bpermute_b32 %s, %s, %s' % (v(vP1), v(vCN + 1), v(vCN)))
A('v_add_f32 %s, %s, %s' % (v(vT[4]), v(vT[4]), v(vT[5])))
allred_rows(vT[4], vT[5], 'add')
A('ds_write_b32 %s, %s offset:%d' % (v(vT[3]), v(vT[4]), L_LS))
stamp(7)
A('s_cmp_eq_u32 %s, 0' % sROLE)
A('s_waitcnt vmcnt(5)')
A('s_cbranch_scc1 L_WV')
if GD:
    A('s_cmp_eq_u32 %s, 1' % sROLE)
    A('s_waitcnt vmcnt(%d)' % (3 + GS6))
    A('s_cbranch_scc1 L_WV')
A('s_waitcnt vmcnt(1)')
A('L_WV:')
bar()
A('ds_read_b128 %s, %s offset:%d' % (v(vY, 4), v(vT[9]), L_LS))
A('ds_read_b128 %s, %s offset:%d' % (v(vY + 4, 4), v(vT[9]), L_LS + 16))
for b in range(4):
    A('ds_read_b128 %s, %s offset:%d' % (v(vFB + 4 * b, 4), v(oV), L_P + 64 * b))
    A('ds_read_b64_tr_b16 %s, %s offset:%d' % (v(vFA + 4 * b, 2), v(oTR), L_V + 8192 * b))
    A('ds_read_b64_tr_b16 %s, %s offset:%d' % (v(vFA + 4 * b + 2, 2), v(oTR), L_V + 8192 * b + 1024))
A('s_lshl3_add_u32 %s, %s, %s' % (sA, sIDX, sW))
A('s_addk_i32 %s, %d' % (sA, WS_E2 // 4096))
A('s_lshl_b32 %s, %s, 12' % (sA, sA))
A('s_waitcnt lgkmcnt(12)')
A('v_pk_add_f32 %s, %s, %s' % (v(vY, 2), v(vY, 2), v(vY + 2, 2)))
A('v_pk_add_f32 %s, %s, %s' % (v(vY + 4, 2), v(vY + 4, 2), v(vY + 6, 2)))
A('v_pk_add_f32 %s, %s, %s' % (v(vY, 2), v(vY, 2), v(vY + 4, 2)))
A('v_add_f32 %s, %s, %s' % (v(vY), v(vY), v(vY + 1)))
for b in range(4):
    A('s_waitcnt lgkmcnt(%d)' % (9 - 3 * b))
    mfma(vACC, vFB + 4 * b, vFA + 4 * b, b == 0)
A('v_log_f32 %s, %s' % (v(vG2 + 2), v(vY)))
A('v_rcp_f32 %s, %s' % (v(vY), v(vY)))
A('v_lshl_or_b32 %s, %s, 3, %s' % (v(vT[3]), v(vPI), v(vCC)))
A('v_add_f32 %s, %s, %s' % (v(vG2 + 2), v(vG2 + 2), v(vP1)))
A('v_lshl_or_b32 %s, %s, 4, %s' % (v(vT[3]), v(vWv), v(vT[3])))
A('v_lshlrev_b32 %s, 1, %s' % (v(vT[3]), v(vT[3])))
A('v_mul_f32 %s, %s, %s' % (v(vG2), v(vACC), v(vY)))
movdpp(vG2 + 1, vG2, 'row_ror:8')
set_exec(0x00ff00ff00ff00ff)
st_grp(vG2, vT[10], sKV)
set_exec(FULL)
stamp(8)
A('s_cmp_eq_u32 %s, 1' % sROLE)
A('s_cbranch_scc1 L_GT')
A('s_cmp_eq_u32 %s, 2' % sROLE)
A('s_cbranch_scc1 L_FIN0')
g4 = [vP0, vP0 + 4, vP1, vP1 + 4]
l4 = [ldws(g4[i], oX, sA, 1024 * i) for i in range(4)]
for l in l4: A(l)
A('v_add_u32 %s, 0x%x, %s' % (v(vT[1]), L_W, v(oTR)))
A('s_lshl3_add_u32 %s, %s, %s' % (sKV, sRB, sW))
A('s_lshl_b32 %s, %s, 5' % (sKV, sKV))
A('s_add_u32 %s, %s, %s' % (sKV, sKV, sIDX))
A('s_mulk_i32 %s, %d' % (sKV, LS3))
A('s_add_u32 %s, %s, 0x%x' % (sKV, sKV, WS_E3))
if NC > 1:
    A('v_lshrrev_b32 %s, 3, %s' % (v(vT[4]), v(vL)))
    A('v_mul_u32_u24 %s, %d, %s' % (v(vT[4]), 1024 * LS3, v(vT[4])))
    A('v_add_u32 %s, %s, %s' % (v(vT[4]), v(vT[4]), v(oW2)))
    A('v_and_b32 %s, 8, %s' % (v(vT[6]), v(vL)))
    A('v_cmp_ne_u32 %s, 0, %s' % (sMSK, v(vT[6])))
def wtr():
    for b in range(4):
        A('ds_read_b64_tr_b16 %s, %s offset:%d' % (v(vW1 + 4 * b, 2), v(vT[1]), 8192 * b))
        A('ds_read_b64_tr_b16 %s, %s offset:%d' % (v(vW1 + 4 * b + 2, 2), v(vT[1]), 8192 * b + 1024))
if WPRE:
    A('s_waitcnt vmcnt(5)')
    A('s_barrier')
    wtr()
def lammax():
    A('v_max3_f32 %s, %s, %s, %s' % (v(vT[5]), v(g4[0] + 2), v(g4[1] + 2), v(g4[2] + 2)))
    A('v_max_f32 %s, %s, %s' % (v(vT[5]), v(vT[5]), v(g4[3] + 2)))
mpoll(l4, g4, chk_lam, first_in_flight=True, extra=lammax)
stamp(10)
dpp_add(vT[5], 8, 'max')
allred_rows(vT[5], vT[6], 'max')
for i in range(4): A('v_sub_f32 %s, %s, %s' % (v(g4[i] + 2), v(g4[i] + 2), v(vT[5])))
for i in range(4): A('v_exp_f32 %s, %s' % (v(g4[i] + 2), v(g4[i] + 2)))
A('v_mul_f32 %s, %s, %s' % (v(vP0), v(vP0 + 2), v(vP0)))
A('v_mul_f32 %s, %s, %s' % (v(vP0 + 1), v(vP0 + 2), v(vP0 + 1)))
for i in range(1, 4):
    A('v_fmac_f32 %s, %s, %s' % (v(vP0), v(g4[i] + 2), v(g4[i])))
    A('v_fmac_f32 %s, %s, %s' % (v(vP0 + 1), v(g4[i] + 2), v(g4[i] + 1)))
    A('v_add_f32 %s, %s, %s' % (v(vP0 + 2), v(vP0 + 2), v(g4[i] + 2)))
A('v_mov_b32 %s, %s' % (v(vP0 + 3), v(vP0 + 2)))
A('v_permlane32_swap_b32 %s, %s' % (v(vP0), v(vP0 + 1)))
A('v_permlane32_swap_b32 %s, %s' % (v(vP0 + 2), v(vP0 + 3)))
A('v_add_f32 %s, %s, %s' % (v(vP0), v(vP0), v(vP0 + 1)))
A('v_add_f32 %s, %s, %s' % (v(vP0 + 2), v(vP0 + 2), v(vP0 + 3)))
A('v_mov_b32 %s, %s' % (v(vP0 + 1), v(vP0)))
A('v_mov_b32 %s, %s' % (v(vP0 + 3), v(vP0 + 2)))
A('v_permlane16_swap_b32 %s, %s' % (v(vP0), v(vP0 + 1)))
A('v_permlane16_swap_b32 %s, %s' % (v(vP0 + 2), v(vP0 + 3)))
A('v_add_f32 %s, %s, %s' % (v(vP0 + 2), v(vP0 + 2), v(vP0 + 3)))
A('v_add_f32 %s, %s, %s' % (v(vP0), v(vP0), v(vP0 + 1)))
dpp_add(vP0 + 2, 8); dpp_add(vP0, 8)
A('v_rcp_f32 %s, %s' % (v(vP0 + 2), v(vP0 + 2)))
A('v_mul_f32 %s, %s, %s' % (v(vP0), v(vP0), v(vP0 + 2)))
cvt(vP0, vP0, vP0)
A('ds_write_b16 %s, %s offset:%d' % (v(vT[3]), v(vP0), L_ACC))
bar()
stamp(9)
for b in range(4):
    A('ds_read_b128 %s, %s offset:%d' % (v(vFB + 4 * b, 4), v(vT[2]), L_ACC + 64 * b))
    if not WPRE:
        A('ds_read_b64_tr_b16 %s, %s offset:%d' % (v(vW1 + 4 * b, 2), v(vT[1]), 8192 * b))
        A('ds_read_b64_tr_b16 %s, %s offset:%d' % (v(vW1 + 4 * b + 2, 2), v(vT[1]), 8192 * b + 1024))
for b in range(4):
    A('s_waitcnt lgkmcnt(%d)' % ((3 - b) if WPRE else (9 - 3 * b)))
    mfma(vACC, vFB + 4 * b, vW1 + 4 * b, b == 0)
A('s_cmp_eq_u32 %s, 0' % sRB)
if NC > 1:
    movdpp(vT[6], vACC, 'row_ror:8')
    A('v_cndmask_b32 %s, %s, %s, %s' % (v(vG), v(vACC + 1), v(vT[6]), sMSK))
    A('v_cndmask_b32 %s, %s, %s, %s' % (v(vG + 1), v(vT[6]), v(vACC + 1), sMSK))
    stws(vG, vT[4], sKV)
else:
    movdpp(vG + 1, vACC, 'row_ror:8')
    A('v_mov_b32 %s, %s' % (v(vG), v(vACC + 1)))
    set_exec(0xff)
    stws(vG, oX, sKV)
    set_exec(FULL)
stamp(11)
A('s_cbranch_scc1 L_RED')
A('L_FIN0:')
fin()
A('L_END0:')
A('s_endpgm')
A('L_GT:')
a.hist = []
A('s_barrier')
for i in range(4 - GS6): tone()
if not GD: ddma()
if DG: A('s_memrealtime s[64:65]')
A('s_branch L_ROLE_G')
A('L_PAGE0_END:')
if not STAMPS:
    a.raw('.if (L_PAGE0_END - %s_kernel) > 4096\n.error "page 0 overflow"\n.endif' % NAME)
    a.raw('.fill (4096 - (L_PAGE0_END - %s_kernel)) / 4, 4, 0xbf800000' % NAME)
A('L_ROLE_G:')
a.hist = []
if DG == 1: A('s_memrealtime s[66:67]')
A('s_lshl_b32 %s, %s, 12' % (sJ := 's28', sIDX))
A('s_add_u32 %s, %s, 0x%x' % (sJ, sJ, WS_E4))
A('v_lshlrev_b32 %s, 4, v0' % v(vT[5]))
A('v_and_b32 %s, 0xff0, %s' % (v(vT[5]), v(vT[5])))
A(ldws(vCS, vT[5], sJ))
A('s_lshl_b32 %s, %s, 8' % (sC, sRB))
A('buffer_load_ushort %s, %s, %s, %s offen' % (v(vXR), v(vT[3]), srd(SRD_X), sC))
A('s_and_b32 %s, %s, 1' % (sE, sW))
A('s_lshl_b32 %s, %s, 2' % (sE, sE))
A('s_lshr_b32 %s, %s, 1' % (sD, sW))
A('s_or_b32 %s, %s, %s' % (sC, sE, sD))
A('s_xor_b32 %s, %s, %s' % (sC, sC, sW))
A('s_lshl_b32 %s, %s, 5' % (sC, sC))
A('v_xor_b32 %s, %s, %s' % (v(vT[1]), sC, v(oTR)))
A('v_add_u32 %s, 0x%x, %s' % (v(vT[1]), L_W, v(vT[1])))
sDST = 's33'
A('s_andn2_b32 %s, %s, 3' % (sDST, sIDX))
A('s_add_u32 %s, %s, %s' % (sDST, sDST, sD))
A('s_lshl_b32 %s, %s, 12' % (sDST, sDST))
A('s_add_u32 %s, %s, 0x%x' % (sDST, sDST, WS_E4))
A('s_add_u32 %s, %s, %s' % (sE, sE, sRB))
A('v_lshrrev_b32 %s, 1, %s' % (v(vT[4]), v(vCC)))
A('v_lshlrev_b32 %s, 8, %s' % (v(vT[4]), v(vT[4])))
A('v_and_b32 %s, 1, %s' % (v(vT[6]), v(vL)))
A('v_lshl_or_b32 %s, %s, 4, %s' % (v(vT[4]), v(vT[6]), v(vT[4])))
A('v_lshl_add_u32 %s, %s, 5, %s' % (v(vT[4]), sE, v(vT[4])))
A('s_lshl_b32 %s, %s, 4' % (sE, sE))
A('s_add_u32 %s, %s, 2048' % (sE, sE))
A('v_mov_b32 %s, %s' % (v(vT[7]), sE))
A('v_cmp_eq_u32 s[10:11], 8, %s' % v(vL))
A('v_and_b32 %s, 8, %s' % (v(vT[6]), v(vL)))
A('v_cmp_ne_u32 %s, 0, %s' % (sMSK, v(vT[6])))
A('v_cndmask_b32 %s, %s, %s, s[10:11]' % (v(oFR), v(vT[4]), v(vT[7])))
A('s_add_u32 %s, %s, 1024' % (sE, sDST))
A('v_and_b32 %s, 14, %s' % (v(oWQ), v(vL)))
A('v_lshlrev_b32 %s, 3, %s' % (v(oWQ), v(oWQ)))
A('s_lshl3_add_u32 %s, %s, %s' % (sA, sRB, sW))
if NC > 1:
    A('s_lshl_b32 %s, %s, 5' % (sC, sG))
    A('s_add_u32 %s, %s, %s' % (sA, sA, sC))
A('s_mul_i32 %s, %s, %d' % (sA, sA, 32 * LS3))
A('s_add_u32 %s, %s, 0x%x' % (sA, sA, WS_E3))
for i_, r_ in enumerate(('s48', 's49', 's50')): A('s_add_u32 %s, %s, %d' % (r_, sA, 8 * LS3 * (i_ + 1)))
A('v_lshrrev_b32 %s, 3, %s' % (v(vT[0]), v(vL)))
A('v_mul_u32_u24 %s, %d, %s' % (v(vT[0]), LS3, v(vT[0])))
A('v_add_u32 %s, %s, %s' % (v(vT[0]), v(vT[0]), v(oW2)))
l4 = [ldws(g4[i], vT[0], (sA, 's48', 's49', 's50')[i]) for i in range(4)]
A('s_lshl_b32 %s, %s, 9' % (sB, sW))
A('s_add_u32 %s, %s, %s' % (sB, sB, sIDX))
A('s_mul_i32 %s, %s, %d' % (sB, sB, LS5))
A('s_add_u32 %s, %s, 0x%x' % (sB, sB, WS_E5))
A('v_mul_u32_u24 %s, %d, %s' % (v(oV), 128 * LS5, v(vROW)))
A('v_add_u32 %s, %s, %s' % (v(oV), v(oV), v(oW2)))
A('v_bfe_u32 %s, %s, 3, 1' % (v(vT[6]), v(vL)))
A('v_lshl_or_b32 %s, %s, 1, %s' % (v(vT[6]), v(vROW), v(vT[6])))
A('v_bfe_u32 %s, %s, 2, 1' % (v(vT[7]), v(vL)))
A('v_and_b32 %s, 3, %s' % (v(oK), v(vT[6])))
A('v_lshl_or_b32 %s, %s, 2, %s' % (v(oK), v(vT[7]), v(oK)))
A('v_lshl_or_b32 %s, %s, 3, %s' % (v(vT[6]), v(vT[7]), v(vT[6])))
A('v_lshlrev_b32 %s, 2, %s' % (v(vT[7]), v(vWv)))
A('v_xor_b32 %s, %s, %s' % (v(oK), v(oK), v(vT[7])))
A('v_lshlrev_b32 %s, 5, %s' % (v(oK), v(oK)))
A('v_lshl_or_b32 %s, %s, 10, %s' % (v(oK), v(vT[6]), v(oK)))
A('v_and_b32 %s, 3, %s' % (v(vT[6]), v(vL)))
A('v_lshl_or_b32 %s, %s, 3, %s' % (v(oK), v(vT[6]), v(oK)))
A('v_cmp_eq_u32 s[98:99], 1, %s' % v(vROW))
for i in range(4): A('v_mov_b32 %s, %s' % (v(vA4 + i), sONE))
A('s_waitcnt vmcnt(0)')
A('s_barrier')
if DG == 2: A('s_memrealtime s[66:67]')
stamp(9)
for l in l4: A(l)
for b in range(4):
    A('ds_read_b64_tr_b16 %s, %s offset:%d' % (v(vW1 + 4 * b, 2), v(vT[1]), 8192 * b))
    A('ds_read_b64_tr_b16 %s, %s offset:%d' % (v(vW1 + 4 * b + 2, 2), v(vT[1]), 8192 * b + 1024))
for t4 in range(4):
    if t4: A('v_xor_b32 %s, %d, %s' % (v(vT[6]), 32 * t4, v(oK)))
    A('ds_read_b64_tr_b16 %s, %s offset:%d' % (v(vW2 + 2 * t4, 2), v(vT[6] if t4 else oK), L_K))
lo16(vXR, vXR)
A('s_waitcnt lgkmcnt(0)')
for b in range(4): mfma(vACC, vA4, vW1 + 4 * b, b == 0)
A('v_mov_b32 %s, %s' % (v(vG), v(vACC)))
movdpp(vG + 1, vACC, 'row_ror:8')
set_exec(0xff)
st_grp(vG, vT[4], sE)
set_exec(FULL)
stamp(10)
mpoll(l4, g4, chk_tags, first_in_flight=True)
if DG == 3: A('s_memrealtime s[66:67]')
stamp(11)
A('v_pk_add_f32 %s, %s, %s' % (v(vP0, 2), v(vP0, 2), v(vP0 + 4, 2)))
A('v_pk_add_f32 %s, %s, %s' % (v(vP1, 2), v(vP1, 2), v(vP1 + 4, 2)))
A('v_pk_add_f32 %s, %s, %s' % (v(vP0, 2), v(vP0, 2), v(vP1, 2)))
red8(vP0)
resid1(vP0, vXR)
A('ds_write_b16 %s, %s offset:%d' % (v(vT[3]), v(vP0), L_ACC))
bar()
for b in range(4): A('ds_read_b128 %s, %s offset:%d' % (v(vFB + 4 * b, 4), v(vT[2]), L_ACC + 64 * b))
A('s_bitcmp1_b32 %s, 0' % sW)
A('s_cbranch_scc1 L_ST_UP')
for b in range(4):
    A('s_waitcnt lgkmcnt(%d)' % (3 - b))
    mfma(vACC, vFB + 4 * b, vW1 + 4 * b, b == 0)
    mfma(vY, vFB + 4 * b, vFB + 4 * b, b == 0)
A('s_branch L_ST_GO')
A('L_ST_UP:')
a.hist = []
for b in range(4):
    A('s_waitcnt lgkmcnt(%d)' % (3 - b))
    mfma(vACC, vFB + 4 * b, vW1 + 4 * b, b == 0)
    mfma(vY, vFB + 4 * b, vA4, b == 0)
A('L_ST_GO:')
movdpp(vG + 1, vACC, 'row_ror:8')
A('v_cndmask_b32 %s, %s, %s, s[10:11]' % (v(vG), v(vACC + 1), v(vY)))
set_exec(0x1ff)
st_grp(vG, oFR, sDST)
set_exec(FULL)
stamp(12)
mpoll([ldws(vP0, oX, sJ), ldws(vP0 + 4, oWQ, sJ, 2048), ldws(vCS, oX, sJ, 1024)], [vP0, vP0 + 4, vCS], chk_tags)
stamp(13)
PR = ((vP0 + 4, vP0 + 5), (vP0, vP0 + 2), (vP0 + 1, vP0 + 3), (vCS, vCS + 2), (vCS + 1, vCS + 3))
for r, d in PR: dpp(r, r, 'quad_perm:[2,3,0,1]')
for r, d in PR: A('v_add_f32_dpp %s, %s, %s row_shr:4 row_mask:0xf bank_mask:0xa' % (v(d), v(r), v(r)))
for r, d in PR: A('v_add_f32_dpp %s, %s, %s row_shl:4 row_mask:0xf bank_mask:0x5' % (v(d), v(r), v(r)))
movdpp(vP0 + 4, vP0 + 5, 'row_ror:8')
A('v_cndmask_b32 %s, %s, %s, %s' % (v(vP0 + 6), v(vP0 + 4), v(vP0 + 5), sMSK))
A('v_cndmask_b32 %s, %s, %s, %s' % (v(vP0 + 7), v(vP0 + 5), v(vP0 + 4), sMSK))
ln_stats(vP0 + 6, vP0 + 7, vT[5], vT[6], vT[7])
for i in range(2): A('v_fma_f32 %s, -%s, %s, %s' % (v(vP0 + i), v(vT[5]), v(vCS + 2 + i), v(vP0 + 2 + i)))
for i in range(2): A('v_mul_f32 %s, %s, %s' % (v(vP0 + i), v(vP0 + i), v(vT[6])))
cvt(vT[7], vP0, vP0 + 1)
lo16(vP0, vT[7]); hi16(vP0 + 1, vT[7])
A('v_max_f32 %s, 0, %s' % (v(vP0 + 2), v(vP0)))
A('v_max_f32 %s, 0, %s' % (v(vP0 + 3), v(vP0 + 1)))
A('v_cndmask_b32 %s, %s, %s, %s' % (v(vP0), v(vP0 + 2), v(vP0), sMSK))
A('v_cndmask_b32 %s, %s, %s, %s' % (v(vP0 + 1), v(vP0 + 3), v(vP0 + 1), sMSK))
dpp(vP0, vP0, 'row_ror:8', 'mul'); dpp(vP0 + 1, vP0 + 1, 'row_ror:8', 'mul')
cvt(vT[7], vP0, vP0 + 1)
movdpp(vX4, vT[7], 'quad_perm:[0,0,2,2]'); movdpp(vX4 + 1, vT[7], 'quad_perm:[1,1,3,3]')
for t4 in range(4):
    A('v_mfma_f32_16x16x16_bf16 %s, %s, %s, 0' % (v(vFA + 4 * t4, 4), v(vX4, 2), v(vW2 + 2 * t4, 2)))
A('v_cndmask_b32 %s, %s, %s, s[98:99]' % (v(vG), v(vFA), v(vFA + 4)))
A('s_mov_b32 exec_lo, 0')
A('v_mov_b32 %s, %s' % (v(vG), v(vFA + 8)))
A('s_mov_b32 exec_hi, %s' % sHI)
A('v_mov_b32 %s, %s' % (v(vG), v(vFA + 12)))
set_exec(FULL)
movdpp(vG + 1, vG, 'row_ror:8')
set_exec(0x00ff00ff00ff00ff)
stws(vG, oV, sB)
set_exec(FULL)
if DG:
    A('s_waitcnt lgkmcnt(0)')
    A('s_sub_u32 s68, s66, s64')
    A('s_lshl_b32 s68, s68, 3')
    A('s_min_u32 s68, s68, 20000')
    A('s_memrealtime s[70:71]')
    A('s_waitcnt lgkmcnt(0)')
    A('L_DG2:')
    A('s_memrealtime s[72:73]')
    A('s_waitcnt lgkmcnt(0)')
    A('s_sub_u32 s69, s72, s70')
    A('s_cmp_lt_u32 s69, s68')
    A('s_cbranch_scc1 L_DG2')
stamp(14)
fin()
A('L_RED:')
a.hist = []
if OPT('rbar', 1): A('s_barrier')
A('s_load_dwordx2 s[20:21], s[0:1], 72')
A('s_mov_b64 s[22:23], s[%d:%d]' % (SRD_X + 2, SRD_X + 3))
A('v_lshrrev_b32 %s, 3, v0' % v(vT[4]))
A('v_and_b32 %s, 31, %s' % (v(vT[0]), v(vT[4])))
A('v_mul_u32_u24 %s, %d, %s' % (v(vT[0]), LS3, v(vT[0])))
A('v_add_u32 %s, %s, %s' % (v(vT[0]), v(vT[0]), v(oW2)))
A('v_mul_u32_u24 %s, %d, %s' % (v(vT[4]), LS5, v(vT[4])))
A('v_add_u32 %s, %s, %s' % (v(vT[4]), v(vT[4]), v(oW2)))
A('s_lshl_b32 %s, %s, 5' % (sA, sG))
A('s_add_u32 %s, %s, %s' % (sA, sIDX, sA if NC > 1 else '0'))
A('s_mul_i32 %s, %s, %d' % (sA, sA, 32 * LS3))
A('s_add_u32 %s, %s, 0x%x' % (sA, sA, WS_E3))
A('v_lshlrev_b32 %s, 1, %s' % (v(vT[1]), v(vL15)))
A('s_lshl_b32 %s, %s, 5' % (sD, sIDX))
A('buffer_load_ushort %s, %s, %s, %s offen' % (v(vX4), v(vT[1]), srd(SRD_X), sD))
A('v_lshl_or_b32 %s, %s, 3, %s' % (v(vT[2]), v(vPI), v(vCC)))
A('v_lshl_or_b32 %s, %s, 3, %s' % (v(vT[2]), v(vT[2]), v(vWv)))
A('v_lshlrev_b32 %s, 2, %s' % (v(vT[2]), v(vT[2])))
A('v_lshlrev_b32 %s, 5, %s' % (v(vT[3]), v(vL15)))
A('v_lshl_or_b32 %s, %s, 3, %s' % (v(vT[3]), v(vROW), v(vT[3])))
A('s_mul_i32 %s, %s, %d' % (sB, sIDX, 128 * LS5))
A('s_add_u32 %s, %s, 0x%x' % (sB, sB, WS_E5))
A('s_cmp_lt_u32 %s, 6' % sW)
A('s_cselect_b32 %s, %d, 0' % (sC, 64 * LS5))
A('s_cselect_b32 %s, 1.0, 0' % sE)
A('s_add_u32 %s, %s, %s' % (sC, sC, sB))
mpoll([ldws(vP0, vT[0], sA)], [vP0], chk_tags)
red8(vP0)
A('ds_write_b32 %s, %s offset:%d' % (v(vT[2]), v(vP0), L_R1))
lo16(vX4, vX4)
bar()
A('ds_read_b64 %s, %s offset:%d' % (v(vP1, 2), v(vT[3]), L_R1))
A('s_waitcnt lgkmcnt(0)')
A('v_add_f32 %s, %s, %s' % (v(vP1), v(vP1), v(vP1 + 1)))
allred_rows(vP1, vP1 + 1, 'add', (16,))
resid1(vP1, vX4)
lo16(vX4, vP1)
stamp(12)
mpoll([ldws(vP0, vT[4], sB), ldws(vP0 + 4, vT[4], sC)], [vP0, vP0 + 4], chk_tags)
stamp(13)
A('s_cmp_lt_u32 %s, 6' % sW)
A('s_cbranch_scc0 L_R_ONE')
A('v_pk_add_f32 %s, %s, %s' % (v(vP0, 2), v(vP0, 2), v(vP0 + 4, 2)))
A('L_R_ONE:')
red8(vP0)
A('ds_write_b32 %s, %s offset:%d' % (v(vT[2]), v(vP0), L_R2))
bar()
A('s_cmp_lg_u32 %s, 0' % sW)
A('s_cbranch_scc1 L_FIN')
A('ds_read_b64 %s, %s offset:%d' % (v(vP0, 2), v(vT[3]), L_R2))
A('s_waitcnt lgkmcnt(0)')
A('v_add_f32 %s, %s, %s' % (v(vP0), v(vP0), v(vP0 + 1)))
allred_rows(vP0, vP0 + 1, 'add')
resid1(vP0, vX4)
set_exec(0xffff)
A('buffer_store_short %s, %s, %s, %s offen' % (v(vP0), v(vT[1]), SRD_OUT, sD))
A('s_cmp_lg_u32 %s, 0' % sIDX)
A('s_cbranch_scc1 L_NOEP')
set_exec(1)
A('buffer_store_dword %s, %s, %s, 0 offen offset:%d' % (v(vG + 2), v(vT[1]), SRD_WS, WS_EPOCH))
if DIAG >= 0:
    stamp(14)
    A('s_waitcnt lgkmcnt(0)')
    A('s_sub_u32 s68, s66, s64')
    A('s_lshl_b32 s68, s68, 3')
    A('s_min_u32 s68, s68, 20000')
    A('s_memrealtime s[70:71]')
    A('s_waitcnt lgkmcnt(0)')
    A('L_DG:')
    A('s_memrealtime s[72:73]')
    A('s_waitcnt lgkmcnt(0)')
    A('s_sub_u32 s69, s72, s70')
    A('s_cmp_lt_u32 s69, s68')
    A('s_cbranch_scc1 L_DG')
A('L_NOEP:')
set_exec(FULL)
if DIAG < 0: stamp(14)
A('L_FIN:')
if STAMPS:
    A('s_waitcnt lgkmcnt(0)')
    A('v_mov_b32 %s, 0' % v(vT[8]))
    for i in range(16): A('v_writelane_b32 %s, s%d, %d' % (v(vT[8]), 64 + 2 * i, i))
    A('s_lshl_b32 %s, s2, 9' % sB)
    A('s_lshl_b32 %s, %s, 6' % (sC, sW))
    A('s_add_u32 %s, %s, %s' % (sB, sB, sC))
    A('s_add_u32 %s, %s, 0x%x' % (sB, sB, WS_ST))
    A('v_lshlrev_b32 %s, 2, %s' % (v(vT[9]), v(vL)))
    set_exec(0xffff)
    A('buffer_store_dword %s, %s, %s, %s offen' % (v(vT[8]), v(vT[9]), SRD_WS, sB))
A('s_endpgm')
A('L_E1_RETRY:')
a.hist = []
A('s_mov_b32 %s, 0x%x' % (sC, (-E1_FS if NOFAST else E1_FS) & 0xffffffff))
def flip():
    A('s_add_u32 %s, %s, %s' % (sA, sA, sC))
    A('s_add_u32 %s, %s, %s' % (sB, sB, sC))
    A('s_sub_u32 %s, 0, %s' % (sC, sC))
mpoll(e1l, [vP0, vP0 + 4], chk_tags, each=flip)
A('s_branch L_E1_OK')
a.raw('.p2align 12, 0')
nv = (NVGPR + 7) // 8 * 8
a.raw('''.section .rodata,"a"
.p2align 6
.amdhsa_kernel %s_kernel
  .amdhsa_next_free_vgpr %d
  .amdhsa_next_free_sgpr 102
  .amdhsa_accum_offset %d
  .amdhsa_group_segment_fixed_size 0
  .amdhsa_kernarg_size 96
  .amdhsa_user_sgpr_count 2
  .amdhsa_user_sgpr_kernarg_segment_ptr 1
  .amdhsa_system_sgpr_workgroup_id_x 1
  .amdhsa_float_denorm_mode_32 3
.end_amdhsa_kernel''' % (NAME, nv, nv))
open(OUT, 'w').write(a.text())
print('wrote', OUT, 'vgprs', NVGPR)
```

```python
import sys
from asmlib import Asm

NAME = 'sequential_preLN__sliding_block_cached__glu_gated_reglu__decode'
STAMPS = '--stamps' in sys.argv
NOFAST = '--nofast' in sys.argv
def OPT(name, d=0):
    for a_ in sys.argv:
        if a_.startswith('--%s=' % name): return int(a_.split('=')[1])
    return d
WPRE = OPT('wpre', 1)
LS3 = OPT('ls3', 1152); LS5 = OPT('ls5', 128); NC = OPT('nc', 1)
GD = OPT('gd', 0); GS6 = OPT('gs6', 0)
FSLEEP = OPT('fsleep', 2); PF = OPT('pf', 0)
OUT = [a for a in sys.argv[1:] if not a.startswith('--')]
OUT = OUT[0] if OUT else 'cdna_kernels/%s.s' % NAME

WS_EPOCH = 0
WS_FL = 0x8000
WS_E1 = 0x10000; E1_K = 4352; E1_G = 4 * E1_K; E1_FS = 0x24000
WS_E3 = 0x200000
WS_E4 = 0x80000
WS_E2 = 0x100000
WS_E5 = 0x380000
WS_ST = 0x500000
WS_SIZE = 0x800000
QS = 272
L_QACC = 0; L_Q = 2048; L_P = L_Q + 4 * QS
L_MAX = L_P + 4 * QS; L_LS = L_MAX + 128
L_R1 = L_LS + 128; L_R2 = L_R1 + 512; L_ACC = L_R2 + 512
L_FLG = L_ACC + 256
L_V = 8192; L_K = L_V + 32768; L_W = L_K + 32768
LDS_BYTES = L_W + 32768
LOG2E = 0x3fb8aa3b; SCALE = 0x3db504f3; EPS = 0x3727c5ac; INV512 = 0x3b000000; ONES = 0x3f803f80
SPIN = 1 << 21

a = Asm(); A = a
sW, sG, sR = 's3', 's4', 's5'
sTAG = 's[6:7]'; sTA, sTB = 's6', 's7'
sMSK = 's[8:9]'
sSELLO, sSELHI = 's12', 's13'
sCNT = 's14'; sONE = 's15'
SRD_WS = 's[16:19]'; SRD_OUT = 's[20:23]'
sA, sB, sC, sD = 's24', 's25', 's26', 's27'
sKV = 's28'; sJ = 's29'; sSTEP = 's30'; sIDX = 's31'; sRB = 's32'; sM0 = 's33'
sXT = 's34'; sROLE = 's35'
SRD_X, SRD_WQ, SRD_K, SRD_V, SRD_W2 = 36, 40, 44, 48, 52
pWO, pWG, pWU = 56, 60, 62
sHI = 's58'; sE = 's59'; sFAST = 's96'; sF = 's97'; sVM = 's98'; sVS = 's99'; s8K = 's100'; sLG = 's101'
MS = ['s[40:41]', 's[42:43]', 's[44:45]', 's[46:47]']
def srd(n): return 's[%d:%d]' % (n, n + 3)
W3 = 's%d' % (SRD_X + 3)

class V:
    n = 0
    @classmethod
    def alloc(cls, k=1, align=1):
        cls.n = (cls.n + align - 1) // align * align
        r = cls.n; cls.n += k
        return r
def v(r, k=1): return 'v%d' % r if k == 1 else 'v[%d:%d]' % (r, r + k - 1)
vTID = V.alloc(); vL = V.alloc(); vZ = V.alloc()
vWv = V.alloc(); vPI = V.alloc(); vL15 = V.alloc(); vROW = V.alloc(); vCC = V.alloc()
vT = [V.alloc() for _ in range(12)]
oX, oXR, oWQ, oK, oV, oW2, oTR, oFR = [V.alloc() for _ in range(8)]
vK = V.alloc(16, 4); vW1 = vK
vFB = V.alloc(16, 4); vFA = V.alloc(16, 4)
vXF = vFB; vWQa = vFB + 4; vWQb = vFB + 8
vW2 = V.alloc(8, 4); vY = V.alloc(8, 4); vACC = V.alloc(4, 4)
vG = V.alloc(4, 4); vG2 = V.alloc(4, 4)
vP0 = V.alloc(8, 4); vP1 = V.alloc(8, 4)
vCS = V.alloc(4, 4); vA4 = V.alloc(4, 4); vCN = V.alloc(4, 4)
vXR = V.alloc(2, 2); vX4 = V.alloc(2, 2); vWA = V.alloc(2, 2); oVD = V.alloc(); vDUM = V.alloc()
NVGPR = V.n

DIAG = OPT('diag', -1); DG = OPT('dg', 0)
def stamp(i):
    if STAMPS: A('s_memrealtime s[%d:%d]' % (64 + 2 * i, 65 + 2 * i))
    if DIAG >= 0 and i == 0: A('s_memrealtime s[64:65]')
    if DIAG >= 0 and i == DIAG: A('s_memrealtime s[66:67]')
lab = [0]
def newlab(p='L'):
    lab[0] += 1
    return '%s%d' % (p, lab[0])
def dpp(d, s, mod, op='add'):
    A('v_%s_f32_dpp %s, %s, %s %s row_mask:0xf bank_mask:0xf' % (op, v(d), v(s), v(s), mod))
def dpp_add(d, ror, op='add'): dpp(d, d, 'row_ror:%d' % ror, op)
def movdpp(d, s, mod): A('v_mov_b32_dpp %s, %s %s row_mask:0xf bank_mask:0xf' % (v(d), v(s), mod))
def allred_rows(x, t, op='add', which=(16, 32)):
    for wdt in which:
        A('v_mov_b32 %s, %s' % (v(t), v(x)))
        A('v_permlane%d_swap_b32 %s, %s' % (wdt, v(x), v(t)))
        A('v_%s_f32 %s, %s, %s' % (op, v(x), v(x), v(t)))
def hi16(d, s): A('v_and_b32 %s, %s, %s' % (v(d), sHI, v(s)))
def lo16(d, s): A('v_lshlrev_b32 %s, 16, %s' % (v(d), v(s)))
def cvt(d, x, y): A('v_cvt_pk_bf16_f32 %s, %s, %s' % (v(d), v(x), v(y)))
def bf16r(d, s): cvt(d, s, s); hi16(d, d)
def ln_stats(vsum, vsq, vm, vr, t):
    A('v_mul_f32 %s, 0x%x, %s' % (v(vsum), INV512, v(vsum)))
    A('v_mul_f32 %s, 0x%x, %s' % (v(vsq), INV512, v(vsq)))
    A('v_fma_f32 %s, -%s, %s, %s' % (v(vsq), v(vsum), v(vsum), v(vsq)))
    A('v_max_f32 %s, 0, %s' % (v(vsq), v(vsq)))
    cvt(t, vsum, vsq)
    lo16(vm, t); hi16(vr, t)
    A('v_add_f32 %s, 0x%x, %s' % (v(vr), EPS, v(vr)))
    bf16r(vr, vr)
    A('v_sqrt_f32 %s, %s' % (v(vr), v(vr)))
    bf16r(vr, vr)
    A('v_rcp_f32 %s, %s' % (v(vr), v(vr)))
FULL = (1 << 64) - 1
def set_exec(mask):
    lo, hi = mask & 0xffffffff, mask >> 32
    if mask == FULL: A('s_mov_b64 exec, -1')
    elif hi == 0 and lo <= 64: A('s_mov_b64 exec, %d' % lo)
    elif hi == 0 and lo < 0x80000000: A('s_mov_b64 exec, 0x%x' % lo)
    elif lo == hi:
        A('s_mov_b32 exec_lo, 0x%x' % lo); A('s_mov_b32 exec_hi, exec_lo')
    else: raise ValueError
def mpoll(loads, grans, check, first_in_flight=False, extra=None, each=None):
    top = newlab('P'); done = newlab('D'); chk = newlab('C')
    A('s_mov_b32 %s, %d' % (sCNT, SPIN))
    if not first_in_flight:
        for l in loads: A(l)
    A('s_branch %s' % chk)
    A('%s:' % top)
    if each: each()
    for i, l in enumerate(loads):
        sk = newlab('K')
        A('s_mov_b64 exec, %s' % MS[i])
        A('s_cbranch_execz %s' % sk)
        A(l)
        A('%s:' % sk)
    A('s_mov_b64 exec, -1')
    A('%s:' % chk)
    A('s_waitcnt vmcnt(0)')
    for i, gq in enumerate(grans): check(i, gq, vY + i)
    for i, gq in enumerate(grans): A('v_cmp_ne_u32 %s, 0, %s' % (MS[i], v(vY + i)))
    if extra: extra()
    A('s_sub_u32 %s, %s, 1' % (sCNT, sCNT))
    A('s_cbranch_scc1 %s' % done)
    A('s_or_b64 vcc, %s, %s' % (MS[0], MS[1 if len(grans) > 1 else 0]))
    for i in range(2, len(grans)): A('s_or_b64 vcc, vcc, %s' % MS[i])
    A('s_cbranch_scc1 %s' % top)
    A('%s:' % done)
def chk_tags(i, gq, t):
    A('v_xor_b32 %s, %s, %s' % (v(t), sTA, v(gq + 2)))
    A('v_xor_b32 %s, %s, %s' % (v(t + 4), sTB, v(gq + 3)))
    A('v_or_b32 %s, %s, %s' % (v(t), v(t), v(t + 4)))
def chk_lam(i, gq, t):
    A('v_xor_b32 %s, %s, %s' % (v(t), sTA, v(gq + 3)))
    A('v_xor_b32_dpp %s, %s, %s quad_perm:[1,0,3,2] row_mask:0xf bank_mask:0xf' % (v(t + 4), v(gq + 2), v(gq + 2)))
    A('v_or_b32 %s, %s, %s' % (v(t), v(t), v(t + 4)))
def ldws(dst, voff, soff, imm=0):
    return 'buffer_load_dwordx4 %s, %s, %s, %s offen%s sc1' % (v(dst, 4), v(voff), SRD_WS, soff, (' offset:%d' % imm) if imm else '')
def stws(src, voff, soff, sc1=True):
    A('buffer_store_dwordx4 %s, %s, %s, %s offen%s' % (v(src, 4), v(voff), SRD_WS, soff, ' sc1' if sc1 else ''))
def st_grp(src, voff, soff):
    l1 = newlab('S'); l2 = newlab('S')
    A('s_cmp_eq_u32 %s, 0' % sFAST)
    A('s_cbranch_scc1 %s' % l1)
    stws(src, voff, soff, False)
    A('s_branch %s' % l2)
    A('%s:' % l1)
    stws(src, voff, soff, True)
    A('%s:' % l2)
def red8(x):
    A('v_permlane32_swap_b32 %s, %s' % (v(x), v(x + 1)))
    A('v_add_f32 %s, %s, %s' % (v(x), v(x), v(x + 1)))
    allred_rows(x, x + 1, 'add', (16,))
    dpp_add(x, 8)
def resid1(x, base):
    bf16r(x, x)
    A('v_add_f32 %s, %s, %s' % (v(x), v(x), v(base)))
    cvt(x, x, x)
def bar():
    A('s_waitcnt lgkmcnt(0)')
    A('s_barrier')
def mfma(acc, x, y, first): A('v_mfma_f32_16x16x32_bf16 %s, %s, %s, %s' % (v(acc, 4), v(x, 4), v(y, 4), '0' if first else v(acc, 4)))
def kdma(i):
    if i: A('v_xor_b32 %s, 0x%x, %s' % (v(vT[11]), 64 * i, v(oK)))
    A('buffer_load_dwordx4 %s, %s, %s offen offset:%d nt lds' % (v(vT[11] if i else oK), srd(SRD_K), sVS, 1024 * i))
def vdma():
    A('s_mov_b32 m0, %s' % sVM)
    A('s_add_u32 %s, %s, %s' % (sVM, sVM, s8K))
    A('buffer_load_dwordx4 %s, %s, %s offen nt lds' % (v(oVD), srd(SRD_V), sVS))
    A('s_add_u32 %s, %s, %s' % (sVS, sVS, s8K))
def tone():
    A('s_mov_b32 m0, %s' % sM0)
    A('s_add_u32 %s, %s, %s' % (sM0, sM0, s8K))
    A('global_load_lds_dwordx4 %s, off nt' % v(vWA, 2))
    A('v_lshl_add_u64 %s, %s, 0, s[30:31]' % (v(vWA, 2), v(vWA, 2)))
def ddma():
    A('s_mul_i32 s%d, %s, 14' % (SRD_W2 + 2, W3)); A('s_mov_b32 s%d, %s' % (SRD_W2 + 3, W3))
    A('s_lshl_b32 %s, %s, 5' % (sC, sW))
    A('s_and_b32 %s, %s, 0x80' % (sD, sC))
    A('s_lshl_b32 %s, %s, 1' % (sC, sC))
    A('s_and_b32 %s, %s, 64' % (sC, sC))
    A('s_or_b32 %s, %s, %s' % (sC, sC, sD))
    A('v_xor_b32 %s, %s, %s' % (v(vT[11]), sC, v(oX)))
    A('s_add_u32 %s, %s, %d' % (sC, sW, L_K // 2048))
    A('s_lshl_b32 m0, %s, 11' % sC)
    A('s_lshl3_add_u32 %s, %s, %s' % (sD, sIDX, sW))
    A('s_lshl_b32 %s, %s, 11' % (sD, sD))
    A('buffer_load_dwordx4 %s, %s, %s offen nt lds' % (v(vT[11]), srd(SRD_W2), sD))
    A('v_xor_b32 %s, 32, %s' % (v(vT[11]), v(vT[11])))
    A('buffer_load_dwordx4 %s, %s, %s offen offset:1024 nt lds' % (v(vT[11]), srd(SRD_W2), sD))
def fin():
    if STAMPS: A('s_branch L_FIN')
    else: A('s_endpgm')

head = []
for l in open('cdna_kernels/%s.s.ref' % NAME).read().split('\n'):
    if not l.startswith(';'): break
    head.append('; @launch grid=(256,1,1) block=(512,1,1) lds=%d' % LDS_BYTES if l.startswith('; @launch') else l)
a.raw('\n'.join(head))
a.raw('.amdgcn_target "amdgcn-amd-amdhsa--gfx950"\n.text\n.globl %s_kernel\n.p2align 12\n.type %s_kernel,@function\n%s_kernel:' % (NAME, NAME, NAME))
sIDX = 's29'
A('s_load_dwordx2 s[%d:%d], s[0:1], 24' % (SRD_WQ, SRD_WQ + 1))
A('s_load_dwordx2 s[%d:%d], s[0:1], 0' % (SRD_X, SRD_X + 1))
A('s_load_dwordx2 s[16:17], s[0:1], 88')
A('s_load_dwordx2 s[%d:%d], s[0:1], 8' % (SRD_K, SRD_K + 1))
A('s_lshr_b32 %s, s2, 3' % sR)
A('s_cmp_ge_u32 %s, 32' % sR)
A('s_cbranch_scc1 L_END0')
def pf():
    A('s_getpc_b64 s[10:11]')
    A('s_and_b32 s10, s10, 0xfffff000')
    if PF == 3: A('s_addk_i32 s10, 4096')
    A('v_lshlrev_b32 %s, 3, v0' % v(vT[1]))
    A('global_load_dword %s, %s, s[10:11]' % (v(vDUM), v(vT[1])))
if PF == 1: pf()
A('v_readfirstlane_b32 %s, v0' % sW)
A('v_and_b32 %s, 63, v0' % v(vL))
A('s_and_b32 %s, s2, 7' % sG)
A('s_and_b32 %s, %s, 3' % (sRB, sR))
A('s_lshr_b32 %s, %s, 2' % (sE, sR))
if STAMPS:
    for i in range(16): A('s_mov_b64 s[%d:%d], 0' % (64 + 2 * i, 65 + 2 * i))
stamp(0)
A('v_lshrrev_b32 %s, 3, v0' % v(vT[0]))
A('v_and_b32 %s, 7, v0' % v(vCC))
A('v_lshlrev_b32 %s, 4, %s' % (v(oW2), v(vCC)))
A('v_lshl_or_b32 %s, %s, 14, %s' % (v(oWQ), v(vT[0]), v(oW2)))
A('s_lshl_b32 %s, %s, 20' % (sA, sRB))
A('s_lshl_b32 %s, %s, 10' % (sC, sG))
A('s_add_u32 %s, %s, %s' % (sA, sA, sC))
A('s_lshl_b32 %s, %s, 7' % (sC, sE))
A('s_add_u32 %s, %s, %s' % (sA, sA, sC))
A('s_movk_i32 %s, 8192' % s8K)
A('s_add_u32 %s, %s, %s' % (sB, sA, s8K))
A('s_mov_b32 %s, 0x20000' % W3)
A('s_lshl_b32 s%d, %s, 5' % (SRD_WQ + 2, W3)); A('s_mov_b32 s%d, %s' % (SRD_WQ + 3, W3))
A('s_movk_i32 s%d, 1024' % (SRD_X + 2))
A('v_lshlrev_b32 %s, 4, %s' % (v(oX), v(vL)))
A('v_lshlrev_b32 %s, 2, %s' % (v(oXR), v(vT[0])))
A('s_lshl_b32 %s, %s, 8' % (sD, sRB))
A('s_waitcnt lgkmcnt(0)')
A('buffer_load_dwordx4 %s, %s, %s, 0 offen' % (v(vXF, 4), v(oX), srd(SRD_X)))
A('buffer_load_dword %s, %s, %s, %s offen' % (v(vXR), v(oXR), srd(SRD_X), sD))
A('buffer_load_dwordx4 %s, %s, %s, %s offen nt' % (v(vWQa, 4), v(oWQ), srd(SRD_WQ), sA))
A('buffer_load_dwordx4 %s, %s, %s, %s offen nt' % (v(vWQb, 4), v(oWQ), srd(SRD_WQ), sB))
A('s_load_dwordx2 %s, s[16:17], %d' % (sTAG, WS_EPOCH))
A('s_lshr_b32 %s, %s, 6' % (sW, sW))
A('s_lshl_b32 s18, %s, 6' % W3); A('s_mov_b32 s19, %s' % W3)
A('s_add_u32 %s, %s, 8' % (sKV, sG))
A('s_lshl_b32 %s, %s, 12' % (sKV, sKV))
A('v_lshlrev_b32 %s, 3, v0' % v(vT[1]))
A('buffer_load_dword %s, %s, %s, %s offen sc1' % (v(vDUM), v(vT[1]), SRD_WS, sKV))
if PF >= 2: pf()
X2 = 1 if PF >= 2 else 0
A('v_lshrrev_b32 %s, 6, v0' % v(vWv))
A('v_and_b32 %s, 15, %s' % (v(vL15), v(vL)))
A('v_lshrrev_b32 %s, 4, %s' % (v(vROW), v(vL)))
A('s_lshl_b32 %s, %s, 8' % (sVS, sG))
A('s_add_u32 %s, %s, %s' % (sVS, sVS, sR))
A('s_addk_i32 %s, 224' % sVS)
A('s_lshl_b32 %s, %s, 15' % (sVS, sVS))
A('v_xor_b32 %s, %s, %s' % (v(vT[1]), v(vL15), v(vROW)))
A('v_lshlrev_b32 %s, 4, %s' % (v(vT[1]), v(vT[1])))
A('v_lshl_or_b32 %s, %s, 12, %s' % (v(vT[2]), v(vWv), v(vT[1])))
A('v_lshl_or_b32 %s, %s, 8, %s' % (v(oK), v(vROW), v(vT[2])))
A('v_lshl_or_b32 %s, %s, 8, %s' % (v(vA4), v(vL15), v(vT[2])))
A('s_lshl_b32 s%d, %s, 9' % (SRD_K + 2, W3)); A('s_mov_b32 s%d, %s' % (SRD_K + 3, W3))
A('s_add_u32 %s, %s, %d' % (sF, sW, L_K // 4096))
A('s_lshl_b32 m0, %s, 12' % sF)
A('s_barrier')
for i in range(3): kdma(i)
stamp(1)
A('s_load_dwordx2 s[%d:%d], s[0:1], 16' % (SRD_V, SRD_V + 1))
A('s_load_dwordx2 s[%d:%d], s[0:1], 32' % (pWO, pWO + 1))
A('s_load_dwordx4 s[%d:%d], s[0:1], 48' % (pWG, pWG + 3))
A('s_load_dwordx2 s[%d:%d], s[0:1], 64' % (SRD_W2, SRD_W2 + 1))
A('s_mov_b32 %s, 0x05040100' % sSELLO)
A('s_mov_b32 %s, 0x07060302' % sSELHI)
A('s_mov_b32 %s, 0x%x' % (sONE, ONES))
A('s_mov_b32 %s, 0xffff0000' % sHI)
A('s_mov_b32 %s, 0x%x' % (sLG, LOG2E))
A('s_mov_b64 s[%d:%d], s[%d:%d]' % (SRD_V + 2, SRD_V + 3, SRD_K + 2, SRD_K + 3))
A('v_lshrrev_b32 %s, 5, %s' % (v(vPI), v(vL)))
A('v_mov_b32 %s, 0' % v(vZ))
A('s_getreg_b32 %s, hwreg(HW_REG_XCC_ID, 0, 4)' % sXT)
A('v_lshlrev_b32 %s, 1, %s' % (v(vT[5]), v(oW2)))
A('v_lshl_or_b32 %s, %s, 3, %s' % (v(vT[5]), v(vROW), v(vT[5])))
A('v_lshl_or_b32 %s, %s, 8, %s' % (v(vT[5]), v(vWv), v(vT[5])))
A('v_and_b32 %s, 31, %s' % (v(vT[7]), v(vL)))
A('v_lshlrev_b32 %s, 3, %s' % (v(vT[6]), v(vT[7])))
A('v_lshl_or_b32 %s, %s, 10, %s' % (v(vT[6]), v(vPI), v(vT[6])))
A('v_lshrrev_b32 %s, 4, v0' % v(vT[2]))
A('v_and_b32 %s, 2, %s' % (v(vT[3]), v(vWv)))
A('v_lshl_or_b32 %s, %s, 1, %s' % (v(vT[3]), v(vT[3]), v(vROW)))
A('v_lshlrev_b32 %s, 1, %s' % (v(vT[3]), v(vT[3])))
A('v_xor_b32 %s, %s, %s' % (v(vT[3]), v(vT[3]), v(vL15)))
A('v_lshlrev_b32 %s, 4, %s' % (v(vCN), v(vT[3])))
A('v_lshl_or_b32 %s, %s, 8, %s' % (v(oVD), v(vT[2]), v(vCN)))
A('s_add_u32 %s, %s, %d' % (sVM, sW, L_V // 1024))
A('s_lshl_b32 %s, %s, 10' % (sVM, sVM))
A('s_add_u32 %s, %s, 0x%x' % (sM0, sVM, L_W - L_V))
A('s_add_u32 s10, s16, %s' % sKV)
A('s_addc_u32 s11, s17, 0')
A('s_lshl2_add_u32 %s, %s, %s' % (sKV, sR, sKV))
A('s_mul_i32 %s, %s, %d' % (sA, sG, E1_G))
A('s_add_u32 %s, %s, 0x%x' % (sA, sA, WS_E1))
A('s_mulk_i32 %s, %d' % (sD, E1_K // 256))
A('s_lshl_b32 %s, %s, 9' % (sC, sE))
A('s_add_u32 %s, %s, %s' % (sB, sD, sC))
A('s_add_u32 %s, %s, %s' % (sB, sB, sA))
A('s_mov_b32 s31, 0')
A('s_lshl2_add_u32 %s, %s, %s' % (sIDX, sG, sE))
A('s_mov_b32 %s, 0' % sROLE)
A('v_lshlrev_b32 %s, 7, %s' % (v(vT[8]), v(vL)))
A('s_waitcnt vmcnt(%d)' % (7 + X2))
stamp(2)
s0, s1, m_, r_, t_ = vT[0], vT[1], vT[9], vT[10], vT[4]
A('v_dot2_f32_bf16 %s, %s, %s, 0' % (v(s0), v(vXF), sONE))
A('v_dot2_f32_bf16 %s, %s, %s, 0' % (v(s1), v(vXF), v(vXF)))
for j in range(1, 4):
    A('v_dot2c_f32_bf16 %s, %s, %s' % (v(s0), sONE, v(vXF + j)))
    A('v_dot2c_f32_bf16 %s, %s, %s' % (v(s1), v(vXF + j), v(vXF + j)))
A('v_permlane32_swap_b32 %s, %s' % (v(s0), v(s1)))
A('v_add_f32 %s, %s, %s' % (v(s0), v(s0), v(s1)))
allred_rows(s0, s1, 'add', (16,))
for ror in (8, 4, 2): dpp_add(s0, ror)
dpp(s1, s0, 'row_ror:1'); dpp(s0, s0, 'row_ror:1')
A('v_permlane32_swap_b32 %s, %s' % (v(s0), v(s1)))
ln_stats(s0, s1, m_, r_, t_)
A('s_waitcnt vmcnt(%d)' % (6 + X2))
lo16(s0, vXR); hi16(s1, vXR)
A('v_sub_f32 %s, %s, %s' % (v(s0), v(s0), v(m_)))
A('v_sub_f32 %s, %s, %s' % (v(s1), v(s1), v(m_)))
cvt(t_, s0, s1)
lo16(s0, t_); hi16(s1, t_)
A('v_mul_f32 %s, %s, %s' % (v(s0), v(s0), v(r_)))
A('v_mul_f32 %s, %s, %s' % (v(s1), v(s1), v(r_)))
cvt(vXR, s0, s1)
A('s_waitcnt vmcnt(%d)' % (4 + X2))
stamp(3)
for j in range(4):
    A('v_perm_b32 %s, %s, %s, %s' % (v(vFA + 2 * j), v(vWQb + j), v(vWQa + j), sSELLO))
    A('v_perm_b32 %s, %s, %s, %s' % (v(vFA + 2 * j + 1), v(vWQb + j), v(vWQa + j), sSELHI))
for e in range(8): A('v_dot2_f32_bf16 %s, %s, %s, 0' % (v(vY + e), v(vFA + e), v(vXR)))
for i in range(4): A('v_permlane32_swap_b32 %s, %s' % (v(vY + i), v(vY + 4 + i)))
for i in range(4): A('v_add_f32 %s, %s, %s' % (v(vY + i), v(vY + i), v(vY + 4 + i)))
for i in range(2): A('v_permlane16_swap_b32 %s, %s' % (v(vY + i), v(vY + 2 + i)))
for i in range(2): A('v_add_f32 %s, %s, %s' % (v(vY + i), v(vY + i), v(vY + 2 + i)))
dpp_add(vY, 8); dpp_add(vY + 1, 8)
A('ds_write_b64 %s, %s offset:%d' % (v(vT[5]), v(vY, 2), L_QACC))
A('s_waitcnt lgkmcnt(0)')
A('s_add_u32 %s, %s, 1' % (sTA, sTA))
A('s_barrier')
A('s_lshl4_add_u32 %s, %s, %s' % (sXT, sTA, sXT))
A('v_mov_b32 %s, %s' % (v(vG + 2), sTA))
A('v_mov_b32 %s, %s' % (v(vG + 3), sTB))
A('s_cmp_lg_u32 %s, 0' % sW)
A('s_cbranch_scc1 L_NOPUB1')
A('ds_read2st64_b64 %s, %s offset0:0 offset1:1' % (v(vY, 4), v(vT[6])) if False else 'ds_read2_b64 %s, %s offset0:%d offset1:%d' % (v(vY, 4), v(vT[6]), 0, 32))
A('ds_read2_b64 %s, %s offset0:%d offset1:%d' % (v(vY + 4, 4), v(vT[6]), 64, 96))
A('v_mov_b32 %s, %s' % (v(vG2), sXT))
A('s_add_u32 %s, %s, 0x%x' % (sC, sB, E1_FS))
A('s_waitcnt lgkmcnt(0)')
A('v_pk_add_f32 %s, %s, %s' % (v(vY, 2), v(vY, 2), v(vY + 2, 2)))
A('v_pk_add_f32 %s, %s, %s' % (v(vY + 4, 2), v(vY + 4, 2), v(vY + 6, 2)))
A('v_pk_add_f32 %s, %s, %s' % (v(vG, 2), v(vY, 2), v(vY + 4, 2)))
A('v_pk_add_f32 %s, %s, %s' % (v(vY, 2), v(vY, 2), v(vY + 4, 2)))
A('v_permlane32_swap_b32 %s, %s' % (v(vG), v(vY)))
A('v_permlane32_swap_b32 %s, %s' % (v(vG + 1), v(vY + 1)))
A('v_pk_add_f32 %s, %s, %s' % (v(vG, 2), v(vG, 2), v(vY, 2)))
A('s_mov_b32 exec_hi, 0')
stws(vG, oX, sB, False)
A('buffer_store_dword %s, %s, %s, %s offen' % (v(vG2), v(vT[8]), SRD_WS, sKV))
stws(vG, oX, sC, True)
set_exec(FULL)
A('L_NOPUB1:')
stamp(4)
A('s_barrier')
kdma(3); vdma(); vdma()
A('s_cmp_lt_u32 %s, 16' % sR)
A('s_cbranch_scc0 L_LA_G')
A('s_lshl_b32 %s, %s, 9' % (sF, sIDX))
A('s_add_u32 %s, %s, %s' % (sF, sF, sRB))
A('s_lshl_b32 %s, %s, 8' % (sF, sF))
A('v_lshl_or_b32 %s, %s, 10, %s' % (v(vT[2]), v(vT[2]), v(vCN)))
A('s_lshl_b32 s30, %s, 2' % s8K)
A('s_mov_b64 s[%d:%d], s[%d:%d]' % (pWG, pWG + 1, pWO, pWO + 1))
A('s_mov_b64 s[%d:%d], s[%d:%d]' % (pWU, pWU + 1, pWO, pWO + 1))
A('s_branch L_LA_GO')
A('L_LA_G:')
A('s_max_u32 %s, %s, 4' % (sC, sG))
A('s_sub_u32 %s, %s, %s' % (sC, sIDX, sC))
A('s_lshr_b32 %s, %s, 2' % (sROLE, sG))
A('s_add_u32 %s, %s, %s' % (sROLE, sROLE, sE))
A('s_cmp_eq_u32 %s, 8' % sROLE)
A('s_cselect_b32 %s, 2, 1' % sROLE)
A('s_lshl2_add_u32 %s, %s, %s' % (sIDX, sC, sRB))
A('s_mul_i32 %s, %s, 3584' % (sF, sRB))
A('s_add_u32 %s, %s, %s' % (sF, sF, sC))
A('s_lshl_b32 %s, %s, 7' % (sF, sF))
A('v_and_b32 %s, 0x70, %s' % (v(vCN), v(vCN)))
A('s_movk_i32 %s, 3584' % sC)
A('v_mad_u32_u24 %s, %s, %s, %s' % (v(vT[2]), v(vT[2]), sC, v(vCN)))
A('s_lshl_b32 s30, %s, 5' % sC)
A('L_LA_GO:')
A('v_cmp_lt_u32 vcc, 7, %s' % v(vT[3]))
A('v_add_u32 %s, %s, %s' % (v(vCN), sF, v(vT[2])))
A('v_mov_b32 %s, 0' % v(vCN + 1))
A('v_lshl_add_u64 %s, %s, 0, s[%d:%d]' % (v(vWA, 2), v(vCN, 2), pWG, pWG + 1))
A('v_lshl_add_u64 %s, %s, 0, s[%d:%d]' % (v(vCN + 2, 2), v(vCN, 2), pWU, pWU + 1))
A('v_cndmask_b32 %s, %s, %s, vcc' % (v(vWA), v(vWA), v(vCN + 2)))
A('v_cndmask_b32 %s, %s, %s, vcc' % (v(vWA + 1), v(vWA + 1), v(vCN + 3)))
A('v_mov_b32 %s, %s' % (v(vG2 + 3), sTA))
A('v_bfe_u32 %s, %s, 2, 2' % (v(vT[1]), v(vL)))
A('v_bfe_u32 %s, %s, 2, 3' % (v(vT[2]), v(vL)))
A('v_xor_b32 %s, %s, %s' % (v(vT[2]), v(vT[2]), v(vWv)))
A('v_and_b32 %s, 3, %s' % (v(vT[6]), v(vL)))
A('v_lshl_or_b32 %s, %s, 2, %s' % (v(vT[2]), v(vT[2]), v(vT[6])))
A('v_lshl_or_b32 %s, %s, 5, %s' % (v(vT[2]), v(vT[1]), v(vT[2])))
A('v_lshl_or_b32 %s, %s, 8, %s' % (v(vT[2]), v(vROW), v(vT[2])))
A('v_lshlrev_b32 %s, 3, %s' % (v(oTR), v(vT[2])))
A('v_and_b32 %s, 48, %s' % (v(vT[2]), v(vL)))
A('s_movk_i32 %s, %d' % (sC, QS))
A('v_mad_u32_u24 %s, %s, %s, %s' % (v(oFR), v(vT[6]), sC, v(vT[2])))
A('v_mad_u32_u24 %s, %s, %s, %s' % (v(oV), v(vT[1]), sC, v(vT[2])))
A('v_lshrrev_b32 %s, 1, v0' % v(vT[8]))
A('v_and_b32 %s, 0xf8, %s' % (v(vT[8]), v(vT[8])))
A('v_mad_u32_u24 %s, %s, %s, %s' % (v(vT[8]), v(vT[6]), sC, v(vT[8])))
A('v_lshl_or_b32 %s, %s, 5, %s' % (v(vT[4]), v(vWv), v(vT[7])))
A('v_mul_u32_u24 %s, %d, %s' % (v(vT[1]), 2 * E1_K, v(vPI)))
A('v_lshl_add_u32 %s, %s, 4, %s' % (v(vT[0]), v(vT[4]), v(vT[1])))
if NOFAST: A('s_add_u32 %s, %s, 0x%x' % (sA, sA, E1_FS))
A('s_add_u32 %s, %s, %d' % (sB, sA, E1_K))
A('v_lshl_or_b32 %s, %s, 1, %s' % (v(vT[1]), v(vT[4]), v(vPI)))
A('v_and_b32 %s, 6, %s' % (v(vT[4]), v(vWv)))
A('v_lshl_add_u32 %s, %s, 2, %s' % (v(vT[1]), v(vT[4]), v(vT[1])))
A('v_lshlrev_b32 %s, 1, %s' % (v(vT[1]), v(vT[1])))
A('v_xor_b32 %s, 64, %s' % (v(vA4 + 1), v(vA4)))
A('v_xor_b32 %s, 0x80, %s' % (v(vA4 + 2), v(vA4)))
A('v_xor_b32 %s, 64, %s' % (v(vA4 + 3), v(vA4 + 2)))
A('v_lshlrev_b32 %s, 5, %s' % (v(vT[7]), v(vT[6])))
A('v_lshl_add_u32 %s, %s, 2, %s' % (v(vT[3]), v(vWv), v(vT[7])))
A('v_lshlrev_b32 %s, 5, %s' % (v(vT[9]), v(vROW)))
A('v_lshl_or_b32 %s, %s, 15, %s' % (v(vT[10]), v(vROW), v(oW2)))
A('s_lshl_b32 %s, %s, 5' % (sKV, sG))
A('s_add_u32 %s, %s, %s' % (sKV, sKV, sW))
A('s_lshl_b32 %s, %s, 5' % (sKV, sKV))
A('s_add_u32 %s, %s, %s' % (sKV, sKV, sR))
A('s_add_u32 %s, %s, %s' % (sKV, sKV, s8K))
A('s_lshl_b32 %s, %s, 7' % (sKV, sKV))
A('s_mov_b32 %s, 0' % sFAST)
A('s_cmp_lg_u32 %s, 7' % sW)
A('s_cbranch_scc1 L_FL_DONE')
A('s_movk_i32 %s, 31' % sCNT)
A('s_mov_b32 s8, %s' % sXT); A('s_mov_b32 s9, %s' % sXT)
A('L_FL:')
if STAMPS:
    for pc in range(4):
        A('s_load_dwordx8 s[40:47], s[10:11], %d' % (32 * pc))
        A('s_waitcnt lgkmcnt(0)')
        for k in range(4):
            A('s_cmp_eq_u64 s[%d:%d], s[8:9]' % (40 + 2 * k, 41 + 2 * k))
            A('s_cbranch_scc0 L_FL_NO')
else:
    A('s_load_dwordx16 s[64:79], s[10:11], 0')
    A('s_load_dwordx16 s[80:95], s[10:11], 64')
    A('s_waitcnt lgkmcnt(0)')
    for k in range(16):
        A('s_cmp_eq_u64 s[%d:%d], s[8:9]' % (64 + 2 * k, 65 + 2 * k))
        A('s_cbranch_scc0 L_FL_NO')
A('s_mov_b32 %s, %d' % (sFAST, 0 if NOFAST else 1))
A('s_branch L_FL_W')
A('L_FL_NO:')
if FSLEEP: A('s_sleep %d' % FSLEEP)
A('s_addk_i32 s10, 128')
A('s_sub_u32 %s, %s, 1' % (sCNT, sCNT))
A('s_cbranch_scc0 L_FL')
A('L_FL_W:')
A('v_mov_b32 %s, %s' % (v(vP1), sFAST))
A('ds_write_b32 %s, %s offset:%d' % (v(vZ), v(vP1), L_FLG))
A('L_FL_DONE:')
A('s_barrier')
stamp(5)
e1l = [ldws(vP0, vT[0], sA), ldws(vP0 + 4, vT[0], sB)]
for l in e1l: A(l)
A('s_barrier')
vdma(); vdma()
A(ldws(vCS, vT[10], sKV))
A('s_waitcnt vmcnt(3)')
for j in range(4): A('ds_read_b128 %s, %s offset:%d' % (v(vK + 4 * j, 4), v(vA4 + j), L_K))
for i, gq in enumerate((vP0, vP0 + 4)): chk_tags(i, gq, vY + i)
A('v_or_b32 %s, %s, %s' % (v(vY), v(vY), v(vY + 1)))
A('v_cmp_ne_u32 vcc, 0, %s' % v(vY))
A('s_cbranch_vccnz L_E1_RETRY')
A('L_E1_OK:')
stamp(15)
A('v_pk_add_f32 %s, %s, %s' % (v(vP0, 2), v(vP0, 2), v(vP0 + 4, 2)))
A('s_cmp_lg_u32 %s, 0' % sROLE)
A('v_permlane32_swap_b32 %s, %s' % (v(vP0), v(vP0 + 1)))
A('v_add_f32 %s, %s, %s' % (v(vP0), v(vP0), v(vP0 + 1)))
cvt(vP0, vP0, vP0)
A('ds_write_b16 %s, %s offset:%d' % (v(vT[1]), v(vP0), L_Q))
A('s_cbranch_scc1 L_NT1')
tone(); tone()
A('L_NT1:')
bar()
for j in range(4): A('ds_read_b128 %s, %s offset:%d' % (v(vFB + 4 * j, 4), v(oFR), L_Q + 64 * j))
A('ds_read_b32 %s, %s offset:%d' % (v(vFA + 8), v(vZ), L_FLG))
stamp(6)
A('v_mov_b32 %s, 0x%x' % (v(vCN), SCALE))
for j in range(4):
    A('s_waitcnt lgkmcnt(%d)' % (4 - j))
    mfma(vACC, vK + 4 * j, vFB + 4 * j, j == 0)
A('s_waitcnt lgkmcnt(0)')
A('v_readfirstlane_b32 %s, %s' % (sFAST, v(vFA + 8)))
S = vY
for h in range(2): cvt(vT[4 + h], vACC + 2 * h, vACC + 2 * h + 1)
for h in range(2): lo16(S + 2 * h, vT[4 + h]); hi16(S + 2 * h + 1, vT[4 + h])
for i in range(4): A('v_mul_f32 %s, %s, %s' % (v(S + i), v(vCN), v(S + i)))
for h in range(2): cvt(vT[4 + h], S + 2 * h, S + 2 * h + 1)
for h in range(2): lo16(S + 2 * h, vT[4 + h]); hi16(S + 2 * h + 1, vT[4 + h])
A('v_max3_f32 %s, %s, %s, %s' % (v(vT[4]), v(S), v(S + 1), v(S + 2)))
A('v_max_f32 %s, %s, %s' % (v(vT[4]), v(vT[4]), v(S + 3)))
allred_rows(vT[4], vT[5], 'max')
A('ds_write_b32 %s, %s offset:%d' % (v(vT[3]), v(vT[4]), L_MAX))
A('s_cmp_lg_u32 %s, 0' % sROLE)
bar()
A('ds_read_b128 %s, %s offset:%d' % (v(vFA, 4), v(vT[7]), L_MAX))
A('ds_read_b128 %s, %s offset:%d' % (v(vFA + 4, 4), v(vT[7]), L_MAX + 16))
if GD:
    A('s_cbranch_scc0 L_NT2A')
    A('s_cmp_eq_u32 %s, 2' % sROLE)
    A('s_cbranch_scc1 L_NT2')
    ddma()
    if GS6 < 2:
        for i in range(GS6): tone()
        A('s_branch L_NT2')
    A('L_NT2A:')
else:
    A('s_cbranch_scc1 L_NT2')
tone(); tone()
A('L_NT2:')
A('s_waitcnt lgkmcnt(0)')
A('v_max3_f32 %s, %s, %s, %s' % (v(vT[4]), v(vFA), v(vFA + 1), v(vFA + 2)))
A('v_max3_f32 %s, %s, %s, %s' % (v(vT[5]), v(vFA + 3), v(vFA + 4), v(vFA + 5)))
A('v_max3_f32 %s, %s, %s, %s' % (v(vT[4]), v(vT[4]), v(vFA + 6), v(vFA + 7)))
A('v_max_f32 %s, %s, %s' % (v(vT[4]), v(vT[4]), v(vT[5])))
A('v_mul_f32 %s, %s, %s' % (v(vCN), sLG, v(vT[4])))
for i in range(4): A('v_fma_f32 %s, %s, %s, -%s' % (v(S + i), v(S + i), sLG, v(vCN)))
for i in range(4): A('v_exp_f32 %s, %s' % (v(S + i), v(S + i)))
A('v_lshrrev_b32 %s, 2, %s' % (v(vCN + 1), v(vT[2])))
cvt(S + 4, S, S + 1)
A('v_add_f32 %s, %s, %s' % (v(vT[4]), v(S), v(S + 1)))
cvt(S + 5, S + 2, S + 3)
A('v_add_f32 %s, %s, %s' % (v(vT[5]), v(S + 2), v(S + 3)))
A('ds_write_b64 %s, %s offset:%d' % (v(vT[8]), v(S + 4, 2), L_P))
A('ds_bpermute_b32 %s, %s, %s' % (v(vP1), v(vCN + 1), v(vCN)))
A('v_add_f32 %s, %s, %s' % (v(vT[4]), v(vT[4]), v(vT[5])))
allred_rows(vT[4], vT[5], 'add')
A('ds_write_b32 %s, %s offset:%d' % (v(vT[3]), v(vT[4]), L_LS))
stamp(7)
A('s_cmp_eq_u32 %s, 0' % sROLE)
A('s_waitcnt vmcnt(5)')
A('s_cbranch_scc1 L_WV')
if GD:
    A('s_cmp_eq_u32 %s, 1' % sROLE)
    A('s_waitcnt vmcnt(%d)' % (3 + GS6))
    A('s_cbranch_scc1 L_WV')
A('s_waitcnt vmcnt(1)')
A('L_WV:')
bar()
A('ds_read_b128 %s, %s offset:%d' % (v(vY, 4), v(vT[9]), L_LS))
A('ds_read_b128 %s, %s offset:%d' % (v(vY + 4, 4), v(vT[9]), L_LS + 16))
for b in range(4):
    A('ds_read_b128 %s, %s offset:%d' % (v(vFB + 4 * b, 4), v(oV), L_P + 64 * b))
    A('ds_read_b64_tr_b16 %s, %s offset:%d' % (v(vFA + 4 * b, 2), v(oTR), L_V + 8192 * b))
    A('ds_read_b64_tr_b16 %s, %s offset:%d' % (v(vFA + 4 * b + 2, 2), v(oTR), L_V + 8192 * b + 1024))
A('s_lshl3_add_u32 %s, %s, %s' % (sA, sIDX, sW))
A('s_addk_i32 %s, %d' % (sA, WS_E2 // 4096))
A('s_lshl_b32 %s, %s, 12' % (sA, sA))
A('s_waitcnt lgkmcnt(12)')
A('v_pk_add_f32 %s, %s, %s' % (v(vY, 2), v(vY, 2), v(vY + 2, 2)))
A('v_pk_add_f32 %s, %s, %s' % (v(vY + 4, 2), v(vY + 4, 2), v(vY + 6, 2)))
A('v_pk_add_f32 %s, %s, %s' % (v(vY, 2), v(vY, 2), v(vY + 4, 2)))
A('v_add_f32 %s, %s, %s' % (v(vY), v(vY), v(vY + 1)))
for b in range(4):
    A('s_waitcnt lgkmcnt(%d)' % (9 - 3 * b))
    mfma(vACC, vFB + 4 * b, vFA + 4 * b, b == 0)
A('v_log_f32 %s, %s' % (v(vG2 + 2), v(vY)))
A('v_rcp_f32 %s, %s' % (v(vY), v(vY)))
A('v_lshl_or_b32 %s, %s, 3, %s' % (v(vT[3]), v(vPI), v(vCC)))
A('v_add_f32 %s, %s, %s' % (v(vG2 + 2), v(vG2 + 2), v(vP1)))
A('v_lshl_or_b32 %s, %s, 4, %s' % (v(vT[3]), v(vWv), v(vT[3])))
A('v_lshlrev_b32 %s, 1, %s' % (v(vT[3]), v(vT[3])))
A('v_mul_f32 %s, %s, %s' % (v(vG2), v(vACC), v(vY)))
movdpp(vG2 + 1, vG2, 'row_ror:8')
set_exec(0x00ff00ff00ff00ff)
st_grp(vG2, vT[10], sKV)
set_exec(FULL)
stamp(8)
A('s_cmp_eq_u32 %s, 1' % sROLE)
A('s_cbranch_scc1 L_GT')
A('s_cmp_eq_u32 %s, 2' % sROLE)
A('s_cbranch_scc1 L_FIN0')
g4 = [vP0, vP0 + 4, vP1, vP1 + 4]
l4 = [ldws(g4[i], oX, sA, 1024 * i) for i in range(4)]
for l in l4: A(l)
A('v_add_u32 %s, 0x%x, %s' % (v(vT[1]), L_W, v(oTR)))
A('s_lshl3_add_u32 %s, %s, %s' % (sKV, sRB, sW))
A('s_lshl_b32 %s, %s, 5' % (sKV, sKV))
A('s_add_u32 %s, %s, %s' % (sKV, sKV, sIDX))
A('s_mulk_i32 %s, %d' % (sKV, LS3))
A('s_add_u32 %s, %s, 0x%x' % (sKV, sKV, WS_E3))
if NC > 1:
    A('v_lshrrev_b32 %s, 3, %s' % (v(vT[4]), v(vL)))
    A('v_mul_u32_u24 %s, %d, %s' % (v(vT[4]), 1024 * LS3, v(vT[4])))
    A('v_add_u32 %s, %s, %s' % (v(vT[4]), v(vT[4]), v(oW2)))
    A('v_and_b32 %s, 8, %s' % (v(vT[6]), v(vL)))
    A('v_cmp_ne_u32 %s, 0, %s' % (sMSK, v(vT[6])))
def wtr():
    for b in range(4):
        A('ds_read_b64_tr_b16 %s, %s offset:%d' % (v(vW1 + 4 * b, 2), v(vT[1]), 8192 * b))
        A('ds_read_b64_tr_b16 %s, %s offset:%d' % (v(vW1 + 4 * b + 2, 2), v(vT[1]), 8192 * b + 1024))
if WPRE:
    A('s_waitcnt vmcnt(5)')
    A('s_barrier')
    wtr()
def lammax():
    A('v_max3_f32 %s, %s, %s, %s' % (v(vT[5]), v(g4[0] + 2), v(g4[1] + 2), v(g4[2] + 2)))
    A('v_max_f32 %s, %s, %s' % (v(vT[5]), v(vT[5]), v(g4[3] + 2)))
mpoll(l4, g4, chk_lam, first_in_flight=True, extra=lammax)
stamp(10)
dpp_add(vT[5], 8, 'max')
allred_rows(vT[5], vT[6], 'max')
for i in range(4): A('v_sub_f32 %s, %s, %s' % (v(g4[i] + 2), v(g4[i] + 2), v(vT[5])))
for i in range(4): A('v_exp_f32 %s, %s' % (v(g4[i] + 2), v(g4[i] + 2)))
A('v_mul_f32 %s, %s, %s' % (v(vP0), v(vP0 + 2), v(vP0)))
A('v_mul_f32 %s, %s, %s' % (v(vP0 + 1), v(vP0 + 2), v(vP0 + 1)))
for i in range(1, 4):
    A('v_fmac_f32 %s, %s, %s' % (v(vP0), v(g4[i] + 2), v(g4[i])))
    A('v_fmac_f32 %s, %s, %s' % (v(vP0 + 1), v(g4[i] + 2), v(g4[i] + 1)))
    A('v_add_f32 %s, %s, %s' % (v(vP0 + 2), v(vP0 + 2), v(g4[i] + 2)))
A('v_mov_b32 %s, %s' % (v(vP0 + 3), v(vP0 + 2)))
A('v_permlane32_swap_b32 %s, %s' % (v(vP0), v(vP0 + 1)))
A('v_permlane32_swap_b32 %s, %s' % (v(vP0 + 2), v(vP0 + 3)))
A('v_add_f32 %s, %s, %s' % (v(vP0), v(vP0), v(vP0 + 1)))
A('v_add_f32 %s, %s, %s' % (v(vP0 + 2), v(vP0 + 2), v(vP0 + 3)))
A('v_mov_b32 %s, %s' % (v(vP0 + 1), v(vP0)))
A('v_mov_b32 %s, %s' % (v(vP0 + 3), v(vP0 + 2)))
A('v_permlane16_swap_b32 %s, %s' % (v(vP0), v(vP0 + 1)))
A('v_permlane16_swap_b32 %s, %s' % (v(vP0 + 2), v(vP0 + 3)))
A('v_add_f32 %s, %s, %s' % (v(vP0 + 2), v(vP0 + 2), v(vP0 + 3)))
A('v_add_f32 %s, %s, %s' % (v(vP0), v(vP0), v(vP0 + 1)))
dpp_add(vP0 + 2, 8); dpp_add(vP0, 8)
A('v_rcp_f32 %s, %s' % (v(vP0 + 2), v(vP0 + 2)))
A('v_mul_f32 %s, %s, %s' % (v(vP0), v(vP0), v(vP0 + 2)))
cvt(vP0, vP0, vP0)
A('ds_write_b16 %s, %s offset:%d' % (v(vT[3]), v(vP0), L_ACC))
bar()
stamp(9)
for b in range(4):
    A('ds_read_b128 %s, %s offset:%d' % (v(vFB + 4 * b, 4), v(vT[2]), L_ACC + 64 * b))
    if not WPRE:
        A('ds_read_b64_tr_b16 %s, %s offset:%d' % (v(vW1 + 4 * b, 2), v(vT[1]), 8192 * b))
        A('ds_read_b64_tr_b16 %s, %s offset:%d' % (v(vW1 + 4 * b + 2, 2), v(vT[1]), 8192 * b + 1024))
for b in range(4):
    A('s_waitcnt lgkmcnt(%d)' % ((3 - b) if WPRE else (9 - 3 * b)))
    mfma(vACC, vFB + 4 * b, vW1 + 4 * b, b == 0)
A('s_cmp_eq_u32 %s, 0' % sRB)
if NC > 1:
    movdpp(vT[6], vACC, 'row_ror:8')
    A('v_cndmask_b32 %s, %s, %s, %s' % (v(vG), v(vACC + 1), v(vT[6]), sMSK))
    A('v_cndmask_b32 %s, %s, %s, %s' % (v(vG + 1), v(vT[6]), v(vACC + 1), sMSK))
    stws(vG, vT[4], sKV)
else:
    movdpp(vG + 1, vACC, 'row_ror:8')
    A('v_mov_b32 %s, %s' % (v(vG), v(vACC + 1)))
    set_exec(0xff)
    stws(vG, oX, sKV)
    set_exec(FULL)
stamp(11)
A('s_cbranch_scc1 L_RED')
A('L_FIN0:')
fin()
A('L_END0:')
A('s_endpgm')
A('L_GT:')
a.hist = []
A('s_barrier')
for i in range(4 - GS6): tone()
if not GD: ddma()
if DG: A('s_memrealtime s[64:65]')
A('s_branch L_ROLE_G')
A('L_PAGE0_END:')
if not STAMPS:
    a.raw('.if (L_PAGE0_END - %s_kernel) > 4096\n.error "page 0 overflow"\n.endif' % NAME)
    a.raw('.fill (4096 - (L_PAGE0_END - %s_kernel)) / 4, 4, 0xbf800000' % NAME)
A('L_ROLE_G:')
a.hist = []
if DG == 1: A('s_memrealtime s[66:67]')
A('s_lshl_b32 %s, %s, 12' % (sJ := 's28', sIDX))
A('s_add_u32 %s, %s, 0x%x' % (sJ, sJ, WS_E4))
A('v_lshlrev_b32 %s, 4, v0' % v(vT[5]))
A('v_and_b32 %s, 0xff0, %s' % (v(vT[5]), v(vT[5])))
A(ldws(vCS, vT[5], sJ))
A('s_lshl_b32 %s, %s, 8' % (sC, sRB))
A('buffer_load_ushort %s, %s, %s, %s offen' % (v(vXR), v(vT[3]), srd(SRD_X), sC))
A('s_and_b32 %s, %s, 1' % (sE, sW))
A('s_lshl_b32 %s, %s, 2' % (sE, sE))
A('s_lshr_b32 %s, %s, 1' % (sD, sW))
A('s_or_b32 %s, %s, %s' % (sC, sE, sD))
A('s_xor_b32 %s, %s, %s' % (sC, sC, sW))
A('s_lshl_b32 %s, %s, 5' % (sC, sC))
A('v_xor_b32 %s, %s, %s' % (v(vT[1]), sC, v(oTR)))
A('v_add_u32 %s, 0x%x, %s' % (v(vT[1]), L_W, v(vT[1])))
sDST = 's33'
A('s_andn2_b32 %s, %s, 3' % (sDST, sIDX))
A('s_add_u32 %s, %s, %s' % (sDST, sDST, sD))
A('s_lshl_b32 %s, %s, 12' % (sDST, sDST))
A('s_add_u32 %s, %s, 0x%x' % (sDST, sDST, WS_E4))
A('s_add_u32 %s, %s, %s' % (sE, sE, sRB))
A('v_lshrrev_b32 %s, 1, %s' % (v(vT[4]), v(vCC)))
A('v_lshlrev_b32 %s, 8, %s' % (v(vT[4]), v(vT[4])))
A('v_and_b32 %s, 1, %s' % (v(vT[6]), v(vL)))
A('v_lshl_or_b32 %s, %s, 4, %s' % (v(vT[4]), v(vT[6]), v(vT[4])))
A('v_lshl_add_u32 %s, %s, 5, %s' % (v(vT[4]), sE, v(vT[4])))
A('s_lshl_b32 %s, %s, 4' % (sE, sE))
A('s_add_u32 %s, %s, 2048' % (sE, sE))
A('v_mov_b32 %s, %s' % (v(vT[7]), sE))
A('v_cmp_eq_u32 s[10:11], 8, %s' % v(vL))
A('v_and_b32 %s, 8, %s' % (v(vT[6]), v(vL)))
A('v_cmp_ne_u32 %s, 0, %s' % (sMSK, v(vT[6])))
A('v_cndmask_b32 %s, %s, %s, s[10:11]' % (v(oFR), v(vT[4]), v(vT[7])))
A('s_add_u32 %s, %s, 1024' % (sE, sDST))
A('v_and_b32 %s, 14, %s' % (v(oWQ), v(vL)))
A('v_lshlrev_b32 %s, 3, %s' % (v(oWQ), v(oWQ)))
A('s_lshl3_add_u32 %s, %s, %s' % (sA, sRB, sW))
if NC > 1:
    A('s_lshl_b32 %s, %s, 5' % (sC, sG))
    A('s_add_u32 %s, %s, %s' % (sA, sA, sC))
A('s_mul_i32 %s, %s, %d' % (sA, sA, 32 * LS3))
A('s_add_u32 %s, %s, 0x%x' % (sA, sA, WS_E3))
for i_, r_ in enumerate(('s48', 's49', 's50')): A('s_add_u32 %s, %s, %d' % (r_, sA, 8 * LS3 * (i_ + 1)))
A('v_lshrrev_b32 %s, 3, %s' % (v(vT[0]), v(vL)))
A('v_mul_u32_u24 %s, %d, %s' % (v(vT[0]), LS3, v(vT[0])))
A('v_add_u32 %s, %s, %s' % (v(vT[0]), v(vT[0]), v(oW2)))
l4 = [ldws(g4[i], vT[0], (sA, 's48', 's49', 's50')[i]) for i in range(4)]
A('s_lshl_b32 %s, %s, 9' % (sB, sW))
A('s_add_u32 %s, %s, %s' % (sB, sB, sIDX))
A('s_mul_i32 %s, %s, %d' % (sB, sB, LS5))
A('s_add_u32 %s, %s, 0x%x' % (sB, sB, WS_E5))
A('v_mul_u32_u24 %s, %d, %s' % (v(oV), 128 * LS5, v(vROW)))
A('v_add_u32 %s, %s, %s' % (v(oV), v(oV), v(oW2)))
A('v_bfe_u32 %s, %s, 3, 1' % (v(vT[6]), v(vL)))
A('v_lshl_or_b32 %s, %s, 1, %s' % (v(vT[6]), v(vROW), v(vT[6])))
A('v_bfe_u32 %s, %s, 2, 1' % (v(vT[7]), v(vL)))
A('v_and_b32 %s, 3, %s' % (v(oK), v(vT[6])))
A('v_lshl_or_b32 %s, %s, 2, %s' % (v(oK), v(vT[7]), v(oK)))
A('v_lshl_or_b32 %s, %s, 3, %s' % (v(vT[6]), v(vT[7]), v(vT[6])))
A('v_lshlrev_b32 %s, 2, %s' % (v(vT[7]), v(vWv)))
A('v_xor_b32 %s, %s, %s' % (v(oK), v(oK), v(vT[7])))
A('v_lshlrev_b32 %s, 5, %s' % (v(oK), v(oK)))
A('v_lshl_or_b32 %s, %s, 10, %s' % (v(oK), v(vT[6]), v(oK)))
A('v_and_b32 %s, 3, %s' % (v(vT[6]), v(vL)))
A('v_lshl_or_b32 %s, %s, 3, %s' % (v(oK), v(vT[6]), v(oK)))
A('v_cmp_eq_u32 s[98:99], 1, %s' % v(vROW))
for i in range(4): A('v_mov_b32 %s, %s' % (v(vA4 + i), sONE))
A('s_waitcnt vmcnt(0)')
A('s_barrier')
if DG == 2: A('s_memrealtime s[66:67]')
stamp(9)
for l in l4: A(l)
for b in range(4):
    A('ds_read_b64_tr_b16 %s, %s offset:%d' % (v(vW1 + 4 * b, 2), v(vT[1]), 8192 * b))
    A('ds_read_b64_tr_b16 %s, %s offset:%d' % (v(vW1 + 4 * b + 2, 2), v(vT[1]), 8192 * b + 1024))
for t4 in range(4):
    if t4: A('v_xor_b32 %s, %d, %s' % (v(vT[6]), 32 * t4, v(oK)))
    A('ds_read_b64_tr_b16 %s, %s offset:%d' % (v(vW2 + 2 * t4, 2), v(vT[6] if t4 else oK), L_K))
lo16(vXR, vXR)
A('s_waitcnt lgkmcnt(0)')
for b in range(4): mfma(vACC, vA4, vW1 + 4 * b, b == 0)
A('v_mov_b32 %s, %s' % (v(vG), v(vACC)))
movdpp(vG + 1, vACC, 'row_ror:8')
set_exec(0xff)
st_grp(vG, vT[4], sE)
set_exec(FULL)
stamp(10)
mpoll(l4, g4, chk_tags, first_in_flight=True)
if DG == 3: A('s_memrealtime s[66:67]')
stamp(11)
A('v_pk_add_f32 %s, %s, %s' % (v(vP0, 2), v(vP0, 2), v(vP0 + 4, 2)))
A('v_pk_add_f32 %s, %s, %s' % (v(vP1, 2), v(vP1, 2), v(vP1 + 4, 2)))
A('v_pk_add_f32 %s, %s, %s' % (v(vP0, 2), v(vP0, 2), v(vP1, 2)))
red8(vP0)
resid1(vP0, vXR)
A('ds_write_b16 %s, %s offset:%d' % (v(vT[3]), v(vP0), L_ACC))
bar()
for b in range(4): A('ds_read_b128 %s, %s offset:%d' % (v(vFB + 4 * b, 4), v(vT[2]), L_ACC + 64 * b))
A('s_bitcmp1_b32 %s, 0' % sW)
A('s_cbranch_scc1 L_ST_UP')
for b in range(4):
    A('s_waitcnt lgkmcnt(%d)' % (3 - b))
    mfma(vACC, vFB + 4 * b, vW1 + 4 * b, b == 0)
    mfma(vY, vFB + 4 * b, vFB + 4 * b, b == 0)
A('s_branch L_ST_GO')
A('L_ST_UP:')
a.hist = []
for b in range(4):
    A('s_waitcnt lgkmcnt(%d)' % (3 - b))
    mfma(vACC, vFB + 4 * b, vW1 + 4 * b, b == 0)
    mfma(vY, vFB + 4 * b, vA4, b == 0)
A('L_ST_GO:')
movdpp(vG + 1, vACC, 'row_ror:8')
A('v_cndmask_b32 %s, %s, %s, s[10:11]' % (v(vG), v(vACC + 1), v(vY)))
set_exec(0x1ff)
st_grp(vG, oFR, sDST)
set_exec(FULL)
stamp(12)
mpoll([ldws(vP0, oX, sJ), ldws(vP0 + 4, oWQ, sJ, 2048), ldws(vCS, oX, sJ, 1024)], [vP0, vP0 + 4, vCS], chk_tags)
stamp(13)
PR = ((vP0 + 4, vP0 + 5), (vP0, vP0 + 2), (vP0 + 1, vP0 + 3), (vCS, vCS + 2), (vCS + 1, vCS + 3))
for r, d in PR: dpp(r, r, 'quad_perm:[2,3,0,1]')
for r, d in PR: A('v_add_f32_dpp %s, %s, %s row_shr:4 row_mask:0xf bank_mask:0xa' % (v(d), v(r), v(r)))
for r, d in PR: A('v_add_f32_dpp %s, %s, %s row_shl:4 row_mask:0xf bank_mask:0x5' % (v(d), v(r), v(r)))
movdpp(vP0 + 4, vP0 + 5, 'row_ror:8')
A('v_cndmask_b32 %s, %s, %s, %s' % (v(vP0 + 6), v(vP0 + 4), v(vP0 + 5), sMSK))
A('v_cndmask_b32 %s, %s, %s, %s' % (v(vP0 + 7), v(vP0 + 5), v(vP0 + 4), sMSK))
ln_stats(vP0 + 6, vP0 + 7, vT[5], vT[6], vT[7])
for i in range(2): A('v_fma_f32 %s, -%s, %s, %s' % (v(vP0 + i), v(vT[5]), v(vCS + 2 + i), v(vP0 + 2 + i)))
for i in range(2): A('v_mul_f32 %s, %s, %s' % (v(vP0 + i), v(vP0 + i), v(vT[6])))
cvt(vT[7], vP0, vP0 + 1)
lo16(vP0, vT[7]); hi16(vP0 + 1, vT[7])
A('v_max_f32 %s, 0, %s' % (v(vP0 + 2), v(vP0)))
A('v_max_f32 %s, 0, %s' % (v(vP0 + 3), v(vP0 + 1)))
A('v_cndmask_b32 %s, %s, %s, %s' % (v(vP0), v(vP0 + 2), v(vP0), sMSK))
A('v_cndmask_b32 %s, %s, %s, %s' % (v(vP0 + 1), v(vP0 + 3), v(vP0 + 1), sMSK))
dpp(vP0, vP0, 'row_ror:8', 'mul'); dpp(vP0 + 1, vP0 + 1, 'row_ror:8', 'mul')
cvt(vT[7], vP0, vP0 + 1)
movdpp(vX4, vT[7], 'quad_perm:[0,0,2,2]'); movdpp(vX4 + 1, vT[7], 'quad_perm:[1,1,3,3]')
for t4 in range(4):
    A('v_mfma_f32_16x16x16_bf16 %s, %s, %s, 0' % (v(vFA + 4 * t4, 4), v(vX4, 2), v(vW2 + 2 * t4, 2)))
A('v_cndmask_b32 %s, %s, %s, s[98:99]' % (v(vG), v(vFA), v(vFA + 4)))
A('s_mov_b32 exec_lo, 0')
A('v_mov_b32 %s, %s' % (v(vG), v(vFA + 8)))
A('s_mov_b32 exec_hi, %s' % sHI)
A('v_mov_b32 %s, %s' % (v(vG), v(vFA + 12)))
set_exec(FULL)
movdpp(vG + 1, vG, 'row_ror:8')
set_exec(0x00ff00ff00ff00ff)
stws(vG, oV, sB)
set_exec(FULL)
if DG:
    A('s_waitcnt lgkmcnt(0)')
    A('s_sub_u32 s68, s66, s64')
    A('s_lshl_b32 s68, s68, 3')
    A('s_min_u32 s68, s68, 20000')
    A('s_memrealtime s[70:71]')
    A('s_waitcnt lgkmcnt(0)')
    A('L_DG2:')
    A('s_memrealtime s[72:73]')
    A('s_waitcnt lgkmcnt(0)')
    A('s_sub_u32 s69, s72, s70')
    A('s_cmp_lt_u32 s69, s68')
    A('s_cbranch_scc1 L_DG2')
stamp(14)
fin()
A('L_RED:')
a.hist = []
if OPT('rbar', 1): A('s_barrier')
A('s_load_dwordx2 s[20:21], s[0:1], 72')
A('s_mov_b64 s[22:23], s[%d:%d]' % (SRD_X + 2, SRD_X + 3))
A('v_lshrrev_b32 %s, 3, v0' % v(vT[4]))
A('v_and_b32 %s, 31, %s' % (v(vT[0]), v(vT[4])))
A('v_mul_u32_u24 %s, %d, %s' % (v(vT[0]), LS3, v(vT[0])))
A('v_add_u32 %s, %s, %s' % (v(vT[0]), v(vT[0]), v(oW2)))
A('v_mul_u32_u24 %s, %d, %s' % (v(vT[4]), LS5, v(vT[4])))
A('v_add_u32 %s, %s, %s' % (v(vT[4]), v(vT[4]), v(oW2)))
A('s_lshl_b32 %s, %s, 5' % (sA, sG))
A('s_add_u32 %s, %s, %s' % (sA, sIDX, sA if NC > 1 else '0'))
A('s_mul_i32 %s, %s, %d' % (sA, sA, 32 * LS3))
A('s_add_u32 %s, %s, 0x%x' % (sA, sA, WS_E3))
A('v_lshlrev_b32 %s, 1, %s' % (v(vT[1]), v(vL15)))
A('s_lshl_b32 %s, %s, 5' % (sD, sIDX))
A('buffer_load_ushort %s, %s, %s, %s offen' % (v(vX4), v(vT[1]), srd(SRD_X), sD))
A('v_lshl_or_b32 %s, %s, 3, %s' % (v(vT[2]), v(vPI), v(vCC)))
A('v_lshl_or_b32 %s, %s, 3, %s' % (v(vT[2]), v(vT[2]), v(vWv)))
A('v_lshlrev_b32 %s, 2, %s' % (v(vT[2]), v(vT[2])))
A('v_lshlrev_b32 %s, 5, %s' % (v(vT[3]), v(vL15)))
A('v_lshl_or_b32 %s, %s, 3, %s' % (v(vT[3]), v(vROW), v(vT[3])))
A('s_mul_i32 %s, %s, %d' % (sB, sIDX, 128 * LS5))
A('s_add_u32 %s, %s, 0x%x' % (sB, sB, WS_E5))
A('s_cmp_lt_u32 %s, 6' % sW)
A('s_cselect_b32 %s, %d, 0' % (sC, 64 * LS5))
A('s_cselect_b32 %s, 1.0, 0' % sE)
A('s_add_u32 %s, %s, %s' % (sC, sC, sB))
mpoll([ldws(vP0, vT[0], sA)], [vP0], chk_tags)
red8(vP0)
A('ds_write_b32 %s, %s offset:%d' % (v(vT[2]), v(vP0), L_R1))
lo16(vX4, vX4)
bar()
A('ds_read_b64 %s, %s offset:%d' % (v(vP1, 2), v(vT[3]), L_R1))
A('s_waitcnt lgkmcnt(0)')
A('v_add_f32 %s, %s, %s' % (v(vP1), v(vP1), v(vP1 + 1)))
allred_rows(vP1, vP1 + 1, 'add', (16,))
resid1(vP1, vX4)
lo16(vX4, vP1)
stamp(12)
mpoll([ldws(vP0, vT[4], sB), ldws(vP0 + 4, vT[4], sC)], [vP0, vP0 + 4], chk_tags)
stamp(13)
A('s_cmp_lt_u32 %s, 6' % sW)
A('s_cbranch_scc0 L_R_ONE')
A('v_pk_add_f32 %s, %s, %s' % (v(vP0, 2), v(vP0, 2), v(vP0 + 4, 2)))
A('L_R_ONE:')
red8(vP0)
A('ds_write_b32 %s, %s offset:%d' % (v(vT[2]), v(vP0), L_R2))
bar()
A('s_cmp_lg_u32 %s, 0' % sW)
A('s_cbranch_scc1 L_FIN')
A('ds_read_b64 %s, %s offset:%d' % (v(vP0, 2), v(vT[3]), L_R2))
A('s_waitcnt lgkmcnt(0)')
A('v_add_f32 %s, %s, %s' % (v(vP0), v(vP0), v(vP0 + 1)))
allred_rows(vP0, vP0 + 1, 'add')
resid1(vP0, vX4)
set_exec(0xffff)
A('buffer_store_short %s, %s, %s, %s offen' % (v(vP0), v(vT[1]), SRD_OUT, sD))
A('s_cmp_lg_u32 %s, 0' % sIDX)
A('s_cbranch_scc1 L_NOEP')
set_exec(1)
A('buffer_store_dword %s, %s, %s, 0 offen offset:%d' % (v(vG + 2), v(vT[1]), SRD_WS, WS_EPOCH))
if DIAG >= 0:
    A('L_NOEP:')
    A('s_cmp_lg_u32 %s, %d' % (sIDX, 4 * OPT('dx', 0)))
    A('s_cbranch_scc1 L_NOEP2')
    stamp(14)
    A('s_waitcnt lgkmcnt(0)')
    A('s_sub_u32 s68, s66, s64')
    A('s_lshl_b32 s68, s68, 3')
    A('s_min_u32 s68, s68, 20000')
    A('s_memrealtime s[70:71]')
    A('s_waitcnt lgkmcnt(0)')
    A('L_DG:')
    A('s_memrealtime s[72:73]')
    A('s_waitcnt lgkmcnt(0)')
    A('s_sub_u32 s69, s72, s70')
    A('s_cmp_lt_u32 s69, s68')
    A('s_cbranch_scc1 L_DG')
A('L_NOEP:' if DIAG < 0 else 'L_NOEP2:')
set_exec(FULL)
if DIAG < 0: stamp(14)
A('L_FIN:')
if STAMPS:
    A('s_waitcnt lgkmcnt(0)')
    A('v_mov_b32 %s, 0' % v(vT[8]))
    for i in range(16): A('v_writelane_b32 %s, s%d, %d' % (v(vT[8]), 64 + 2 * i, i))
    A('s_lshl_b32 %s, s2, 9' % sB)
    A('s_lshl_b32 %s, %s, 6' % (sC, sW))
    A('s_add_u32 %s, %s, %s' % (sB, sB, sC))
    A('s_add_u32 %s, %s, 0x%x' % (sB, sB, WS_ST))
    A('v_lshlrev_b32 %s, 2, %s' % (v(vT[9]), v(vL)))
    set_exec(0xffff)
    A('buffer_store_dword %s, %s, %s, %s offen' % (v(vT[8]), v(vT[9]), SRD_WS, sB))
A('s_endpgm')
A('L_E1_RETRY:')
a.hist = []
A('s_mov_b32 %s, 0x%x' % (sC, (-E1_FS if NOFAST else E1_FS) & 0xffffffff))
def flip():
    A('s_add_u32 %s, %s, %s' % (sA, sA, sC))
    A('s_add_u32 %s, %s, %s' % (sB, sB, sC))
    A('s_sub_u32 %s, 0, %s' % (sC, sC))
mpoll(e1l, [vP0, vP0 + 4], chk_tags, each=flip)
A('s_branch L_E1_OK')
a.raw('.p2align 12, 0')
nv = (NVGPR + 7) // 8 * 8
a.raw('''.section .rodata,"a"
.p2align 6
.amdhsa_kernel %s_kernel
  .amdhsa_next_free_vgpr %d
  .amdhsa_next_free_sgpr 102
  .amdhsa_accum_offset %d
  .amdhsa_group_segment_fixed_size 0
  .amdhsa_kernarg_size 96
  .amdhsa_user_sgpr_count 2
  .amdhsa_user_sgpr_kernarg_segment_ptr 1
  .amdhsa_system_sgpr_workgroup_id_x 1
  .amdhsa_float_denorm_mode_32 3
.end_amdhsa_kernel''' % (NAME, nv, nv))
open(OUT, 'w').write(a.text())
print('wrote', OUT, 'vgprs', NVGPR)
```

```python
import sys
from asmlib import Asm

NAME = 'sequential_preLN__sliding_block_cached__glu_gated_reglu__decode'
STAMPS = '--stamps' in sys.argv
NOFAST = '--nofast' in sys.argv
def OPT(name, d=0):
    for a_ in sys.argv:
        if a_.startswith('--%s=' % name): return int(a_.split('=')[1])
    return d
WPRE = OPT('wpre', 1)
G4 = OPT('g4', 0)
GP = OPT('gp', 0)
K1 = OPT('k1', 3); V2 = OPT('v2', 2); TP = str(OPT('tp', 4466))
LS3 = OPT('ls3', 128); LS5 = OPT('ls5', 128); NC = OPT('nc', 1)
GD = OPT('gd', 0); GS6 = OPT('gs6', 0)
FSLEEP = OPT('fsleep', 1); PF = OPT('pf', 0)
OUT = [a for a in sys.argv[1:] if not a.startswith('--')]
OUT = OUT[0] if OUT else 'cdna_kernels/%s.s' % NAME

WS_EPOCH = 0
WS_FL = 0x8000
WS_E1 = 0x10000; E1_K = 4352; E1_G = 4 * E1_K; E1_FS = 0x24000
WS_E3 = 0x200000
WS_E4 = 0x80000
WS_E2 = 0x100000
WS_E5 = 0x380000
WS_ST = 0x500000
WS_SIZE = 0x800000
QS = 272
L_QACC = 0; L_Q = 2048; L_P = L_Q + 4 * QS
L_MAX = L_P + 4 * QS; L_LS = L_MAX + 128
L_R1 = L_LS + 128; L_R2 = L_R1 + 512; L_ACC = L_R2 + 512
L_FLG = L_ACC + 256
L_V = 8192; L_K = L_V + 32768; L_W = L_K + 32768
LDS_BYTES = L_W + 32768
LOG2E = 0x3fb8aa3b; SCALE = 0x3db504f3; EPS = 0x3727c5ac; INV512 = 0x3b000000; ONES = 0x3f803f80
SPIN = 1 << 21

a = Asm(); A = a
sW, sG, sR = 's3', 's4', 's5'
sTAG = 's[6:7]'; sTA, sTB = 's6', 's7'
sMSK = 's[8:9]'
sSELLO, sSELHI = 's12', 's13'
sCNT = 's14'; sONE = 's15'
SRD_WS = 's[16:19]'; SRD_OUT = 's[20:23]'
sA, sB, sC, sD = 's24', 's25', 's26', 's27'
sKV = 's28'; sJ = 's29'; sSTEP = 's30'; sIDX = 's31'; sRB = 's32'; sM0 = 's33'
sXT = 's34'; sROLE = 's35'
SRD_X, SRD_WQ, SRD_K, SRD_V, SRD_W2 = 36, 40, 44, 48, 52
pWO, pWG, pWU = 56, 60, 62
sHI = 's58'; sE = 's59'; sFAST = 's96'; sF = 's97'; sVM = 's98'; sVS = 's99'; s8K = 's100'; sLG = 's101'
MS = ['s[40:41]', 's[42:43]', 's[44:45]', 's[46:47]']
def srd(n): return 's[%d:%d]' % (n, n + 3)
W3 = 's%d' % (SRD_X + 3)

class V:
    n = 0
    @classmethod
    def alloc(cls, k=1, align=1):
        cls.n = (cls.n + align - 1) // align * align
        r = cls.n; cls.n += k
        return r
def v(r, k=1): return 'v%d' % r if k == 1 else 'v[%d:%d]' % (r, r + k - 1)
vTID = V.alloc(); vL = V.alloc(); vZ = V.alloc()
vWv = V.alloc(); vPI = V.alloc(); vL15 = V.alloc(); vROW = V.alloc(); vCC = V.alloc()
vT = [V.alloc() for _ in range(12)]
oX, oXR, oWQ, oK, oV, oW2, oTR, oFR = [V.alloc() for _ in range(8)]
vK = V.alloc(16, 4); vW1 = vK
vFB = V.alloc(16, 4); vFA = V.alloc(16, 4)
vXF = vFB; vWQa = vFB + 4; vWQb = vFB + 8
vW2 = V.alloc(8, 4); vY = V.alloc(8, 4); vACC = V.alloc(4, 4)
vG = V.alloc(4, 4); vG2 = V.alloc(4, 4)
vP0 = V.alloc(8, 4); vP1 = V.alloc(8, 4)
vCS = V.alloc(4, 4); vA4 = V.alloc(4, 4); vCN = V.alloc(4, 4)
vXR = V.alloc(2, 2); vX4 = V.alloc(2, 2); vWA = V.alloc(2, 2); oVD = V.alloc(); vDUM = V.alloc()
NVGPR = V.n

DIAG = OPT('diag', -1); DG = OPT('dg', 0)
def stamp(i):
    if STAMPS: A('s_memrealtime s[%d:%d]' % (64 + 2 * i, 65 + 2 * i))
    if DIAG >= 0 and i == 0: A('s_memrealtime s[64:65]')
    if DIAG >= 0 and i == DIAG: A('s_memrealtime s[66:67]')
lab = [0]
def newlab(p='L'):
    lab[0] += 1
    return '%s%d' % (p, lab[0])
def dpp(d, s, mod, op='add'):
    A('v_%s_f32_dpp %s, %s, %s %s row_mask:0xf bank_mask:0xf' % (op, v(d), v(s), v(s), mod))
def dpp_add(d, ror, op='add'): dpp(d, d, 'row_ror:%d' % ror, op)
def movdpp(d, s, mod): A('v_mov_b32_dpp %s, %s %s row_mask:0xf bank_mask:0xf' % (v(d), v(s), mod))
def allred_rows(x, t, op='add', which=(16, 32)):
    for wdt in which:
        A('v_mov_b32 %s, %s' % (v(t), v(x)))
        A('v_permlane%d_swap_b32 %s, %s' % (wdt, v(x), v(t)))
        A('v_%s_f32 %s, %s, %s' % (op, v(x), v(x), v(t)))
def hi16(d, s): A('v_and_b32 %s, %s, %s' % (v(d), sHI, v(s)))
def lo16(d, s): A('v_lshlrev_b32 %s, 16, %s' % (v(d), v(s)))
def cvt(d, x, y): A('v_cvt_pk_bf16_f32 %s, %s, %s' % (v(d), v(x), v(y)))
def bf16r(d, s): cvt(d, s, s); hi16(d, d)
def ln_stats(vsum, vsq, vm, vr, t):
    A('v_mul_f32 %s, 0x%x, %s' % (v(vsum), INV512, v(vsum)))
    A('v_mul_f32 %s, 0x%x, %s' % (v(vsq), INV512, v(vsq)))
    A('v_fma_f32 %s, -%s, %s, %s' % (v(vsq), v(vsum), v(vsum), v(vsq)))
    A('v_max_f32 %s, 0, %s' % (v(vsq), v(vsq)))
    cvt(t, vsum, vsq)
    lo16(vm, t); hi16(vr, t)
    A('v_add_f32 %s, 0x%x, %s' % (v(vr), EPS, v(vr)))
    bf16r(vr, vr)
    A('v_sqrt_f32 %s, %s' % (v(vr), v(vr)))
    bf16r(vr, vr)
    A('v_rcp_f32 %s, %s' % (v(vr), v(vr)))
FULL = (1 << 64) - 1
def set_exec(mask):
    lo, hi = mask & 0xffffffff, mask >> 32
    if mask == FULL: A('s_mov_b64 exec, -1')
    elif hi == 0 and lo <= 64: A('s_mov_b64 exec, %d' % lo)
    elif hi == 0 and lo < 0x80000000: A('s_mov_b64 exec, 0x%x' % lo)
    elif lo == hi:
        A('s_mov_b32 exec_lo, 0x%x' % lo); A('s_mov_b32 exec_hi, exec_lo')
    else: raise ValueError
def mpoll(loads, grans, check, first_in_flight=False, extra=None, each=None):
    top = newlab('P'); done = newlab('D'); chk = newlab('C')
    A('s_mov_b32 %s, %d' % (sCNT, SPIN))
    if not first_in_flight:
        for l in loads: A(l)
    A('s_branch %s' % chk)
    A('%s:' % top)
    if each: each()
    for i, l in enumerate(loads):
        sk = newlab('K')
        A('s_mov_b64 exec, %s' % MS[i])
        A('s_cbranch_execz %s' % sk)
        A(l)
        A('%s:' % sk)
    A('s_mov_b64 exec, -1')
    A('%s:' % chk)
    A('s_waitcnt vmcnt(0)')
    for i, gq in enumerate(grans): check(i, gq, vY + i)
    for i, gq in enumerate(grans): A('v_cmp_ne_u32 %s, 0, %s' % (MS[i], v(vY + i)))
    if extra: extra()
    A('s_sub_u32 %s, %s, 1' % (sCNT, sCNT))
    A('s_cbranch_scc1 %s' % done)
    A('s_or_b64 vcc, %s, %s' % (MS[0], MS[1 if len(grans) > 1 else 0]))
    for i in range(2, len(grans)): A('s_or_b64 vcc, vcc, %s' % MS[i])
    A('s_cbranch_scc1 %s' % top)
    A('%s:' % done)
def chk_tags(i, gq, t):
    A('v_xor_b32 %s, %s, %s' % (v(t), sTA, v(gq + 2)))
    A('v_xor_b32 %s, %s, %s' % (v(t + 4), sTB, v(gq + 3)))
    A('v_or_b32 %s, %s, %s' % (v(t), v(t), v(t + 4)))
def chk_lam(i, gq, t):
    A('v_xor_b32 %s, %s, %s' % (v(t), sTA, v(gq + 3)))
    A('v_xor_b32_dpp %s, %s, %s quad_perm:[1,0,3,2] row_mask:0xf bank_mask:0xf' % (v(t + 4), v(gq + 2), v(gq + 2)))
    A('v_or_b32 %s, %s, %s' % (v(t), v(t), v(t + 4)))
def ldws(dst, voff, soff, imm=0):
    return 'buffer_load_dwordx4 %s, %s, %s, %s offen%s sc1' % (v(dst, 4), v(voff), SRD_WS, soff, (' offset:%d' % imm) if imm else '')
def stws(src, voff, soff, sc1=True):
    A('buffer_store_dwordx4 %s, %s, %s, %s offen%s' % (v(src, 4), v(voff), SRD_WS, soff, ' sc1' if sc1 else ''))
def st_grp(src, voff, soff):
    l1 = newlab('S'); l2 = newlab('S')
    A('s_cmp_eq_u32 %s, 0' % sFAST)
    A('s_cbranch_scc1 %s' % l1)
    stws(src, voff, soff, False)
    A('s_branch %s' % l2)
    A('%s:' % l1)
    stws(src, voff, soff, True)
    A('%s:' % l2)
def red8(x):
    A('v_permlane32_swap_b32 %s, %s' % (v(x), v(x + 1)))
    A('v_add_f32 %s, %s, %s' % (v(x), v(x), v(x + 1)))
    allred_rows(x, x + 1, 'add', (16,))
    dpp_add(x, 8)
def resid1(x, base):
    bf16r(x, x)
    A('v_add_f32 %s, %s, %s' % (v(x), v(x), v(base)))
    cvt(x, x, x)
def bar():
    A('s_waitcnt lgkmcnt(0)')
    A('s_barrier')
def mfma(acc, x, y, first): A('v_mfma_f32_16x16x32_bf16 %s, %s, %s, %s' % (v(acc, 4), v(x, 4), v(y, 4), '0' if first else v(acc, 4)))
def kdma(i):
    if i: A('v_xor_b32 %s, 0x%x, %s' % (v(vT[11]), 64 * i, v(oK)))
    A('buffer_load_dwordx4 %s, %s, %s offen offset:%d nt lds' % (v(vT[11] if i else oK), srd(SRD_K), sVS, 1024 * i))
def vdma():
    A('s_mov_b32 m0, %s' % sVM)
    A('s_add_u32 %s, %s, %s' % (sVM, sVM, s8K))
    A('buffer_load_dwordx4 %s, %s, %s offen nt lds' % (v(oVD), srd(SRD_V), sVS))
    A('s_add_u32 %s, %s, %s' % (sVS, sVS, s8K))
def tone():
    A('s_mov_b32 m0, %s' % sM0)
    A('s_add_u32 %s, %s, %s' % (sM0, sM0, s8K))
    A('global_load_lds_dwordx4 %s, off nt' % v(vWA, 2))
    A('v_lshl_add_u64 %s, %s, 0, s[30:31]' % (v(vWA, 2), v(vWA, 2)))
def ddma():
    A('s_mul_i32 s%d, %s, 14' % (SRD_W2 + 2, W3)); A('s_mov_b32 s%d, %s' % (SRD_W2 + 3, W3))
    A('s_lshl_b32 %s, %s, 5' % (sC, sW))
    A('s_and_b32 %s, %s, 0x80' % (sD, sC))
    A('s_lshl_b32 %s, %s, 1' % (sC, sC))
    A('s_and_b32 %s, %s, 64' % (sC, sC))
    A('s_or_b32 %s, %s, %s' % (sC, sC, sD))
    A('v_xor_b32 %s, %s, %s' % (v(vT[11]), sC, v(oX)))
    A('s_add_u32 %s, %s, %d' % (sC, sW, L_K // 2048))
    A('s_lshl_b32 m0, %s, 11' % sC)
    A('s_lshl3_add_u32 %s, %s, %s' % (sD, sIDX, sW))
    A('s_lshl_b32 %s, %s, 11' % (sD, sD))
    A('buffer_load_dwordx4 %s, %s, %s offen nt lds' % (v(vT[11]), srd(SRD_W2), sD))
    A('v_xor_b32 %s, 32, %s' % (v(vT[11]), v(vT[11])))
    A('buffer_load_dwordx4 %s, %s, %s offen offset:1024 nt lds' % (v(vT[11]), srd(SRD_W2), sD))
def fin():
    if STAMPS: A('s_branch L_FIN')
    else: A('s_endpgm')

head = []
for l in open('cdna_kernels/%s.s.ref' % NAME).read().split('\n'):
    if not l.startswith(';'): break
    head.append('; @launch grid=(256,1,1) block=(512,1,1) lds=%d' % LDS_BYTES if l.startswith('; @launch') else l)
a.raw('\n'.join(head))
a.raw('.amdgcn_target "amdgcn-amd-amdhsa--gfx950"\n.text\n.globl %s_kernel\n.p2align 12\n.type %s_kernel,@function\n%s_kernel:' % (NAME, NAME, NAME))
sIDX = 's29'
A('s_load_dwordx2 s[%d:%d], s[0:1], 24' % (SRD_WQ, SRD_WQ + 1))
A('s_load_dwordx2 s[%d:%d], s[0:1], 0' % (SRD_X, SRD_X + 1))
A('s_load_dwordx2 s[16:17], s[0:1], 88')
A('s_load_dwordx2 s[%d:%d], s[0:1], 8' % (SRD_K, SRD_K + 1))
A('s_lshr_b32 %s, s2, 3' % sR)
A('s_cmp_ge_u32 %s, 32' % sR)
A('s_cbranch_scc1 L_END0')
def pf():
    A('s_getpc_b64 s[10:11]')
    A('s_and_b32 s10, s10, 0xfffff000')
    if PF == 3: A('s_addk_i32 s10, 4096')
    A('v_lshlrev_b32 %s, 3, v0' % v(vT[1]))
    A('global_load_dword %s, %s, s[10:11]' % (v(vDUM), v(vT[1])))
if PF == 1: pf()
A('v_readfirstlane_b32 %s, v0' % sW)
A('v_and_b32 %s, 63, v0' % v(vL))
A('s_and_b32 %s, s2, 7' % sG)
A('s_and_b32 %s, %s, 3' % (sRB, sR))
A('s_lshr_b32 %s, %s, 2' % (sE, sR))
if STAMPS:
    for i in range(16): A('s_mov_b64 s[%d:%d], 0' % (64 + 2 * i, 65 + 2 * i))
stamp(0)
A('v_lshrrev_b32 %s, 3, v0' % v(vT[0]))
A('v_and_b32 %s, 7, v0' % v(vCC))
A('v_lshlrev_b32 %s, 4, %s' % (v(oW2), v(vCC)))
A('v_lshl_or_b32 %s, %s, 14, %s' % (v(oWQ), v(vT[0]), v(oW2)))
A('s_lshl_b32 %s, %s, 20' % (sA, sRB))
A('s_lshl_b32 %s, %s, 10' % (sC, sG))
A('s_add_u32 %s, %s, %s' % (sA, sA, sC))
A('s_lshl_b32 %s, %s, 7' % (sC, sE))
A('s_add_u32 %s, %s, %s' % (sA, sA, sC))
A('s_movk_i32 %s, 8192' % s8K)
A('s_add_u32 %s, %s, %s' % (sB, sA, s8K))
A('s_mov_b32 %s, 0x20000' % W3)
A('s_lshl_b32 s%d, %s, 5' % (SRD_WQ + 2, W3)); A('s_mov_b32 s%d, %s' % (SRD_WQ + 3, W3))
A('s_movk_i32 s%d, 1024' % (SRD_X + 2))
A('v_lshlrev_b32 %s, 4, %s' % (v(oX), v(vL)))
A('v_lshlrev_b32 %s, 2, %s' % (v(oXR), v(vT[0])))
A('s_lshl_b32 %s, %s, 8' % (sD, sRB))
A('s_waitcnt lgkmcnt(0)')
A('buffer_load_dwordx4 %s, %s, %s, 0 offen' % (v(vXF, 4), v(oX), srd(SRD_X)))
A('buffer_load_dword %s, %s, %s, %s offen' % (v(vXR), v(oXR), srd(SRD_X), sD))
A('buffer_load_dwordx4 %s, %s, %s, %s offen nt' % (v(vWQa, 4), v(oWQ), srd(SRD_WQ), sA))
A('buffer_load_dwordx4 %s, %s, %s, %s offen nt' % (v(vWQb, 4), v(oWQ), srd(SRD_WQ), sB))
A('s_load_dwordx2 %s, s[16:17], %d' % (sTAG, WS_EPOCH))
A('s_lshr_b32 %s, %s, 6' % (sW, sW))
A('s_lshl_b32 s18, %s, 6' % W3); A('s_mov_b32 s19, %s' % W3)
A('s_add_u32 %s, %s, 8' % (sKV, sG))
A('s_lshl_b32 %s, %s, 12' % (sKV, sKV))
A('v_lshlrev_b32 %s, 3, v0' % v(vT[1]))
A('buffer_load_dword %s, %s, %s, %s offen sc1' % (v(vDUM), v(vT[1]), SRD_WS, sKV))
if PF >= 2: pf()
X2 = 1 if PF >= 2 else 0
A('v_lshrrev_b32 %s, 6, v0' % v(vWv))
A('v_and_b32 %s, 15, %s' % (v(vL15), v(vL)))
A('v_lshrrev_b32 %s, 4, %s' % (v(vROW), v(vL)))
A('s_lshl_b32 %s, %s, 8' % (sVS, sG))
A('s_add_u32 %s, %s, %s' % (sVS, sVS, sR))
A('s_addk_i32 %s, 224' % sVS)
A('s_lshl_b32 %s, %s, 15' % (sVS, sVS))
A('v_xor_b32 %s, %s, %s' % (v(vT[1]), v(vL15), v(vROW)))
A('v_lshlrev_b32 %s, 4, %s' % (v(vT[1]), v(vT[1])))
A('v_lshl_or_b32 %s, %s, 12, %s' % (v(vT[2]), v(vWv), v(vT[1])))
A('v_lshl_or_b32 %s, %s, 8, %s' % (v(oK), v(vROW), v(vT[2])))
A('v_lshl_or_b32 %s, %s, 8, %s' % (v(vA4), v(vL15), v(vT[2])))
A('s_lshl_b32 s%d, %s, 9' % (SRD_K + 2, W3)); A('s_mov_b32 s%d, %s' % (SRD_K + 3, W3))
A('s_add_u32 %s, %s, %d' % (sF, sW, L_K // 4096))
A('s_lshl_b32 m0, %s, 12' % sF)
A('s_barrier')
for i in range(K1): kdma(i)
X2 += K1 - 3
stamp(1)
A('s_load_dwordx2 s[%d:%d], s[0:1], 16' % (SRD_V, SRD_V + 1))
A('s_load_dwordx2 s[%d:%d], s[0:1], 32' % (pWO, pWO + 1))
A('s_load_dwordx4 s[%d:%d], s[0:1], 48' % (pWG, pWG + 3))
A('s_load_dwordx2 s[%d:%d], s[0:1], 64' % (SRD_W2, SRD_W2 + 1))
A('s_mov_b32 %s, 0x05040100' % sSELLO)
A('s_mov_b32 %s, 0x07060302' % sSELHI)
A('s_mov_b32 %s, 0x%x' % (sONE, ONES))
A('s_mov_b32 %s, 0xffff0000' % sHI)
A('s_mov_b32 %s, 0x%x' % (sLG, LOG2E))
A('s_mov_b64 s[%d:%d], s[%d:%d]' % (SRD_V + 2, SRD_V + 3, SRD_K + 2, SRD_K + 3))
A('v_lshrrev_b32 %s, 5, %s' % (v(vPI), v(vL)))
A('v_mov_b32 %s, 0' % v(vZ))
A('s_getreg_b32 %s, hwreg(HW_REG_XCC_ID, 0, 4)' % sXT)
A('v_lshlrev_b32 %s, 1, %s' % (v(vT[5]), v(oW2)))
A('v_lshl_or_b32 %s, %s, 3, %s' % (v(vT[5]), v(vROW), v(vT[5])))
A('v_lshl_or_b32 %s, %s, 8, %s' % (v(vT[5]), v(vWv), v(vT[5])))
A('v_and_b32 %s, 31, %s' % (v(vT[7]), v(vL)))
A('v_lshlrev_b32 %s, 3, %s' % (v(vT[6]), v(vT[7])))
A('v_lshl_or_b32 %s, %s, 10, %s' % (v(vT[6]), v(vPI), v(vT[6])))
A('v_lshrrev_b32 %s, 4, v0' % v(vT[2]))
A('v_and_b32 %s, 2, %s' % (v(vT[3]), v(vWv)))
A('v_lshl_or_b32 %s, %s, 1, %s' % (v(vT[3]), v(vT[3]), v(vROW)))
A('v_lshlrev_b32 %s, 1, %s' % (v(vT[3]), v(vT[3])))
A('v_xor_b32 %s, %s, %s' % (v(vT[3]), v(vT[3]), v(vL15)))
A('v_lshlrev_b32 %s, 4, %s' % (v(vCN), v(vT[3])))
A('v_lshl_or_b32 %s, %s, 8, %s' % (v(oVD), v(vT[2]), v(vCN)))
A('s_add_u32 %s, %s, %d' % (sVM, sW, L_V // 1024))
A('s_lshl_b32 %s, %s, 10' % (sVM, sVM))
A('s_add_u32 %s, %s, 0x%x' % (sM0, sVM, L_W - L_V))
A('s_add_u32 s10, s16, %s' % sKV)
A('s_addc_u32 s11, s17, 0')
A('s_lshl2_add_u32 %s, %s, %s' % (sKV, sR, sKV))
A('s_mul_i32 %s, %s, %d' % (sA, sG, E1_G))
A('s_add_u32 %s, %s, 0x%x' % (sA, sA, WS_E1))
A('s_mulk_i32 %s, %d' % (sD, E1_K // 256))
A('s_lshl_b32 %s, %s, 9' % (sC, sE))
A('s_add_u32 %s, %s, %s' % (sB, sD, sC))
A('s_add_u32 %s, %s, %s' % (sB, sB, sA))
A('s_mov_b32 s31, 0')
A('s_lshl2_add_u32 %s, %s, %s' % (sIDX, sG, sE))
A('s_mov_b32 %s, 0' % sROLE)
A('v_lshlrev_b32 %s, 7, %s' % (v(vT[8]), v(vL)))
A('s_waitcnt vmcnt(%d)' % (7 + X2))
stamp(2)
s0, s1, m_, r_, t_ = vT[0], vT[1], vT[9], vT[10], vT[4]
A('v_dot2_f32_bf16 %s, %s, %s, 0' % (v(s0), v(vXF), sONE))
A('v_dot2_f32_bf16 %s, %s, %s, 0' % (v(s1), v(vXF), v(vXF)))
for j in range(1, 4):
    A('v_dot2c_f32_bf16 %s, %s, %s' % (v(s0), sONE, v(vXF + j)))
    A('v_dot2c_f32_bf16 %s, %s, %s' % (v(s1), v(vXF + j), v(vXF + j)))
A('v_permlane32_swap_b32 %s, %s' % (v(s0), v(s1)))
A('v_add_f32 %s, %s, %s' % (v(s0), v(s0), v(s1)))
allred_rows(s0, s1, 'add', (16,))
for ror in (8, 4, 2): dpp_add(s0, ror)
dpp(s1, s0, 'row_ror:1'); dpp(s0, s0, 'row_ror:1')
A('v_permlane32_swap_b32 %s, %s' % (v(s0), v(s1)))
ln_stats(s0, s1, m_, r_, t_)
A('s_waitcnt vmcnt(%d)' % (6 + X2))
lo16(s0, vXR); hi16(s1, vXR)
A('v_sub_f32 %s, %s, %s' % (v(s0), v(s0), v(m_)))
A('v_sub_f32 %s, %s, %s' % (v(s1), v(s1), v(m_)))
cvt(t_, s0, s1)
lo16(s0, t_); hi16(s1, t_)
A('v_mul_f32 %s, %s, %s' % (v(s0), v(s0), v(r_)))
A('v_mul_f32 %s, %s, %s' % (v(s1), v(s1), v(r_)))
cvt(vXR, s0, s1)
A('s_waitcnt vmcnt(%d)' % (4 + X2))
stamp(3)
for j in range(4):
    A('v_perm_b32 %s, %s, %s, %s' % (v(vFA + 2 * j), v(vWQb + j), v(vWQa + j), sSELLO))
    A('v_perm_b32 %s, %s, %s, %s' % (v(vFA + 2 * j + 1), v(vWQb + j), v(vWQa + j), sSELHI))
for e in range(8): A('v_dot2_f32_bf16 %s, %s, %s, 0' % (v(vY + e), v(vFA + e), v(vXR)))
for i in range(4): A('v_permlane32_swap_b32 %s, %s' % (v(vY + i), v(vY + 4 + i)))
for i in range(4): A('v_add_f32 %s, %s, %s' % (v(vY + i), v(vY + i), v(vY + 4 + i)))
for i in range(2): A('v_permlane16_swap_b32 %s, %s' % (v(vY + i), v(vY + 2 + i)))
for i in range(2): A('v_add_f32 %s, %s, %s' % (v(vY + i), v(vY + i), v(vY + 2 + i)))
dpp_add(vY, 8); dpp_add(vY + 1, 8)
A('ds_write_b64 %s, %s offset:%d' % (v(vT[5]), v(vY, 2), L_QACC))
A('s_waitcnt lgkmcnt(0)')
A('s_add_u32 %s, %s, 1' % (sTA, sTA))
A('s_barrier')
A('s_lshl4_add_u32 %s, %s, %s' % (sXT, sTA, sXT))
A('v_mov_b32 %s, %s' % (v(vG + 2), sTA))
A('v_mov_b32 %s, %s' % (v(vG + 3), sTB))
A('s_cmp_lg_u32 %s, 0' % sW)
A('s_cbranch_scc1 L_NOPUB1')
A('ds_read2st64_b64 %s, %s offset0:0 offset1:1' % (v(vY, 4), v(vT[6])) if False else 'ds_read2_b64 %s, %s offset0:%d offset1:%d' % (v(vY, 4), v(vT[6]), 0, 32))
A('ds_read2_b64 %s, %s offset0:%d offset1:%d' % (v(vY + 4, 4), v(vT[6]), 64, 96))
A('v_mov_b32 %s, %s' % (v(vG2), sXT))
A('s_add_u32 %s, %s, 0x%x' % (sC, sB, E1_FS))
A('s_waitcnt lgkmcnt(0)')
A('v_pk_add_f32 %s, %s, %s' % (v(vY, 2), v(vY, 2), v(vY + 2, 2)))
A('v_pk_add_f32 %s, %s, %s' % (v(vY + 4, 2), v(vY + 4, 2), v(vY + 6, 2)))
A('v_pk_add_f32 %s, %s, %s' % (v(vG, 2), v(vY, 2), v(vY + 4, 2)))
A('v_pk_add_f32 %s, %s, %s' % (v(vY, 2), v(vY, 2), v(vY + 4, 2)))
A('v_permlane32_swap_b32 %s, %s' % (v(vG), v(vY)))
A('v_permlane32_swap_b32 %s, %s' % (v(vG + 1), v(vY + 1)))
A('v_pk_add_f32 %s, %s, %s' % (v(vG, 2), v(vG, 2), v(vY, 2)))
A('s_mov_b32 exec_hi, 0')
stws(vG, oX, sB, False)
A('buffer_store_dword %s, %s, %s, %s offen' % (v(vG2), v(vT[8]), SRD_WS, sKV))
stws(vG, oX, sC, True)
set_exec(FULL)
A('L_NOPUB1:')
stamp(4)
A('s_barrier')
for i in range(K1, 4): kdma(i)
for i in range(V2): vdma()
A('s_cmp_lt_u32 %s, 16' % sR)
A('s_cbranch_scc0 L_LA_G')
A('s_lshl_b32 %s, %s, 9' % (sF, sIDX))
A('s_add_u32 %s, %s, %s' % (sF, sF, sRB))
A('s_lshl_b32 %s, %s, 8' % (sF, sF))
A('v_lshl_or_b32 %s, %s, 10, %s' % (v(vT[2]), v(vT[2]), v(vCN)))
A('s_lshl_b32 s30, %s, 2' % s8K)
A('s_mov_b64 s[%d:%d], s[%d:%d]' % (pWG, pWG + 1, pWO, pWO + 1))
A('s_mov_b64 s[%d:%d], s[%d:%d]' % (pWU, pWU + 1, pWO, pWO + 1))
A('s_branch L_LA_GO')
A('L_LA_G:')
A('s_max_u32 %s, %s, 4' % (sC, sG))
A('s_sub_u32 %s, %s, %s' % (sC, sIDX, sC))
A('s_lshr_b32 %s, %s, 2' % (sROLE, sG))
A('s_add_u32 %s, %s, %s' % (sROLE, sROLE, sE))
A('s_cmp_eq_u32 %s, 8' % sROLE)
A('s_cselect_b32 %s, 2, 1' % sROLE)
A('s_lshl2_add_u32 %s, %s, %s' % (sIDX, sC, sRB))
A('s_mul_i32 %s, %s, 3584' % (sF, sRB))
A('s_add_u32 %s, %s, %s' % (sF, sF, sC))
A('s_lshl_b32 %s, %s, 7' % (sF, sF))
A('v_and_b32 %s, 0x70, %s' % (v(vCN), v(vCN)))
A('s_movk_i32 %s, 3584' % sC)
A('v_mad_u32_u24 %s, %s, %s, %s' % (v(vT[2]), v(vT[2]), sC, v(vCN)))
A('s_lshl_b32 s30, %s, 5' % sC)
A('L_LA_GO:')
A('v_cmp_lt_u32 vcc, 7, %s' % v(vT[3]))
A('v_add_u32 %s, %s, %s' % (v(vCN), sF, v(vT[2])))
A('v_mov_b32 %s, 0' % v(vCN + 1))
A('v_lshl_add_u64 %s, %s, 0, s[%d:%d]' % (v(vWA, 2), v(vCN, 2), pWG, pWG + 1))
A('v_lshl_add_u64 %s, %s, 0, s[%d:%d]' % (v(vCN + 2, 2), v(vCN, 2), pWU, pWU + 1))
A('v_cndmask_b32 %s, %s, %s, vcc' % (v(vWA), v(vWA), v(vCN + 2)))
A('v_cndmask_b32 %s, %s, %s, vcc' % (v(vWA + 1), v(vWA + 1), v(vCN + 3)))
A('v_mov_b32 %s, %s' % (v(vG2 + 3), sTA))
A('v_bfe_u32 %s, %s, 2, 2' % (v(vT[1]), v(vL)))
A('v_bfe_u32 %s, %s, 2, 3' % (v(vT[2]), v(vL)))
A('v_xor_b32 %s, %s, %s' % (v(vT[2]), v(vT[2]), v(vWv)))
A('v_and_b32 %s, 3, %s' % (v(vT[6]), v(vL)))
A('v_lshl_or_b32 %s, %s, 2, %s' % (v(vT[2]), v(vT[2]), v(vT[6])))
A('v_lshl_or_b32 %s, %s, 5, %s' % (v(vT[2]), v(vT[1]), v(vT[2])))
A('v_lshl_or_b32 %s, %s, 8, %s' % (v(vT[2]), v(vROW), v(vT[2])))
A('v_lshlrev_b32 %s, 3, %s' % (v(oTR), v(vT[2])))
A('v_and_b32 %s, 48, %s' % (v(vT[2]), v(vL)))
A('s_movk_i32 %s, %d' % (sC, QS))
A('v_mad_u32_u24 %s, %s, %s, %s' % (v(oFR), v(vT[6]), sC, v(vT[2])))
A('v_mad_u32_u24 %s, %s, %s, %s' % (v(oV), v(vT[1]), sC, v(vT[2])))
A('v_lshrrev_b32 %s, 1, v0' % v(vT[8]))
A('v_and_b32 %s, 0xf8, %s' % (v(vT[8]), v(vT[8])))
A('v_mad_u32_u24 %s, %s, %s, %s' % (v(vT[8]), v(vT[6]), sC, v(vT[8])))
A('v_lshl_or_b32 %s, %s, 5, %s' % (v(vT[4]), v(vWv), v(vT[7])))
A('v_mul_u32_u24 %s, %d, %s' % (v(vT[1]), 2 * E1_K, v(vPI)))
A('v_lshl_add_u32 %s, %s, 4, %s' % (v(vT[0]), v(vT[4]), v(vT[1])))
if NOFAST: A('s_add_u32 %s, %s, 0x%x' % (sA, sA, E1_FS))
A('s_add_u32 %s, %s, %d' % (sB, sA, E1_K))
A('v_lshl_or_b32 %s, %s, 1, %s' % (v(vT[1]), v(vT[4]), v(vPI)))
A('v_and_b32 %s, 6, %s' % (v(vT[4]), v(vWv)))
A('v_lshl_add_u32 %s, %s, 2, %s' % (v(vT[1]), v(vT[4]), v(vT[1])))
A('v_lshlrev_b32 %s, 1, %s' % (v(vT[1]), v(vT[1])))
A('v_xor_b32 %s, 64, %s' % (v(vA4 + 1), v(vA4)))
A('v_xor_b32 %s, 0x80, %s' % (v(vA4 + 2), v(vA4)))
A('v_xor_b32 %s, 64, %s' % (v(vA4 + 3), v(vA4 + 2)))
A('v_lshlrev_b32 %s, 5, %s' % (v(vT[7]), v(vT[6])))
A('v_lshl_add_u32 %s, %s, 2, %s' % (v(vT[3]), v(vWv), v(vT[7])))
A('v_lshlrev_b32 %s, 5, %s' % (v(vT[9]), v(vROW)))
A('v_lshl_or_b32 %s, %s, 15, %s' % (v(vT[10]), v(vROW), v(oW2)))
A('s_lshl_b32 %s, %s, 5' % (sKV, sG))
A('s_add_u32 %s, %s, %s' % (sKV, sKV, sW))
A('s_lshl_b32 %s, %s, 5' % (sKV, sKV))
A('s_add_u32 %s, %s, %s' % (sKV, sKV, sR))
A('s_add_u32 %s, %s, %s' % (sKV, sKV, s8K))
A('s_lshl_b32 %s, %s, 7' % (sKV, sKV))
A('s_mov_b32 %s, 0' % sFAST)
A('s_cmp_lg_u32 %s, 7' % sW)
A('s_cbranch_scc1 L_FL_DONE')
A('s_movk_i32 %s, 31' % sCNT)
A('s_mov_b32 s8, %s' % sXT); A('s_mov_b32 s9, %s' % sXT)
A('L_FL:')
if STAMPS:
    for pc in range(4):
        A('s_load_dwordx8 s[40:47], s[10:11], %d' % (32 * pc))
        A('s_waitcnt lgkmcnt(0)')
        for k in range(4):
            A('s_cmp_eq_u64 s[%d:%d], s[8:9]' % (40 + 2 * k, 41 + 2 * k))
            A('s_cbranch_scc0 L_FL_NO')
else:
    A('s_load_dwordx16 s[64:79], s[10:11], 0')
    A('s_load_dwordx16 s[80:95], s[10:11], 64')
    A('s_waitcnt lgkmcnt(0)')
    for k in range(16):
        A('s_cmp_eq_u64 s[%d:%d], s[8:9]' % (64 + 2 * k, 65 + 2 * k))
        A('s_cbranch_scc0 L_FL_NO')
A('s_mov_b32 %s, %d' % (sFAST, 0 if NOFAST else 1))
A('s_branch L_FL_W')
A('L_FL_NO:')
if FSLEEP: A('s_sleep %d' % FSLEEP)
A('s_addk_i32 s10, 128')
A('s_sub_u32 %s, %s, 1' % (sCNT, sCNT))
A('s_cbranch_scc0 L_FL')
A('L_FL_W:')
A('v_mov_b32 %s, %s' % (v(vP1), sFAST))
A('ds_write_b32 %s, %s offset:%d' % (v(vZ), v(vP1), L_FLG))
A('L_FL_DONE:')
A('s_barrier')
stamp(5)
e1l = [ldws(vP0, vT[0], sA), ldws(vP0 + 4, vT[0], sB)]
for l in e1l: A(l)
A('s_barrier')
for i in range(4 - V2): vdma()
A(ldws(vCS, vT[10], sKV))
def tslot(ch, setscc=True):
    n = TP.count(ch)
    if not n: return
    l = newlab('N')
    if setscc: A('s_cmp_lg_u32 %s, 0' % sROLE)
    A('s_cbranch_scc1 %s' % l)
    for i in range(n): tone()
    A('%s:' % l)
if TP.count('3'):
    A('s_cmp_lg_u32 %s, 0' % sROLE)
    A('s_cbranch_scc1 L_N3')
    for i in range(TP.count('3')): tone()
    A('s_waitcnt vmcnt(%d)' % (5 - V2 + TP.count('3')))
    A('s_branch L_N3D')
    A('L_N3:')
A('s_waitcnt vmcnt(%d)' % (5 - V2))
A('L_N3D:')
for j in range(4): A('ds_read_b128 %s, %s offset:%d' % (v(vK + 4 * j, 4), v(vA4 + j), L_K))
for i, gq in enumerate((vP0, vP0 + 4)): chk_tags(i, gq, vY + i)
A('v_or_b32 %s, %s, %s' % (v(vY), v(vY), v(vY + 1)))
A('v_cmp_ne_u32 vcc, 0, %s' % v(vY))
A('s_cbranch_vccnz L_E1_RETRY')
A('L_E1_OK:')
stamp(15)
A('v_pk_add_f32 %s, %s, %s' % (v(vP0, 2), v(vP0, 2), v(vP0 + 4, 2)))
A('s_cmp_gt_u32 %s, %d' % (sROLE, G4))
A('v_permlane32_swap_b32 %s, %s' % (v(vP0), v(vP0 + 1)))
A('v_add_f32 %s, %s, %s' % (v(vP0), v(vP0), v(vP0 + 1)))
cvt(vP0, vP0, vP0)
A('ds_write_b16 %s, %s offset:%d' % (v(vT[1]), v(vP0), L_Q))
tslot('4', False)
bar()
for j in range(4): A('ds_read_b128 %s, %s offset:%d' % (v(vFB + 4 * j, 4), v(oFR), L_Q + 64 * j))
A('ds_read_b32 %s, %s offset:%d' % (v(vFA + 8), v(vZ), L_FLG))
stamp(6)
A('v_mov_b32 %s, 0x%x' % (v(vCN), SCALE))
for j in range(4):
    A('s_waitcnt lgkmcnt(%d)' % (4 - j))
    mfma(vACC, vK + 4 * j, vFB + 4 * j, j == 0)
A('s_waitcnt lgkmcnt(0)')
A('v_readfirstlane_b32 %s, %s' % (sFAST, v(vFA + 8)))
S = vY
for h in range(2): cvt(vT[4 + h], vACC + 2 * h, vACC + 2 * h + 1)
for h in range(2): lo16(S + 2 * h, vT[4 + h]); hi16(S + 2 * h + 1, vT[4 + h])
for i in range(4): A('v_mul_f32 %s, %s, %s' % (v(S + i), v(vCN), v(S + i)))
for h in range(2): cvt(vT[4 + h], S + 2 * h, S + 2 * h + 1)
for h in range(2): lo16(S + 2 * h, vT[4 + h]); hi16(S + 2 * h + 1, vT[4 + h])
A('v_max3_f32 %s, %s, %s, %s' % (v(vT[4]), v(S), v(S + 1), v(S + 2)))
A('v_max_f32 %s, %s, %s' % (v(vT[4]), v(vT[4]), v(S + 3)))
allred_rows(vT[4], vT[5], 'max')
A('ds_write_b32 %s, %s offset:%d' % (v(vT[3]), v(vT[4]), L_MAX))
A('s_cmp_lg_u32 %s, 0' % sROLE)
bar()
A('ds_read_b128 %s, %s offset:%d' % (v(vFA, 4), v(vT[7]), L_MAX))
A('ds_read_b128 %s, %s offset:%d' % (v(vFA + 4, 4), v(vT[7]), L_MAX + 16))
tslot('6', False)
A('s_waitcnt lgkmcnt(0)')
A('v_max3_f32 %s, %s, %s, %s' % (v(vT[4]), v(vFA), v(vFA + 1), v(vFA + 2)))
A('v_max3_f32 %s, %s, %s, %s' % (v(vT[5]), v(vFA + 3), v(vFA + 4), v(vFA + 5)))
A('v_max3_f32 %s, %s, %s, %s' % (v(vT[4]), v(vT[4]), v(vFA + 6), v(vFA + 7)))
A('v_max_f32 %s, %s, %s' % (v(vT[4]), v(vT[4]), v(vT[5])))
A('v_mul_f32 %s, %s, %s' % (v(vCN), sLG, v(vT[4])))
for i in range(4): A('v_fma_f32 %s, %s, %s, -%s' % (v(S + i), v(S + i), sLG, v(vCN)))
for i in range(4): A('v_exp_f32 %s, %s' % (v(S + i), v(S + i)))
A('v_lshrrev_b32 %s, 2, %s' % (v(vCN + 1), v(vT[2])))
cvt(S + 4, S, S + 1)
A('v_add_f32 %s, %s, %s' % (v(vT[4]), v(S), v(S + 1)))
cvt(S + 5, S + 2, S + 3)
A('v_add_f32 %s, %s, %s' % (v(vT[5]), v(S + 2), v(S + 3)))
A('ds_write_b64 %s, %s offset:%d' % (v(vT[8]), v(S + 4, 2), L_P))
A('ds_bpermute_b32 %s, %s, %s' % (v(vP1), v(vCN + 1), v(vCN)))
A('v_add_f32 %s, %s, %s' % (v(vT[4]), v(vT[4]), v(vT[5])))
allred_rows(vT[4], vT[5], 'add')
A('ds_write_b32 %s, %s offset:%d' % (v(vT[3]), v(vT[4]), L_LS))
stamp(7)
tslot('7')
A('s_cmp_eq_u32 %s, 0' % sROLE)
A('s_waitcnt vmcnt(5)')
A('s_cbranch_scc1 L_WV')
if G4:
    A('s_cmp_eq_u32 %s, 1' % sROLE)
    A('s_waitcnt vmcnt(%d)' % (1 + TP.count('4')))
    A('s_cbranch_scc1 L_WV')
A('s_waitcnt vmcnt(1)')
A('L_WV:')
bar()
A('ds_read_b128 %s, %s offset:%d' % (v(vY, 4), v(vT[9]), L_LS))
A('ds_read_b128 %s, %s offset:%d' % (v(vY + 4, 4), v(vT[9]), L_LS + 16))
for b in range(4):
    A('ds_read_b128 %s, %s offset:%d' % (v(vFB + 4 * b, 4), v(oV), L_P + 64 * b))
    A('ds_read_b64_tr_b16 %s, %s offset:%d' % (v(vFA + 4 * b, 2), v(oTR), L_V + 8192 * b))
    A('ds_read_b64_tr_b16 %s, %s offset:%d' % (v(vFA + 4 * b + 2, 2), v(oTR), L_V + 8192 * b + 1024))
A('s_lshl3_add_u32 %s, %s, %s' % (sA, sIDX, sW))
A('s_addk_i32 %s, %d' % (sA, WS_E2 // 4096))
A('s_lshl_b32 %s, %s, 12' % (sA, sA))
A('s_waitcnt lgkmcnt(12)')
A('v_pk_add_f32 %s, %s, %s' % (v(vY, 2), v(vY, 2), v(vY + 2, 2)))
A('v_pk_add_f32 %s, %s, %s' % (v(vY + 4, 2), v(vY + 4, 2), v(vY + 6, 2)))
A('v_pk_add_f32 %s, %s, %s' % (v(vY, 2), v(vY, 2), v(vY + 4, 2)))
A('v_add_f32 %s, %s, %s' % (v(vY), v(vY), v(vY + 1)))
for b in range(4):
    A('s_waitcnt lgkmcnt(%d)' % (9 - 3 * b))
    mfma(vACC, vFB + 4 * b, vFA + 4 * b, b == 0)
A('v_log_f32 %s, %s' % (v(vG2 + 2), v(vY)))
A('v_rcp_f32 %s, %s' % (v(vY), v(vY)))
A('v_lshl_or_b32 %s, %s, 3, %s' % (v(vT[3]), v(vPI), v(vCC)))
A('v_add_f32 %s, %s, %s' % (v(vG2 + 2), v(vG2 + 2), v(vP1)))
A('v_lshl_or_b32 %s, %s, 4, %s' % (v(vT[3]), v(vWv), v(vT[3])))
A('v_lshlrev_b32 %s, 1, %s' % (v(vT[3]), v(vT[3])))
A('v_mul_f32 %s, %s, %s' % (v(vG2), v(vACC), v(vY)))
movdpp(vG2 + 1, vG2, 'row_ror:8')
set_exec(0x00ff00ff00ff00ff)
st_grp(vG2, vT[10], sKV)
set_exec(FULL)
stamp(8)
A('s_cmp_eq_u32 %s, 1' % sROLE)
A('s_cbranch_scc1 L_GT')
A('s_cmp_eq_u32 %s, 2' % sROLE)
A('s_cbranch_scc1 L_FIN0')
g4 = [vP0, vP0 + 4, vP1, vP1 + 4]
l4 = [ldws(g4[i], oX, sA, 1024 * i) for i in range(4)]
for l in l4: A(l)
A('v_add_u32 %s, 0x%x, %s' % (v(vT[1]), L_W, v(oTR)))
A('s_lshl3_add_u32 %s, %s, %s' % (sKV, sRB, sW))
A('s_lshl_b32 %s, %s, 5' % (sKV, sKV))
A('s_add_u32 %s, %s, %s' % (sKV, sKV, sIDX))
A('s_mulk_i32 %s, %d' % (sKV, LS3))
A('s_add_u32 %s, %s, 0x%x' % (sKV, sKV, WS_E3))
if NC > 1:
    A('v_lshrrev_b32 %s, 3, %s' % (v(vT[4]), v(vL)))
    A('v_mul_u32_u24 %s, %d, %s' % (v(vT[4]), 1024 * LS3, v(vT[4])))
    A('v_add_u32 %s, %s, %s' % (v(vT[4]), v(vT[4]), v(oW2)))
    A('v_and_b32 %s, 8, %s' % (v(vT[6]), v(vL)))
    A('v_cmp_ne_u32 %s, 0, %s' % (sMSK, v(vT[6])))
def wtr():
    for b in range(4):
        A('ds_read_b64_tr_b16 %s, %s offset:%d' % (v(vW1 + 4 * b, 2), v(vT[1]), 8192 * b))
        A('ds_read_b64_tr_b16 %s, %s offset:%d' % (v(vW1 + 4 * b + 2, 2), v(vT[1]), 8192 * b + 1024))
if WPRE:
    A('s_waitcnt vmcnt(5)')
    A('s_barrier')
    wtr()
def lammax():
    A('v_max3_f32 %s, %s, %s, %s' % (v(vT[5]), v(g4[0] + 2), v(g4[1] + 2), v(g4[2] + 2)))
    A('v_max_f32 %s, %s, %s' % (v(vT[5]), v(vT[5]), v(g4[3] + 2)))
mpoll(l4, g4, chk_lam, first_in_flight=True, extra=lammax)
stamp(10)
dpp_add(vT[5], 8, 'max')
allred_rows(vT[5], vT[6], 'max')
for i in range(4): A('v_sub_f32 %s, %s, %s' % (v(g4[i] + 2), v(g4[i] + 2), v(vT[5])))
for i in range(4): A('v_exp_f32 %s, %s' % (v(g4[i] + 2), v(g4[i] + 2)))
A('v_mul_f32 %s, %s, %s' % (v(vP0), v(vP0 + 2), v(vP0)))
A('v_mul_f32 %s, %s, %s' % (v(vP0 + 1), v(vP0 + 2), v(vP0 + 1)))
for i in range(1, 4):
    A('v_fmac_f32 %s, %s, %s' % (v(vP0), v(g4[i] + 2), v(g4[i])))
    A('v_fmac_f32 %s, %s, %s' % (v(vP0 + 1), v(g4[i] + 2), v(g4[i] + 1)))
    A('v_add_f32 %s, %s, %s' % (v(vP0 + 2), v(vP0 + 2), v(g4[i] + 2)))
A('v_mov_b32 %s, %s' % (v(vP0 + 3), v(vP0 + 2)))
A('v_permlane32_swap_b32 %s, %s' % (v(vP0), v(vP0 + 1)))
A('v_permlane32_swap_b32 %s, %s' % (v(vP0 + 2), v(vP0 + 3)))
A('v_add_f32 %s, %s, %s' % (v(vP0), v(vP0), v(vP0 + 1)))
A('v_add_f32 %s, %s, %s' % (v(vP0 + 2), v(vP0 + 2), v(vP0 + 3)))
A('v_mov_b32 %s, %s' % (v(vP0 + 1), v(vP0)))
A('v_mov_b32 %s, %s' % (v(vP0 + 3), v(vP0 + 2)))
A('v_permlane16_swap_b32 %s, %s' % (v(vP0), v(vP0 + 1)))
A('v_permlane16_swap_b32 %s, %s' % (v(vP0 + 2), v(vP0 + 3)))
A('v_add_f32 %s, %s, %s' % (v(vP0 + 2), v(vP0 + 2), v(vP0 + 3)))
A('v_add_f32 %s, %s, %s' % (v(vP0), v(vP0), v(vP0 + 1)))
dpp_add(vP0 + 2, 8); dpp_add(vP0, 8)
A('v_rcp_f32 %s, %s' % (v(vP0 + 2), v(vP0 + 2)))
A('v_mul_f32 %s, %s, %s' % (v(vP0), v(vP0), v(vP0 + 2)))
cvt(vP0, vP0, vP0)
A('ds_write_b16 %s, %s offset:%d' % (v(vT[3]), v(vP0), L_ACC))
bar()
stamp(9)
for b in range(4):
    A('ds_read_b128 %s, %s offset:%d' % (v(vFB + 4 * b, 4), v(vT[2]), L_ACC + 64 * b))
    if not WPRE:
        A('ds_read_b64_tr_b16 %s, %s offset:%d' % (v(vW1 + 4 * b, 2), v(vT[1]), 8192 * b))
        A('ds_read_b64_tr_b16 %s, %s offset:%d' % (v(vW1 + 4 * b + 2, 2), v(vT[1]), 8192 * b + 1024))
for b in range(4):
    A('s_waitcnt lgkmcnt(%d)' % ((3 - b) if WPRE else (9 - 3 * b)))
    mfma(vACC, vFB + 4 * b, vW1 + 4 * b, b == 0)
A('s_cmp_eq_u32 %s, 0' % sRB)
if NC > 1:
    movdpp(vT[6], vACC, 'row_ror:8')
    A('v_cndmask_b32 %s, %s, %s, %s' % (v(vG), v(vACC + 1), v(vT[6]), sMSK))
    A('v_cndmask_b32 %s, %s, %s, %s' % (v(vG + 1), v(vT[6]), v(vACC + 1), sMSK))
    stws(vG, vT[4], sKV)
else:
    movdpp(vG + 1, vACC, 'row_ror:8')
    A('v_mov_b32 %s, %s' % (v(vG), v(vACC + 1)))
    set_exec(0xff)
    stws(vG, oX, sKV)
    set_exec(FULL)
stamp(11)
A('s_cbranch_scc1 L_RED')
A('L_FIN0:')
fin()
A('L_END0:')
A('s_endpgm')
A('L_GT:')
a.hist = []
A('s_barrier')
for i in range(4 - (TP.count('4') if G4 else 0)): tone()
if not GD: ddma()
if DG: A('s_memrealtime s[64:65]')
A('s_branch L_ROLE_G')
A('L_PAGE0_END:')
if not STAMPS:
    a.raw('.if (L_PAGE0_END - %s_kernel) > 4096\n.error "page 0 overflow"\n.endif' % NAME)
    a.raw('.fill (4096 - (L_PAGE0_END - %s_kernel)) / 4, 4, 0xbf800000' % NAME)
A('L_ROLE_G:')
a.hist = []
if DG == 1: A('s_memrealtime s[66:67]')
A('s_lshl_b32 %s, %s, 12' % (sJ := 's28', sIDX))
A('s_add_u32 %s, %s, 0x%x' % (sJ, sJ, WS_E4))
A('v_lshlrev_b32 %s, 4, v0' % v(vT[5]))
A('v_and_b32 %s, 0xff0, %s' % (v(vT[5]), v(vT[5])))
A(ldws(vCS, vT[5], sJ))
A('s_lshl_b32 %s, %s, 8' % (sC, sRB))
A('buffer_load_ushort %s, %s, %s, %s offen' % (v(vXR), v(vT[3]), srd(SRD_X), sC))
A('s_and_b32 %s, %s, 1' % (sE, sW))
A('s_lshl_b32 %s, %s, 2' % (sE, sE))
A('s_lshr_b32 %s, %s, 1' % (sD, sW))
A('s_or_b32 %s, %s, %s' % (sC, sE, sD))
A('s_xor_b32 %s, %s, %s' % (sC, sC, sW))
A('s_lshl_b32 %s, %s, 5' % (sC, sC))
A('v_xor_b32 %s, %s, %s' % (v(vT[1]), sC, v(oTR)))
A('v_add_u32 %s, 0x%x, %s' % (v(vT[1]), L_W, v(vT[1])))
sDST = 's33'
A('s_andn2_b32 %s, %s, 3' % (sDST, sIDX))
A('s_add_u32 %s, %s, %s' % (sDST, sDST, sD))
A('s_lshl_b32 %s, %s, 12' % (sDST, sDST))
A('s_add_u32 %s, %s, 0x%x' % (sDST, sDST, WS_E4))
A('s_add_u32 %s, %s, %s' % (sE, sE, sRB))
A('v_lshrrev_b32 %s, 1, %s' % (v(vT[4]), v(vCC)))
A('v_lshlrev_b32 %s, 8, %s' % (v(vT[4]), v(vT[4])))
A('v_and_b32 %s, 1, %s' % (v(vT[6]), v(vL)))
A('v_lshl_or_b32 %s, %s, 4, %s' % (v(vT[4]), v(vT[6]), v(vT[4])))
A('v_lshl_add_u32 %s, %s, 5, %s' % (v(vT[4]), sE, v(vT[4])))
A('s_lshl_b32 %s, %s, 4' % (sE, sE))
A('s_add_u32 %s, %s, 2048' % (sE, sE))
A('v_mov_b32 %s, %s' % (v(vT[7]), sE))
A('v_cmp_eq_u32 s[10:11], 8, %s' % v(vL))
A('v_and_b32 %s, 8, %s' % (v(vT[6]), v(vL)))
A('v_cmp_ne_u32 %s, 0, %s' % (sMSK, v(vT[6])))
A('v_cndmask_b32 %s, %s, %s, s[10:11]' % (v(oFR), v(vT[4]), v(vT[7])))
A('s_add_u32 %s, %s, 1024' % (sE, sDST))
A('v_and_b32 %s, 14, %s' % (v(oWQ), v(vL)))
A('v_lshlrev_b32 %s, 3, %s' % (v(oWQ), v(oWQ)))
A('s_lshl3_add_u32 %s, %s, %s' % (sA, sRB, sW))
if NC > 1:
    A('s_lshl_b32 %s, %s, 5' % (sC, sG))
    A('s_add_u32 %s, %s, %s' % (sA, sA, sC))
A('s_mul_i32 %s, %s, %d' % (sA, sA, 32 * LS3))
A('s_add_u32 %s, %s, 0x%x' % (sA, sA, WS_E3))
for i_, r_ in enumerate(('s48', 's49', 's50')): A('s_add_u32 %s, %s, %d' % (r_, sA, 8 * LS3 * (i_ + 1)))
A('v_lshrrev_b32 %s, 3, %s' % (v(vT[0]), v(vL)))
A('v_mul_u32_u24 %s, %d, %s' % (v(vT[0]), LS3, v(vT[0])))
A('v_add_u32 %s, %s, %s' % (v(vT[0]), v(vT[0]), v(oW2)))
l4 = [ldws(g4[i], vT[0], (sA, 's48', 's49', 's50')[i]) for i in range(4)]
if GP == 1:
    for l in l4: A(l)
A('s_lshl_b32 %s, %s, 9' % (sB, sW))
A('s_add_u32 %s, %s, %s' % (sB, sB, sIDX))
A('s_mul_i32 %s, %s, %d' % (sB, sB, LS5))
A('s_add_u32 %s, %s, 0x%x' % (sB, sB, WS_E5))
A('v_mul_u32_u24 %s, %d, %s' % (v(oV), 128 * LS5, v(vROW)))
A('v_add_u32 %s, %s, %s' % (v(oV), v(oV), v(oW2)))
A('v_bfe_u32 %s, %s, 3, 1' % (v(vT[6]), v(vL)))
A('v_lshl_or_b32 %s, %s, 1, %s' % (v(vT[6]), v(vROW), v(vT[6])))
A('v_bfe_u32 %s, %s, 2, 1' % (v(vT[7]), v(vL)))
A('v_and_b32 %s, 3, %s' % (v(oK), v(vT[6])))
A('v_lshl_or_b32 %s, %s, 2, %s' % (v(oK), v(vT[7]), v(oK)))
A('v_lshl_or_b32 %s, %s, 3, %s' % (v(vT[6]), v(vT[7]), v(vT[6])))
A('v_lshlrev_b32 %s, 2, %s' % (v(vT[7]), v(vWv)))
A('v_xor_b32 %s, %s, %s' % (v(oK), v(oK), v(vT[7])))
A('v_lshlrev_b32 %s, 5, %s' % (v(oK), v(oK)))
A('v_lshl_or_b32 %s, %s, 10, %s' % (v(oK), v(vT[6]), v(oK)))
A('v_and_b32 %s, 3, %s' % (v(vT[6]), v(vL)))
A('v_lshl_or_b32 %s, %s, 3, %s' % (v(oK), v(vT[6]), v(oK)))
A('v_cmp_eq_u32 s[98:99], 1, %s' % v(vROW))
for i in range(4): A('v_mov_b32 %s, %s' % (v(vA4 + i), sONE))
A('s_waitcnt vmcnt(0)')
A('s_barrier')
if DG == 2: A('s_memrealtime s[66:67]')
stamp(9)
if GP != 2:
    for l in l4: A(l)
for b in range(4):
    A('ds_read_b64_tr_b16 %s, %s offset:%d' % (v(vW1 + 4 * b, 2), v(vT[1]), 8192 * b))
    A('ds_read_b64_tr_b16 %s, %s offset:%d' % (v(vW1 + 4 * b + 2, 2), v(vT[1]), 8192 * b + 1024))
for t4 in range(4):
    if t4: A('v_xor_b32 %s, %d, %s' % (v(vT[6]), 32 * t4, v(oK)))
    A('ds_read_b64_tr_b16 %s, %s offset:%d' % (v(vW2 + 2 * t4, 2), v(vT[6] if t4 else oK), L_K))
lo16(vXR, vXR)
A('s_waitcnt lgkmcnt(0)')
for b in range(4): mfma(vACC, vA4, vW1 + 4 * b, b == 0)
A('v_mov_b32 %s, %s' % (v(vG), v(vACC)))
movdpp(vG + 1, vACC, 'row_ror:8')
set_exec(0xff)
st_grp(vG, vT[4], sE)
set_exec(FULL)
stamp(10)
mpoll(l4, g4, chk_tags, first_in_flight=(GP != 2))
if DG == 3: A('s_memrealtime s[66:67]')
stamp(11)
A('v_pk_add_f32 %s, %s, %s' % (v(vP0, 2), v(vP0, 2), v(vP0 + 4, 2)))
A('v_pk_add_f32 %s, %s, %s' % (v(vP1, 2), v(vP1, 2), v(vP1 + 4, 2)))
A('v_pk_add_f32 %s, %s, %s' % (v(vP0, 2), v(vP0, 2), v(vP1, 2)))
red8(vP0)
resid1(vP0, vXR)
A('ds_write_b16 %s, %s offset:%d' % (v(vT[3]), v(vP0), L_ACC))
bar()
for b in range(4): A('ds_read_b128 %s, %s offset:%d' % (v(vFB + 4 * b, 4), v(vT[2]), L_ACC + 64 * b))
A('s_bitcmp1_b32 %s, 0' % sW)
A('s_cbranch_scc1 L_ST_UP')
for b in range(4):
    A('s_waitcnt lgkmcnt(%d)' % (3 - b))
    mfma(vACC, vFB + 4 * b, vW1 + 4 * b, b == 0)
    mfma(vY, vFB + 4 * b, vFB + 4 * b, b == 0)
A('s_branch L_ST_GO')
A('L_ST_UP:')
a.hist = []
for b in range(4):
    A('s_waitcnt lgkmcnt(%d)' % (3 - b))
    mfma(vACC, vFB + 4 * b, vW1 + 4 * b, b == 0)
    mfma(vY, vFB + 4 * b, vA4, b == 0)
A('L_ST_GO:')
movdpp(vG + 1, vACC, 'row_ror:8')
A('v_cndmask_b32 %s, %s, %s, s[10:11]' % (v(vG), v(vACC + 1), v(vY)))
set_exec(0x1ff)
st_grp(vG, oFR, sDST)
set_exec(FULL)
stamp(12)
mpoll([ldws(vP0, oX, sJ), ldws(vP0 + 4, oWQ, sJ, 2048), ldws(vCS, oX, sJ, 1024)], [vP0, vP0 + 4, vCS], chk_tags)
stamp(13)
PR = ((vP0 + 4, vP0 + 5), (vP0, vP0 + 2), (vP0 + 1, vP0 + 3), (vCS, vCS + 2), (vCS + 1, vCS + 3))
for r, d in PR: dpp(r, r, 'quad_perm:[2,3,0,1]')
for r, d in PR: A('v_add_f32_dpp %s, %s, %s row_shr:4 row_mask:0xf bank_mask:0xa' % (v(d), v(r), v(r)))
for r, d in PR: A('v_add_f32_dpp %s, %s, %s row_shl:4 row_mask:0xf bank_mask:0x5' % (v(d), v(r), v(r)))
movdpp(vP0 + 4, vP0 + 5, 'row_ror:8')
A('v_cndmask_b32 %s, %s, %s, %s' % (v(vP0 + 6), v(vP0 + 4), v(vP0 + 5), sMSK))
A('v_cndmask_b32 %s, %s, %s, %s' % (v(vP0 + 7), v(vP0 + 5), v(vP0 + 4), sMSK))
ln_stats(vP0 + 6, vP0 + 7, vT[5], vT[6], vT[7])
for i in range(2): A('v_fma_f32 %s, -%s, %s, %s' % (v(vP0 + i), v(vT[5]), v(vCS + 2 + i), v(vP0 + 2 + i)))
for i in range(2): A('v_mul_f32 %s, %s, %s' % (v(vP0 + i), v(vP0 + i), v(vT[6])))
cvt(vT[7], vP0, vP0 + 1)
lo16(vP0, vT[7]); hi16(vP0 + 1, vT[7])
A('v_max_f32 %s, 0, %s' % (v(vP0 + 2), v(vP0)))
A('v_max_f32 %s, 0, %s' % (v(vP0 + 3), v(vP0 + 1)))
A('v_cndmask_b32 %s, %s, %s, %s' % (v(vP0), v(vP0 + 2), v(vP0), sMSK))
A('v_cndmask_b32 %s, %s, %s, %s' % (v(vP0 + 1), v(vP0 + 3), v(vP0 + 1), sMSK))
dpp(vP0, vP0, 'row_ror:8', 'mul'); dpp(vP0 + 1, vP0 + 1, 'row_ror:8', 'mul')
cvt(vT[7], vP0, vP0 + 1)
movdpp(vX4, vT[7], 'quad_perm:[0,0,2,2]'); movdpp(vX4 + 1, vT[7], 'quad_perm:[1,1,3,3]')
for t4 in range(4):
    A('v_mfma_f32_16x16x16_bf16 %s, %s, %s, 0' % (v(vFA + 4 * t4, 4), v(vX4, 2), v(vW2 + 2 * t4, 2)))
A('v_cndmask_b32 %s, %s, %s, s[98:99]' % (v(vG), v(vFA), v(vFA + 4)))
A('s_mov_b32 exec_lo, 0')
A('v_mov_b32 %s, %s' % (v(vG), v(vFA + 8)))
A('s_mov_b32 exec_hi, %s' % sHI)
A('v_mov_b32 %s, %s' % (v(vG), v(vFA + 12)))
set_exec(FULL)
movdpp(vG + 1, vG, 'row_ror:8')
set_exec(0x00ff00ff00ff00ff)
stws(vG, oV, sB)
set_exec(FULL)
if DG:
    A('s_waitcnt lgkmcnt(0)')
    A('s_sub_u32 s68, s66, s64')
    A('s_lshl_b32 s68, s68, 3')
    A('s_min_u32 s68, s68, 20000')
    A('s_memrealtime s[70:71]')
    A('s_waitcnt lgkmcnt(0)')
    A('L_DG2:')
    A('s_memrealtime s[72:73]')
    A('s_waitcnt lgkmcnt(0)')
    A('s_sub_u32 s69, s72, s70')
    A('s_cmp_lt_u32 s69, s68')
    A('s_cbranch_scc1 L_DG2')
stamp(14)
fin()
A('L_RED:')
a.hist = []
if OPT('rbar', 1): A('s_barrier')
A('s_load_dwordx2 s[20:21], s[0:1], 72')
A('s_mov_b64 s[22:23], s[%d:%d]' % (SRD_X + 2, SRD_X + 3))
A('v_lshrrev_b32 %s, 3, v0' % v(vT[4]))
A('v_and_b32 %s, 31, %s' % (v(vT[0]), v(vT[4])))
A('v_mul_u32_u24 %s, %d, %s' % (v(vT[0]), LS3, v(vT[0])))
A('v_add_u32 %s, %s, %s' % (v(vT[0]), v(vT[0]), v(oW2)))
A('v_mul_u32_u24 %s, %d, %s' % (v(vT[4]), LS5, v(vT[4])))
A('v_add_u32 %s, %s, %s' % (v(vT[4]), v(vT[4]), v(oW2)))
A('s_lshl_b32 %s, %s, 5' % (sA, sG))
A('s_add_u32 %s, %s, %s' % (sA, sIDX, sA if NC > 1 else '0'))
A('s_mul_i32 %s, %s, %d' % (sA, sA, 32 * LS3))
A('s_add_u32 %s, %s, 0x%x' % (sA, sA, WS_E3))
A('v_lshlrev_b32 %s, 1, %s' % (v(vT[1]), v(vL15)))
A('s_lshl_b32 %s, %s, 5' % (sD, sIDX))
A('buffer_load_ushort %s, %s, %s, %s offen' % (v(vX4), v(vT[1]), srd(SRD_X), sD))
A('v_lshl_or_b32 %s, %s, 3, %s' % (v(vT[2]), v(vPI), v(vCC)))
A('v_lshl_or_b32 %s, %s, 3, %s' % (v(vT[2]), v(vT[2]), v(vWv)))
A('v_lshlrev_b32 %s, 2, %s' % (v(vT[2]), v(vT[2])))
A('v_lshlrev_b32 %s, 5, %s' % (v(vT[3]), v(vL15)))
A('v_lshl_or_b32 %s, %s, 3, %s' % (v(vT[3]), v(vROW), v(vT[3])))
A('s_mul_i32 %s, %s, %d' % (sB, sIDX, 128 * LS5))
A('s_add_u32 %s, %s, 0x%x' % (sB, sB, WS_E5))
A('s_cmp_lt_u32 %s, 6' % sW)
A('s_cselect_b32 %s, %d, 0' % (sC, 64 * LS5))
A('s_cselect_b32 %s, 1.0, 0' % sE)
A('s_add_u32 %s, %s, %s' % (sC, sC, sB))
mpoll([ldws(vP0, vT[0], sA)], [vP0], chk_tags)
red8(vP0)
A('ds_write_b32 %s, %s offset:%d' % (v(vT[2]), v(vP0), L_R1))
lo16(vX4, vX4)
bar()
A('ds_read_b64 %s, %s offset:%d' % (v(vP1, 2), v(vT[3]), L_R1))
A('s_waitcnt lgkmcnt(0)')
A('v_add_f32 %s, %s, %s' % (v(vP1), v(vP1), v(vP1 + 1)))
allred_rows(vP1, vP1 + 1, 'add', (16,))
resid1(vP1, vX4)
lo16(vX4, vP1)
stamp(12)
mpoll([ldws(vP0, vT[4], sB), ldws(vP0 + 4, vT[4], sC)], [vP0, vP0 + 4], chk_tags)
stamp(13)
A('s_cmp_lt_u32 %s, 6' % sW)
A('s_cbranch_scc0 L_R_ONE')
A('v_pk_add_f32 %s, %s, %s' % (v(vP0, 2), v(vP0, 2), v(vP0 + 4, 2)))
A('L_R_ONE:')
red8(vP0)
A('ds_write_b32 %s, %s offset:%d' % (v(vT[2]), v(vP0), L_R2))
bar()
A('s_cmp_lg_u32 %s, 0' % sW)
A('s_cbranch_scc1 L_FIN')
A('ds_read_b64 %s, %s offset:%d' % (v(vP0, 2), v(vT[3]), L_R2))
A('s_waitcnt lgkmcnt(0)')
A('v_add_f32 %s, %s, %s' % (v(vP0), v(vP0), v(vP0 + 1)))
allred_rows(vP0, vP0 + 1, 'add')
resid1(vP0, vX4)
set_exec(0xffff)
A('buffer_store_short %s, %s, %s, %s offen' % (v(vP0), v(vT[1]), SRD_OUT, sD))
A('s_cmp_lg_u32 %s, 0' % sIDX)
A('s_cbranch_scc1 L_NOEP')
set_exec(1)
A('buffer_store_dword %s, %s, %s, 0 offen offset:%d' % (v(vG + 2), v(vT[1]), SRD_WS, WS_EPOCH))
if DIAG >= 0:
    A('L_NOEP:')
    A('s_cmp_lg_u32 %s, %d' % (sIDX, 4 * OPT('dx', 0)))
    A('s_cbranch_scc1 L_NOEP2')
    stamp(14)
    A('s_waitcnt lgkmcnt(0)')
    A('s_sub_u32 s68, s66, s64')
    A('s_lshl_b32 s68, s68, 3')
    A('s_min_u32 s68, s68, 20000')
    A('s_memrealtime s[70:71]')
    A('s_waitcnt lgkmcnt(0)')
    A('L_DG:')
    A('s_memrealtime s[72:73]')
    A('s_waitcnt lgkmcnt(0)')
    A('s_sub_u32 s69, s72, s70')
    A('s_cmp_lt_u32 s69, s68')
    A('s_cbranch_scc1 L_DG')
A('L_NOEP:' if DIAG < 0 else 'L_NOEP2:')
set_exec(FULL)
if DIAG < 0: stamp(14)
A('L_FIN:')
if STAMPS:
    A('s_waitcnt lgkmcnt(0)')
    A('v_mov_b32 %s, 0' % v(vT[8]))
    for i in range(16): A('v_writelane_b32 %s, s%d, %d' % (v(vT[8]), 64 + 2 * i, i))
    A('s_lshl_b32 %s, s2, 9' % sB)
    A('s_lshl_b32 %s, %s, 6' % (sC, sW))
    A('s_add_u32 %s, %s, %s' % (sB, sB, sC))
    A('s_add_u32 %s, %s, 0x%x' % (sB, sB, WS_ST))
    A('v_lshlrev_b32 %s, 2, %s' % (v(vT[9]), v(vL)))
    set_exec(0xffff)
    A('buffer_store_dword %s, %s, %s, %s offen' % (v(vT[8]), v(vT[9]), SRD_WS, sB))
A('s_endpgm')
A('L_E1_RETRY:')
a.hist = []
A('s_mov_b32 %s, 0x%x' % (sC, (-E1_FS if NOFAST else E1_FS) & 0xffffffff))
def flip():
    A('s_add_u32 %s, %s, %s' % (sA, sA, sC))
    A('s_add_u32 %s, %s, %s' % (sB, sB, sC))
    A('s_sub_u32 %s, 0, %s' % (sC, sC))
mpoll(e1l, [vP0, vP0 + 4], chk_tags, each=flip)
A('s_branch L_E1_OK')
a.raw('.p2align 12, 0')
nv = (NVGPR + 7) // 8 * 8
a.raw('''.section .rodata,"a"
.p2align 6
.amdhsa_kernel %s_kernel
  .amdhsa_next_free_vgpr %d
  .amdhsa_next_free_sgpr 102
  .amdhsa_accum_offset %d
  .amdhsa_group_segment_fixed_size 0
  .amdhsa_kernarg_size 96
  .amdhsa_user_sgpr_count 2
  .amdhsa_user_sgpr_kernarg_segment_ptr 1
  .amdhsa_system_sgpr_workgroup_id_x 1
  .amdhsa_float_denorm_mode_32 3
.end_amdhsa_kernel''' % (NAME, nv, nv))
open(OUT, 'w').write(a.text())
print('wrote', OUT, 'vgprs', NVGPR)
```

```python
import sys
from asmlib import Asm

NAME = 'sequential_preLN__sliding_block_cached__glu_gated_reglu__decode'
STAMPS = '--stamps' in sys.argv
NOFAST = '--nofast' in sys.argv
def OPT(name, d=0):
    for a_ in sys.argv:
        if a_.startswith('--%s=' % name): return int(a_.split('=')[1])
    return d
WPRE = OPT('wpre', 1)
G4 = OPT('g4', 0)
GP = OPT('gp', 0)
NOPT = OPT('nopt', 0); NOB0 = OPT('nob0', 0); PRIO = OPT('prio', 0)
K1 = OPT('k1', 3); V2 = OPT('v2', 2); TP = str(OPT('tp', 4466))
LS3 = OPT('ls3', 128); LS5 = OPT('ls5', 128); NC = OPT('nc', 1)
GD = OPT('gd', 0); GS6 = OPT('gs6', 0)
FSLEEP = OPT('fsleep', 0); PF = OPT('pf', 0)
OUT = [a for a in sys.argv[1:] if not a.startswith('--')]
OUT = OUT[0] if OUT else 'cdna_kernels/%s.s' % NAME

WS_EPOCH = 0
WS_FL = 0x8000
WS_E1 = 0x10000; E1_K = 4352; E1_G = 4 * E1_K; E1_FS = 0x24000
WS_E3 = 0x200000
WS_E4 = 0x80000
WS_E2 = 0x100000
WS_E5 = 0x380000
WS_ST = 0x500000
WS_SIZE = 0x800000
QS = 272
L_QACC = 0; L_Q = 2048; L_P = L_Q + 4 * QS
L_MAX = L_P + 4 * QS; L_LS = L_MAX + 128
L_R1 = L_LS + 128; L_R2 = L_R1 + 512; L_ACC = L_R2 + 512
L_FLG = L_ACC + 256
L_V = 8192; L_K = L_V + 32768; L_W = L_K + 32768
LDS_BYTES = L_W + 32768
LOG2E = 0x3fb8aa3b; SCALE = 0x3db504f3; EPS = 0x3727c5ac; INV512 = 0x3b000000; ONES = 0x3f803f80
SPIN = 1 << 21

a = Asm(); A = a
sW, sG, sR = 's3', 's4', 's5'
sTAG = 's[6:7]'; sTA, sTB = 's6', 's7'
sMSK = 's[8:9]'
sSELLO, sSELHI = 's12', 's13'
sCNT = 's14'; sONE = 's15'
SRD_WS = 's[16:19]'; SRD_OUT = 's[20:23]'
sA, sB, sC, sD = 's24', 's25', 's26', 's27'
sKV = 's28'; sJ = 's29'; sSTEP = 's30'; sIDX = 's31'; sRB = 's32'; sM0 = 's33'
sXT = 's34'; sROLE = 's35'
SRD_X, SRD_WQ, SRD_K, SRD_V, SRD_W2 = 36, 40, 44, 48, 52
pWO, pWG, pWU = 56, 60, 62
sHI = 's58'; sE = 's59'; sFAST = 's96'; sF = 's97'; sVM = 's98'; sVS = 's99'; s8K = 's100'; sLG = 's101'
MS = ['s[40:41]', 's[42:43]', 's[44:45]', 's[46:47]']
def srd(n): return 's[%d:%d]' % (n, n + 3)
W3 = 's%d' % (SRD_X + 3)

class V:
    n = 0
    @classmethod
    def alloc(cls, k=1, align=1):
        cls.n = (cls.n + align - 1) // align * align
        r = cls.n; cls.n += k
        return r
def v(r, k=1): return 'v%d' % r if k == 1 else 'v[%d:%d]' % (r, r + k - 1)
vTID = V.alloc(); vL = V.alloc(); vZ = V.alloc()
vWv = V.alloc(); vPI = V.alloc(); vL15 = V.alloc(); vROW = V.alloc(); vCC = V.alloc()
vT = [V.alloc() for _ in range(12)]
oX, oXR, oWQ, oK, oV, oW2, oTR, oFR = [V.alloc() for _ in range(8)]
vK = V.alloc(16, 4); vW1 = vK
vFB = V.alloc(16, 4); vFA = V.alloc(16, 4)
vXF = vFB; vWQa = vFB + 4; vWQb = vFB + 8
vW2 = V.alloc(8, 4); vY = V.alloc(8, 4); vACC = V.alloc(4, 4)
vG = V.alloc(4, 4); vG2 = V.alloc(4, 4)
vP0 = V.alloc(8, 4); vP1 = V.alloc(8, 4)
vCS = V.alloc(4, 4); vA4 = V.alloc(4, 4); vCN = V.alloc(4, 4)
vXR = V.alloc(2, 2); vX4 = V.alloc(2, 2); vWA = V.alloc(2, 2); oVD = V.alloc(); vDUM = V.alloc()
NVGPR = V.n

DIAG = OPT('diag', -1); DG = OPT('dg', 0)
def stamp(i):
    if STAMPS: A('s_memrealtime s[%d:%d]' % (64 + 2 * i, 65 + 2 * i))
    if DIAG >= 0 and i == 0: A('s_memrealtime s[64:65]')
    if DIAG >= 0 and i == DIAG: A('s_memrealtime s[66:67]')
lab = [0]
def newlab(p='L'):
    lab[0] += 1
    return '%s%d' % (p, lab[0])
def dpp(d, s, mod, op='add'):
    A('v_%s_f32_dpp %s, %s, %s %s row_mask:0xf bank_mask:0xf' % (op, v(d), v(s), v(s), mod))
def dpp_add(d, ror, op='add'): dpp(d, d, 'row_ror:%d' % ror, op)
def movdpp(d, s, mod): A('v_mov_b32_dpp %s, %s %s row_mask:0xf bank_mask:0xf' % (v(d), v(s), mod))
def allred_rows(x, t, op='add', which=(16, 32)):
    for wdt in which:
        A('v_mov_b32 %s, %s' % (v(t), v(x)))
        A('v_permlane%d_swap_b32 %s, %s' % (wdt, v(x), v(t)))
        A('v_%s_f32 %s, %s, %s' % (op, v(x), v(x), v(t)))
def hi16(d, s): A('v_and_b32 %s, %s, %s' % (v(d), sHI, v(s)))
def lo16(d, s): A('v_lshlrev_b32 %s, 16, %s' % (v(d), v(s)))
def cvt(d, x, y): A('v_cvt_pk_bf16_f32 %s, %s, %s' % (v(d), v(x), v(y)))
def bf16r(d, s): cvt(d, s, s); hi16(d, d)
def ln_stats(vsum, vsq, vm, vr, t):
    A('v_mul_f32 %s, 0x%x, %s' % (v(vsum), INV512, v(vsum)))
    A('v_mul_f32 %s, 0x%x, %s' % (v(vsq), INV512, v(vsq)))
    A('v_fma_f32 %s, -%s, %s, %s' % (v(vsq), v(vsum), v(vsum), v(vsq)))
    A('v_max_f32 %s, 0, %s' % (v(vsq), v(vsq)))
    cvt(t, vsum, vsq)
    lo16(vm, t); hi16(vr, t)
    A('v_add_f32 %s, 0x%x, %s' % (v(vr), EPS, v(vr)))
    bf16r(vr, vr)
    A('v_sqrt_f32 %s, %s' % (v(vr), v(vr)))
    bf16r(vr, vr)
    A('v_rcp_f32 %s, %s' % (v(vr), v(vr)))
FULL = (1 << 64) - 1
def set_exec(mask):
    lo, hi = mask & 0xffffffff, mask >> 32
    if mask == FULL: A('s_mov_b64 exec, -1')
    elif hi == 0 and lo <= 64: A('s_mov_b64 exec, %d' % lo)
    elif hi == 0 and lo < 0x80000000: A('s_mov_b64 exec, 0x%x' % lo)
    elif lo == hi:
        A('s_mov_b32 exec_lo, 0x%x' % lo); A('s_mov_b32 exec_hi, exec_lo')
    else: raise ValueError
def mpoll(loads, grans, check, first_in_flight=False, extra=None, each=None):
    top = newlab('P'); done = newlab('D'); chk = newlab('C')
    A('s_mov_b32 %s, %d' % (sCNT, SPIN))
    if not first_in_flight:
        for l in loads: A(l)
    A('s_branch %s' % chk)
    A('%s:' % top)
    if each: each()
    for i, l in enumerate(loads):
        sk = newlab('K')
        A('s_mov_b64 exec, %s' % MS[i])
        A('s_cbranch_execz %s' % sk)
        A(l)
        A('%s:' % sk)
    A('s_mov_b64 exec, -1')
    A('%s:' % chk)
    A('s_waitcnt vmcnt(0)')
    for i, gq in enumerate(grans): check(i, gq, vY + i)
    for i, gq in enumerate(grans): A('v_cmp_ne_u32 %s, 0, %s' % (MS[i], v(vY + i)))
    if extra: extra()
    A('s_sub_u32 %s, %s, 1' % (sCNT, sCNT))
    A('s_cbranch_scc1 %s' % done)
    A('s_or_b64 vcc, %s, %s' % (MS[0], MS[1 if len(grans) > 1 else 0]))
    for i in range(2, len(grans)): A('s_or_b64 vcc, vcc, %s' % MS[i])
    A('s_cbranch_scc1 %s' % top)
    A('%s:' % done)
def chk_tags(i, gq, t):
    A('v_xor_b32 %s, %s, %s' % (v(t), sTA, v(gq + 2)))
    A('v_xor_b32 %s, %s, %s' % (v(t + 4), sTB, v(gq + 3)))
    A('v_or_b32 %s, %s, %s' % (v(t), v(t), v(t + 4)))
def chk_lam(i, gq, t):
    A('v_xor_b32 %s, %s, %s' % (v(t), sTA, v(gq + 3)))
    A('v_xor_b32_dpp %s, %s, %s quad_perm:[1,0,3,2] row_mask:0xf bank_mask:0xf' % (v(t + 4), v(gq + 2), v(gq + 2)))
    A('v_or_b32 %s, %s, %s' % (v(t), v(t), v(t + 4)))
def ldws(dst, voff, soff, imm=0):
    return 'buffer_load_dwordx4 %s, %s, %s, %s offen%s sc1' % (v(dst, 4), v(voff), SRD_WS, soff, (' offset:%d' % imm) if imm else '')
def stws(src, voff, soff, sc1=True):
    A('buffer_store_dwordx4 %s, %s, %s, %s offen%s' % (v(src, 4), v(voff), SRD_WS, soff, ' sc1' if sc1 else ''))
def st_grp(src, voff, soff):
    l1 = newlab('S'); l2 = newlab('S')
    A('s_cmp_eq_u32 %s, 0' % sFAST)
    A('s_cbranch_scc1 %s' % l1)
    stws(src, voff, soff, False)
    A('s_branch %s' % l2)
    A('%s:' % l1)
    stws(src, voff, soff, True)
    A('%s:' % l2)
def red8(x):
    A('v_permlane32_swap_b32 %s, %s' % (v(x), v(x + 1)))
    A('v_add_f32 %s, %s, %s' % (v(x), v(x), v(x + 1)))
    allred_rows(x, x + 1, 'add', (16,))
    dpp_add(x, 8)
def resid1(x, base):
    bf16r(x, x)
    A('v_add_f32 %s, %s, %s' % (v(x), v(x), v(base)))
    cvt(x, x, x)
def bar():
    A('s_waitcnt lgkmcnt(0)')
    A('s_barrier')
def mfma(acc, x, y, first): A('v_mfma_f32_16x16x32_bf16 %s, %s, %s, %s' % (v(acc, 4), v(x, 4), v(y, 4), '0' if first else v(acc, 4)))
def kdma(i):
    if i: A('v_xor_b32 %s, 0x%x, %s' % (v(vT[11]), 64 * i, v(oK)))
    A('buffer_load_dwordx4 %s, %s, %s offen offset:%d nt lds' % (v(vT[11] if i else oK), srd(SRD_K), sVS, 1024 * i))
def vdma():
    A('s_mov_b32 m0, %s' % sVM)
    A('s_add_u32 %s, %s, %s' % (sVM, sVM, s8K))
    A('buffer_load_dwordx4 %s, %s, %s offen nt lds' % (v(oVD), srd(SRD_V), sVS))
    A('s_add_u32 %s, %s, %s' % (sVS, sVS, s8K))
def tone():
    A('s_mov_b32 m0, %s' % sM0)
    A('s_add_u32 %s, %s, %s' % (sM0, sM0, s8K))
    A('global_load_lds_dwordx4 %s, off nt' % v(vWA, 2))
    A('v_lshl_add_u64 %s, %s, 0, s[30:31]' % (v(vWA, 2), v(vWA, 2)))
def ddma():
    A('s_mul_i32 s%d, %s, 14' % (SRD_W2 + 2, W3)); A('s_mov_b32 s%d, %s' % (SRD_W2 + 3, W3))
    A('s_lshl_b32 %s, %s, 5' % (sC, sW))
    A('s_and_b32 %s, %s, 0x80' % (sD, sC))
    A('s_lshl_b32 %s, %s, 1' % (sC, sC))
    A('s_and_b32 %s, %s, 64' % (sC, sC))
    A('s_or_b32 %s, %s, %s' % (sC, sC, sD))
    A('v_xor_b32 %s, %s, %s' % (v(vT[11]), sC, v(oX)))
    A('s_add_u32 %s, %s, %d' % (sC, sW, L_K // 2048))
    A('s_lshl_b32 m0, %s, 11' % sC)
    A('s_lshl3_add_u32 %s, %s, %s' % (sD, sIDX, sW))
    A('s_lshl_b32 %s, %s, 11' % (sD, sD))
    A('buffer_load_dwordx4 %s, %s, %s offen nt lds' % (v(vT[11]), srd(SRD_W2), sD))
    A('v_xor_b32 %s, 32, %s' % (v(vT[11]), v(vT[11])))
    A('buffer_load_dwordx4 %s, %s, %s offen offset:1024 nt lds' % (v(vT[11]), srd(SRD_W2), sD))
def fin():
    if STAMPS: A('s_branch L_FIN')
    else: A('s_endpgm')

head = []
for l in open('cdna_kernels/%s.s.ref' % NAME).read().split('\n'):
    if not l.startswith(';'): break
    head.append('; @launch grid=(256,1,1) block=(512,1,1) lds=%d' % LDS_BYTES if l.startswith('; @launch') else l)
a.raw('\n'.join(head))
DOC = """
; ---------------------------------------------------------------------------------------------
; ---------------------------------------------------------------------------------------------"""
a.raw('.amdgcn_target "amdgcn-amd-amdhsa--gfx950"' + DOC + '\n.text\n.globl %s_kernel\n.p2align 12\n.type %s_kernel,@function\n%s_kernel:' % (NAME, NAME, NAME))
sIDX = 's29'
A('s_load_dwordx2 s[%d:%d], s[0:1], 24' % (SRD_WQ, SRD_WQ + 1))
A('s_load_dwordx2 s[%d:%d], s[0:1], 0' % (SRD_X, SRD_X + 1))
A('s_load_dwordx2 s[16:17], s[0:1], 88')
A('s_load_dwordx2 s[%d:%d], s[0:1], 8' % (SRD_K, SRD_K + 1))
A('s_lshr_b32 %s, s2, 3' % sR)
A('s_cmp_ge_u32 %s, 32' % sR)
A('s_cbranch_scc1 L_END0')
def pf():
    A('s_getpc_b64 s[10:11]')
    A('s_and_b32 s10, s10, 0xfffff000')
    if PF == 3: A('s_addk_i32 s10, 4096')
    A('v_lshlrev_b32 %s, 3, v0' % v(vT[1]))
    A('global_load_dword %s, %s, s[10:11]' % (v(vDUM), v(vT[1])))
if PF == 1: pf()
A('v_readfirstlane_b32 %s, v0' % sW)
A('v_and_b32 %s, 63, v0' % v(vL))
A('s_and_b32 %s, s2, 7' % sG)
A('s_and_b32 %s, %s, 3' % (sRB, sR))
A('s_lshr_b32 %s, %s, 2' % (sE, sR))
if STAMPS:
    for i in range(16): A('s_mov_b64 s[%d:%d], 0' % (64 + 2 * i, 65 + 2 * i))
stamp(0)
A('v_lshrrev_b32 %s, 3, v0' % v(vT[0]))
A('v_and_b32 %s, 7, v0' % v(vCC))
A('v_lshlrev_b32 %s, 4, %s' % (v(oW2), v(vCC)))
A('v_lshl_or_b32 %s, %s, 14, %s' % (v(oWQ), v(vT[0]), v(oW2)))
A('s_lshl_b32 %s, %s, 20' % (sA, sRB))
A('s_lshl_b32 %s, %s, 10' % (sC, sG))
A('s_add_u32 %s, %s, %s' % (sA, sA, sC))
A('s_lshl_b32 %s, %s, 7' % (sC, sE))
A('s_add_u32 %s, %s, %s' % (sA, sA, sC))
A('s_movk_i32 %s, 8192' % s8K)
A('s_add_u32 %s, %s, %s' % (sB, sA, s8K))
A('s_mov_b32 %s, 0x20000' % W3)
A('s_lshl_b32 s%d, %s, 5' % (SRD_WQ + 2, W3)); A('s_mov_b32 s%d, %s' % (SRD_WQ + 3, W3))
A('s_movk_i32 s%d, 1024' % (SRD_X + 2))
A('v_lshlrev_b32 %s, 4, %s' % (v(oX), v(vL)))
A('v_lshlrev_b32 %s, 2, %s' % (v(oXR), v(vT[0])))
A('s_lshl_b32 %s, %s, 8' % (sD, sRB))
A('s_waitcnt lgkmcnt(0)')
A('buffer_load_dwordx4 %s, %s, %s, 0 offen' % (v(vXF, 4), v(oX), srd(SRD_X)))
A('buffer_load_dword %s, %s, %s, %s offen' % (v(vXR), v(oXR), srd(SRD_X), sD))
A('buffer_load_dwordx4 %s, %s, %s, %s offen nt' % (v(vWQa, 4), v(oWQ), srd(SRD_WQ), sA))
A('buffer_load_dwordx4 %s, %s, %s, %s offen nt' % (v(vWQb, 4), v(oWQ), srd(SRD_WQ), sB))
A('s_load_dwordx2 %s, s[16:17], %d' % (sTAG, WS_EPOCH))
A('s_lshr_b32 %s, %s, 6' % (sW, sW))
A('s_lshl_b32 s18, %s, 6' % W3); A('s_mov_b32 s19, %s' % W3)
A('s_add_u32 %s, %s, 8' % (sKV, sG))
A('s_lshl_b32 %s, %s, 12' % (sKV, sKV))
A('v_lshlrev_b32 %s, 3, v0' % v(vT[1]))
A('buffer_load_dword %s, %s, %s, %s offen sc1' % (v(vDUM), v(vT[1]), SRD_WS, sKV))
if PF >= 2: pf()
X2 = 1 if PF >= 2 else 0
A('v_lshrrev_b32 %s, 6, v0' % v(vWv))
A('v_and_b32 %s, 15, %s' % (v(vL15), v(vL)))
A('v_lshrrev_b32 %s, 4, %s' % (v(vROW), v(vL)))
A('s_lshl_b32 %s, %s, 8' % (sVS, sG))
A('s_add_u32 %s, %s, %s' % (sVS, sVS, sR))
A('s_addk_i32 %s, 224' % sVS)
A('s_lshl_b32 %s, %s, 15' % (sVS, sVS))
A('v_xor_b32 %s, %s, %s' % (v(vT[1]), v(vL15), v(vROW)))
A('v_lshlrev_b32 %s, 4, %s' % (v(vT[1]), v(vT[1])))
A('v_lshl_or_b32 %s, %s, 12, %s' % (v(vT[2]), v(vWv), v(vT[1])))
A('v_lshl_or_b32 %s, %s, 8, %s' % (v(oK), v(vROW), v(vT[2])))
A('v_lshl_or_b32 %s, %s, 8, %s' % (v(vA4), v(vL15), v(vT[2])))
A('s_lshl_b32 s%d, %s, 9' % (SRD_K + 2, W3)); A('s_mov_b32 s%d, %s' % (SRD_K + 3, W3))
A('s_add_u32 %s, %s, %d' % (sF, sW, L_K // 4096))
A('s_lshl_b32 m0, %s, 12' % sF)
A('s_barrier' if not NOB0 else 's_nop 0')
for i in range(K1): kdma(i)
X2 += K1 - 3
stamp(1)
A('s_load_dwordx2 s[%d:%d], s[0:1], 16' % (SRD_V, SRD_V + 1))
A('s_load_dwordx2 s[%d:%d], s[0:1], 32' % (pWO, pWO + 1))
A('s_load_dwordx4 s[%d:%d], s[0:1], 48' % (pWG, pWG + 3))
A('s_load_dwordx2 s[%d:%d], s[0:1], 64' % (SRD_W2, SRD_W2 + 1))
A('s_mov_b32 %s, 0x05040100' % sSELLO)
A('s_mov_b32 %s, 0x07060302' % sSELHI)
A('s_mov_b32 %s, 0x%x' % (sONE, ONES))
A('s_mov_b32 %s, 0xffff0000' % sHI)
A('s_mov_b32 %s, 0x%x' % (sLG, LOG2E))
A('s_mov_b64 s[%d:%d], s[%d:%d]' % (SRD_V + 2, SRD_V + 3, SRD_K + 2, SRD_K + 3))
A('v_lshrrev_b32 %s, 5, %s' % (v(vPI), v(vL)))
A('v_mov_b32 %s, 0' % v(vZ))
A('s_getreg_b32 %s, hwreg(HW_REG_XCC_ID, 0, 4)' % sXT)
A('v_lshlrev_b32 %s, 1, %s' % (v(vT[5]), v(oW2)))
A('v_lshl_or_b32 %s, %s, 3, %s' % (v(vT[5]), v(vROW), v(vT[5])))
A('v_lshl_or_b32 %s, %s, 8, %s' % (v(vT[5]), v(vWv), v(vT[5])))
A('v_and_b32 %s, 31, %s' % (v(vT[7]), v(vL)))
A('v_lshlrev_b32 %s, 3, %s' % (v(vT[6]), v(vT[7])))
A('v_lshl_or_b32 %s, %s, 10, %s' % (v(vT[6]), v(vPI), v(vT[6])))
A('v_lshrrev_b32 %s, 4, v0' % v(vT[2]))
A('v_and_b32 %s, 2, %s' % (v(vT[3]), v(vWv)))
A('v_lshl_or_b32 %s, %s, 1, %s' % (v(vT[3]), v(vT[3]), v(vROW)))
A('v_lshlrev_b32 %s, 1, %s' % (v(vT[3]), v(vT[3])))
A('v_xor_b32 %s, %s, %s' % (v(vT[3]), v(vT[3]), v(vL15)))
A('v_lshlrev_b32 %s, 4, %s' % (v(vCN), v(vT[3])))
A('v_lshl_or_b32 %s, %s, 8, %s' % (v(oVD), v(vT[2]), v(vCN)))
A('s_add_u32 %s, %s, %d' % (sVM, sW, L_V // 1024))
A('s_lshl_b32 %s, %s, 10' % (sVM, sVM))
A('s_add_u32 %s, %s, 0x%x' % (sM0, sVM, L_W - L_V))
A('s_add_u32 s10, s16, %s' % sKV)
A('s_addc_u32 s11, s17, 0')
A('s_lshl2_add_u32 %s, %s, %s' % (sKV, sR, sKV))
A('s_mul_i32 %s, %s, %d' % (sA, sG, E1_G))
A('s_add_u32 %s, %s, 0x%x' % (sA, sA, WS_E1))
A('s_mulk_i32 %s, %d' % (sD, E1_K // 256))
A('s_lshl_b32 %s, %s, 9' % (sC, sE))
A('s_add_u32 %s, %s, %s' % (sB, sD, sC))
A('s_add_u32 %s, %s, %s' % (sB, sB, sA))
A('s_mov_b32 s31, 0')
A('s_lshl2_add_u32 %s, %s, %s' % (sIDX, sG, sE))
A('s_mov_b32 %s, 0' % sROLE)
A('v_lshlrev_b32 %s, 7, %s' % (v(vT[8]), v(vL)))
A('s_waitcnt vmcnt(%d)' % (7 + X2))
stamp(2)
s0, s1, m_, r_, t_ = vT[0], vT[1], vT[9], vT[10], vT[4]
A('v_dot2_f32_bf16 %s, %s, %s, 0' % (v(s0), v(vXF), sONE))
A('v_dot2_f32_bf16 %s, %s, %s, 0' % (v(s1), v(vXF), v(vXF)))
for j in range(1, 4):
    A('v_dot2c_f32_bf16 %s, %s, %s' % (v(s0), sONE, v(vXF + j)))
    A('v_dot2c_f32_bf16 %s, %s, %s' % (v(s1), v(vXF + j), v(vXF + j)))
A('v_permlane32_swap_b32 %s, %s' % (v(s0), v(s1)))
A('v_add_f32 %s, %s, %s' % (v(s0), v(s0), v(s1)))
allred_rows(s0, s1, 'add', (16,))
for ror in (8, 4, 2): dpp_add(s0, ror)
dpp(s1, s0, 'row_ror:1'); dpp(s0, s0, 'row_ror:1')
A('v_permlane32_swap_b32 %s, %s' % (v(s0), v(s1)))
ln_stats(s0, s1, m_, r_, t_)
A('s_waitcnt vmcnt(%d)' % (6 + X2))
lo16(s0, vXR); hi16(s1, vXR)
A('v_sub_f32 %s, %s, %s' % (v(s0), v(s0), v(m_)))
A('v_sub_f32 %s, %s, %s' % (v(s1), v(s1), v(m_)))
cvt(t_, s0, s1)
lo16(s0, t_); hi16(s1, t_)
A('v_mul_f32 %s, %s, %s' % (v(s0), v(s0), v(r_)))
A('v_mul_f32 %s, %s, %s' % (v(s1), v(s1), v(r_)))
cvt(vXR, s0, s1)
A('s_waitcnt vmcnt(%d)' % (4 + X2))
stamp(3)
for j in range(4):
    A('v_perm_b32 %s, %s, %s, %s' % (v(vFA + 2 * j), v(vWQb + j), v(vWQa + j), sSELLO))
    A('v_perm_b32 %s, %s, %s, %s' % (v(vFA + 2 * j + 1), v(vWQb + j), v(vWQa + j), sSELHI))
for e in range(8): A('v_dot2_f32_bf16 %s, %s, %s, 0' % (v(vY + e), v(vFA + e), v(vXR)))
for i in range(4): A('v_permlane32_swap_b32 %s, %s' % (v(vY + i), v(vY + 4 + i)))
for i in range(4): A('v_add_f32 %s, %s, %s' % (v(vY + i), v(vY + i), v(vY + 4 + i)))
for i in range(2): A('v_permlane16_swap_b32 %s, %s' % (v(vY + i), v(vY + 2 + i)))
for i in range(2): A('v_add_f32 %s, %s, %s' % (v(vY + i), v(vY + i), v(vY + 2 + i)))
dpp_add(vY, 8); dpp_add(vY + 1, 8)
A('ds_write_b64 %s, %s offset:%d' % (v(vT[5]), v(vY, 2), L_QACC))
A('s_waitcnt lgkmcnt(0)')
A('s_add_u32 %s, %s, 1' % (sTA, sTA))
A('s_barrier')
A('s_lshl4_add_u32 %s, %s, %s' % (sXT, sTA, sXT))
A('v_mov_b32 %s, %s' % (v(vG + 2), sTA))
A('v_mov_b32 %s, %s' % (v(vG + 3), sTB))
A('s_cmp_lg_u32 %s, 0' % sW)
A('s_cbranch_scc1 L_NOPUB1')
if PRIO: A('s_setprio 3')
A('ds_read2st64_b64 %s, %s offset0:0 offset1:1' % (v(vY, 4), v(vT[6])) if False else 'ds_read2_b64 %s, %s offset0:%d offset1:%d' % (v(vY, 4), v(vT[6]), 0, 32))
A('ds_read2_b64 %s, %s offset0:%d offset1:%d' % (v(vY + 4, 4), v(vT[6]), 64, 96))
A('v_mov_b32 %s, %s' % (v(vG2), sXT))
A('s_add_u32 %s, %s, 0x%x' % (sC, sB, E1_FS))
A('s_waitcnt lgkmcnt(0)')
A('v_pk_add_f32 %s, %s, %s' % (v(vY, 2), v(vY, 2), v(vY + 2, 2)))
A('v_pk_add_f32 %s, %s, %s' % (v(vY + 4, 2), v(vY + 4, 2), v(vY + 6, 2)))
A('v_pk_add_f32 %s, %s, %s' % (v(vG, 2), v(vY, 2), v(vY + 4, 2)))
A('v_pk_add_f32 %s, %s, %s' % (v(vY, 2), v(vY, 2), v(vY + 4, 2)))
A('v_permlane32_swap_b32 %s, %s' % (v(vG), v(vY)))
A('v_permlane32_swap_b32 %s, %s' % (v(vG + 1), v(vY + 1)))
A('v_pk_add_f32 %s, %s, %s' % (v(vG, 2), v(vG, 2), v(vY, 2)))
A('s_mov_b32 exec_hi, 0')
stws(vG, oX, sB, False)
A('buffer_store_dword %s, %s, %s, %s offen' % (v(vG2), v(vT[8]), SRD_WS, sKV))
stws(vG, oX, sC, True)
set_exec(FULL)
A('L_NOPUB1:')
stamp(4)
A('s_barrier')
for i in range(K1, 4): kdma(i)
for i in range(V2): vdma()
A('s_cmp_lt_u32 %s, 16' % sR)
A('s_cbranch_scc0 L_LA_G')
A('s_lshl_b32 %s, %s, 9' % (sF, sIDX))
A('s_add_u32 %s, %s, %s' % (sF, sF, sRB))
A('s_lshl_b32 %s, %s, 8' % (sF, sF))
A('v_lshl_or_b32 %s, %s, 10, %s' % (v(vT[2]), v(vT[2]), v(vCN)))
A('s_lshl_b32 s30, %s, 2' % s8K)
A('s_mov_b64 s[%d:%d], s[%d:%d]' % (pWG, pWG + 1, pWO, pWO + 1))
A('s_mov_b64 s[%d:%d], s[%d:%d]' % (pWU, pWU + 1, pWO, pWO + 1))
A('s_branch L_LA_GO')
A('L_LA_G:')
A('s_max_u32 %s, %s, 4' % (sC, sG))
A('s_sub_u32 %s, %s, %s' % (sC, sIDX, sC))
A('s_lshr_b32 %s, %s, 2' % (sROLE, sG))
A('s_add_u32 %s, %s, %s' % (sROLE, sROLE, sE))
A('s_cmp_eq_u32 %s, 8' % sROLE)
A('s_cselect_b32 %s, 2, 1' % sROLE)
A('s_lshl2_add_u32 %s, %s, %s' % (sIDX, sC, sRB))
A('s_mul_i32 %s, %s, 3584' % (sF, sRB))
A('s_add_u32 %s, %s, %s' % (sF, sF, sC))
A('s_lshl_b32 %s, %s, 7' % (sF, sF))
A('v_and_b32 %s, 0x70, %s' % (v(vCN), v(vCN)))
A('s_movk_i32 %s, 3584' % sC)
A('v_mad_u32_u24 %s, %s, %s, %s' % (v(vT[2]), v(vT[2]), sC, v(vCN)))
A('s_lshl_b32 s30, %s, 5' % sC)
A('L_LA_GO:')
A('v_cmp_lt_u32 vcc, 7, %s' % v(vT[3]))
A('v_add_u32 %s, %s, %s' % (v(vCN), sF, v(vT[2])))
A('v_mov_b32 %s, 0' % v(vCN + 1))
A('v_lshl_add_u64 %s, %s, 0, s[%d:%d]' % (v(vWA, 2), v(vCN, 2), pWG, pWG + 1))
A('v_lshl_add_u64 %s, %s, 0, s[%d:%d]' % (v(vCN + 2, 2), v(vCN, 2), pWU, pWU + 1))
A('v_cndmask_b32 %s, %s, %s, vcc' % (v(vWA), v(vWA), v(vCN + 2)))
A('v_cndmask_b32 %s, %s, %s, vcc' % (v(vWA + 1), v(vWA + 1), v(vCN + 3)))
A('v_mov_b32 %s, %s' % (v(vG2 + 3), sTA))
A('v_bfe_u32 %s, %s, 2, 2' % (v(vT[1]), v(vL)))
A('v_bfe_u32 %s, %s, 2, 3' % (v(vT[2]), v(vL)))
A('v_xor_b32 %s, %s, %s' % (v(vT[2]), v(vT[2]), v(vWv)))
A('v_and_b32 %s, 3, %s' % (v(vT[6]), v(vL)))
A('v_lshl_or_b32 %s, %s, 2, %s' % (v(vT[2]), v(vT[2]), v(vT[6])))
A('v_lshl_or_b32 %s, %s, 5, %s' % (v(vT[2]), v(vT[1]), v(vT[2])))
A('v_lshl_or_b32 %s, %s, 8, %s' % (v(vT[2]), v(vROW), v(vT[2])))
A('v_lshlrev_b32 %s, 3, %s' % (v(oTR), v(vT[2])))
A('v_and_b32 %s, 48, %s' % (v(vT[2]), v(vL)))
A('s_movk_i32 %s, %d' % (sC, QS))
A('v_mad_u32_u24 %s, %s, %s, %s' % (v(oFR), v(vT[6]), sC, v(vT[2])))
A('v_mad_u32_u24 %s, %s, %s, %s' % (v(oV), v(vT[1]), sC, v(vT[2])))
A('v_lshrrev_b32 %s, 1, v0' % v(vT[8]))
A('v_and_b32 %s, 0xf8, %s' % (v(vT[8]), v(vT[8])))
A('v_mad_u32_u24 %s, %s, %s, %s' % (v(vT[8]), v(vT[6]), sC, v(vT[8])))
A('v_lshl_or_b32 %s, %s, 5, %s' % (v(vT[4]), v(vWv), v(vT[7])))
A('v_mul_u32_u24 %s, %d, %s' % (v(vT[1]), 2 * E1_K, v(vPI)))
A('v_lshl_add_u32 %s, %s, 4, %s' % (v(vT[0]), v(vT[4]), v(vT[1])))
if NOFAST: A('s_add_u32 %s, %s, 0x%x' % (sA, sA, E1_FS))
A('s_add_u32 %s, %s, %d' % (sB, sA, E1_K))
A('v_lshl_or_b32 %s, %s, 1, %s' % (v(vT[1]), v(vT[4]), v(vPI)))
A('v_and_b32 %s, 6, %s' % (v(vT[4]), v(vWv)))
A('v_lshl_add_u32 %s, %s, 2, %s' % (v(vT[1]), v(vT[4]), v(vT[1])))
A('v_lshlrev_b32 %s, 1, %s' % (v(vT[1]), v(vT[1])))
A('v_xor_b32 %s, 64, %s' % (v(vA4 + 1), v(vA4)))
A('v_xor_b32 %s, 0x80, %s' % (v(vA4 + 2), v(vA4)))
A('v_xor_b32 %s, 64, %s' % (v(vA4 + 3), v(vA4 + 2)))
A('v_lshlrev_b32 %s, 5, %s' % (v(vT[7]), v(vT[6])))
A('v_lshl_add_u32 %s, %s, 2, %s' % (v(vT[3]), v(vWv), v(vT[7])))
A('v_lshlrev_b32 %s, 5, %s' % (v(vT[9]), v(vROW)))
A('v_lshl_or_b32 %s, %s, 15, %s' % (v(vT[10]), v(vROW), v(oW2)))
A('s_lshl_b32 %s, %s, 5' % (sKV, sG))
A('s_add_u32 %s, %s, %s' % (sKV, sKV, sW))
A('s_lshl_b32 %s, %s, 5' % (sKV, sKV))
A('s_add_u32 %s, %s, %s' % (sKV, sKV, sR))
A('s_add_u32 %s, %s, %s' % (sKV, sKV, s8K))
A('s_lshl_b32 %s, %s, 7' % (sKV, sKV))
A('s_mov_b32 %s, 0' % sFAST)
A('s_cmp_lg_u32 %s, 7' % sW)
A('s_cbranch_scc1 L_FL_DONE')
A('s_movk_i32 %s, 31' % sCNT)
A('s_mov_b32 s8, %s' % sXT); A('s_mov_b32 s9, %s' % sXT)
A('L_FL:')
if STAMPS:
    for pc in range(4):
        A('s_load_dwordx8 s[40:47], s[10:11], %d' % (32 * pc))
        A('s_waitcnt lgkmcnt(0)')
        for k in range(4):
            A('s_cmp_eq_u64 s[%d:%d], s[8:9]' % (40 + 2 * k, 41 + 2 * k))
            A('s_cbranch_scc0 L_FL_NO')
else:
    A('s_load_dwordx16 s[64:79], s[10:11], 0')
    A('s_load_dwordx16 s[80:95], s[10:11], 64')
    A('s_waitcnt lgkmcnt(0)')
    for k in range(16):
        A('s_cmp_eq_u64 s[%d:%d], s[8:9]' % (64 + 2 * k, 65 + 2 * k))
        A('s_cbranch_scc0 L_FL_NO')
A('s_mov_b32 %s, %d' % (sFAST, 0 if NOFAST else 1))
A('s_branch L_FL_W')
A('L_FL_NO:')
if FSLEEP: A('s_sleep %d' % FSLEEP)
A('s_addk_i32 s10, 128')
A('s_sub_u32 %s, %s, 1' % (sCNT, sCNT))
A('s_cbranch_scc0 L_FL')
A('L_FL_W:')
A('v_mov_b32 %s, %s' % (v(vP1), sFAST))
A('ds_write_b32 %s, %s offset:%d' % (v(vZ), v(vP1), L_FLG))
A('L_FL_DONE:')
A('s_barrier')
stamp(5)
e1l = [ldws(vP0, vT[0], sA), ldws(vP0 + 4, vT[0], sB)]
for l in e1l: A(l)
A('s_barrier')
for i in range(4 - V2): vdma()
A(ldws(vCS, vT[10], sKV) if not NOPT else 'buffer_load_dword %s, %s, %s, 0 offen' % (v(vCS), v(vZ), srd(SRD_X)))
def tslot(ch, setscc=True):
    n = TP.count(ch)
    if not n: return
    l = newlab('N')
    if setscc: A('s_cmp_lg_u32 %s, 0' % sROLE)
    A('s_cbranch_scc1 %s' % l)
    for i in range(n): tone()
    A('%s:' % l)
if TP.count('3'):
    A('s_cmp_lg_u32 %s, 0' % sROLE)
    A('s_cbranch_scc1 L_N3')
    for i in range(TP.count('3')): tone()
    A('s_waitcnt vmcnt(%d)' % (5 - V2 + TP.count('3')))
    A('s_branch L_N3D')
    A('L_N3:')
A('s_waitcnt vmcnt(%d)' % (5 - V2))
A('L_N3D:')
for j in range(4): A('ds_read_b128 %s, %s offset:%d' % (v(vK + 4 * j, 4), v(vA4 + j), L_K))
for i, gq in enumerate((vP0, vP0 + 4)): chk_tags(i, gq, vY + i)
A('v_or_b32 %s, %s, %s' % (v(vY), v(vY), v(vY + 1)))
A('v_cmp_ne_u32 vcc, 0, %s' % v(vY))
A('s_cbranch_vccnz L_E1_RETRY')
A('L_E1_OK:')
stamp(15)
A('v_pk_add_f32 %s, %s, %s' % (v(vP0, 2), v(vP0, 2), v(vP0 + 4, 2)))
A('s_cmp_gt_u32 %s, %d' % (sROLE, G4))
A('v_permlane32_swap_b32 %s, %s' % (v(vP0), v(vP0 + 1)))
A('v_add_f32 %s, %s, %s' % (v(vP0), v(vP0), v(vP0 + 1)))
cvt(vP0, vP0, vP0)
A('ds_write_b16 %s, %s offset:%d' % (v(vT[1]), v(vP0), L_Q))
tslot('4', False)
bar()
for j in range(4): A('ds_read_b128 %s, %s offset:%d' % (v(vFB + 4 * j, 4), v(oFR), L_Q + 64 * j))
A('ds_read_b32 %s, %s offset:%d' % (v(vFA + 8), v(vZ), L_FLG))
stamp(6)
A('v_mov_b32 %s, 0x%x' % (v(vCN), SCALE))
for j in range(4):
    A('s_waitcnt lgkmcnt(%d)' % (4 - j))
    mfma(vACC, vK + 4 * j, vFB + 4 * j, j == 0)
A('s_waitcnt lgkmcnt(0)')
A('v_readfirstlane_b32 %s, %s' % (sFAST, v(vFA + 8)))
S = vY
for h in range(2): cvt(vT[4 + h], vACC + 2 * h, vACC + 2 * h + 1)
for h in range(2): lo16(S + 2 * h, vT[4 + h]); hi16(S + 2 * h + 1, vT[4 + h])
for i in range(4): A('v_mul_f32 %s, %s, %s' % (v(S + i), v(vCN), v(S + i)))
for h in range(2): cvt(vT[4 + h], S + 2 * h, S + 2 * h + 1)
for h in range(2): lo16(S + 2 * h, vT[4 + h]); hi16(S + 2 * h + 1, vT[4 + h])
A('v_max3_f32 %s, %s, %s, %s' % (v(vT[4]), v(S), v(S + 1), v(S + 2)))
A('v_max_f32 %s, %s, %s' % (v(vT[4]), v(vT[4]), v(S + 3)))
allred_rows(vT[4], vT[5], 'max')
A('ds_write_b32 %s, %s offset:%d' % (v(vT[3]), v(vT[4]), L_MAX))
A('s_cmp_lg_u32 %s, 0' % sROLE)
bar()
A('ds_read_b128 %s, %s offset:%d' % (v(vFA, 4), v(vT[7]), L_MAX))
A('ds_read_b128 %s, %s offset:%d' % (v(vFA + 4, 4), v(vT[7]), L_MAX + 16))
tslot('6', False)
A('s_waitcnt lgkmcnt(0)')
A('v_max3_f32 %s, %s, %s, %s' % (v(vT[4]), v(vFA), v(vFA + 1), v(vFA + 2)))
A('v_max3_f32 %s, %s, %s, %s' % (v(vT[5]), v(vFA + 3), v(vFA + 4), v(vFA + 5)))
A('v_max3_f32 %s, %s, %s, %s' % (v(vT[4]), v(vT[4]), v(vFA + 6), v(vFA + 7)))
A('v_max_f32 %s, %s, %s' % (v(vT[4]), v(vT[4]), v(vT[5])))
A('v_mul_f32 %s, %s, %s' % (v(vCN), sLG, v(vT[4])))
for i in range(4): A('v_fma_f32 %s, %s, %s, -%s' % (v(S + i), v(S + i), sLG, v(vCN)))
for i in range(4): A('v_exp_f32 %s, %s' % (v(S + i), v(S + i)))
A('v_lshrrev_b32 %s, 2, %s' % (v(vCN + 1), v(vT[2])))
cvt(S + 4, S, S + 1)
A('v_add_f32 %s, %s, %s' % (v(vT[4]), v(S), v(S + 1)))
cvt(S + 5, S + 2, S + 3)
A('v_add_f32 %s, %s, %s' % (v(vT[5]), v(S + 2), v(S + 3)))
A('ds_write_b64 %s, %s offset:%d' % (v(vT[8]), v(S + 4, 2), L_P))
A('ds_bpermute_b32 %s, %s, %s' % (v(vP1), v(vCN + 1), v(vCN)))
A('v_add_f32 %s, %s, %s' % (v(vT[4]), v(vT[4]), v(vT[5])))
allred_rows(vT[4], vT[5], 'add')
A('ds_write_b32 %s, %s offset:%d' % (v(vT[3]), v(vT[4]), L_LS))
stamp(7)
tslot('7')
A('s_cmp_eq_u32 %s, 0' % sROLE)
A('s_waitcnt vmcnt(5)')
A('s_cbranch_scc1 L_WV')
if G4:
    A('s_cmp_eq_u32 %s, 1' % sROLE)
    A('s_waitcnt vmcnt(%d)' % (1 + TP.count('4')))
    A('s_cbranch_scc1 L_WV')
A('s_waitcnt vmcnt(1)')
A('L_WV:')
bar()
A('ds_read_b128 %s, %s offset:%d' % (v(vY, 4), v(vT[9]), L_LS))
A('ds_read_b128 %s, %s offset:%d' % (v(vY + 4, 4), v(vT[9]), L_LS + 16))
for b in range(4):
    A('ds_read_b128 %s, %s offset:%d' % (v(vFB + 4 * b, 4), v(oV), L_P + 64 * b))
    A('ds_read_b64_tr_b16 %s, %s offset:%d' % (v(vFA + 4 * b, 2), v(oTR), L_V + 8192 * b))
    A('ds_read_b64_tr_b16 %s, %s offset:%d' % (v(vFA + 4 * b + 2, 2), v(oTR), L_V + 8192 * b + 1024))
A('s_lshl3_add_u32 %s, %s, %s' % (sA, sIDX, sW))
A('s_addk_i32 %s, %d' % (sA, WS_E2 // 4096))
A('s_lshl_b32 %s, %s, 12' % (sA, sA))
A('s_waitcnt lgkmcnt(12)')
A('v_pk_add_f32 %s, %s, %s' % (v(vY, 2), v(vY, 2), v(vY + 2, 2)))
A('v_pk_add_f32 %s, %s, %s' % (v(vY + 4, 2), v(vY + 4, 2), v(vY + 6, 2)))
A('v_pk_add_f32 %s, %s, %s' % (v(vY, 2), v(vY, 2), v(vY + 4, 2)))
A('v_add_f32 %s, %s, %s' % (v(vY), v(vY), v(vY + 1)))
for b in range(4):
    A('s_waitcnt lgkmcnt(%d)' % (9 - 3 * b))
    mfma(vACC, vFB + 4 * b, vFA + 4 * b, b == 0)
A('v_log_f32 %s, %s' % (v(vG2 + 2), v(vY)))
A('v_rcp_f32 %s, %s' % (v(vY), v(vY)))
A('v_lshl_or_b32 %s, %s, 3, %s' % (v(vT[3]), v(vPI), v(vCC)))
A('v_add_f32 %s, %s, %s' % (v(vG2 + 2), v(vG2 + 2), v(vP1)))
A('v_lshl_or_b32 %s, %s, 4, %s' % (v(vT[3]), v(vWv), v(vT[3])))
A('v_lshlrev_b32 %s, 1, %s' % (v(vT[3]), v(vT[3])))
A('v_mul_f32 %s, %s, %s' % (v(vG2), v(vACC), v(vY)))
movdpp(vG2 + 1, vG2, 'row_ror:8')
set_exec(0x00ff00ff00ff00ff)
st_grp(vG2, vT[10], sKV)
set_exec(FULL)
stamp(8)
A('s_cmp_eq_u32 %s, 1' % sROLE)
A('s_cbranch_scc1 L_GT')
A('s_cmp_eq_u32 %s, 2' % sROLE)
A('s_cbranch_scc1 L_FIN0')
g4 = [vP0, vP0 + 4, vP1, vP1 + 4]
l4 = [ldws(g4[i], oX, sA, 1024 * i) for i in range(4)]
for l in l4: A(l)
A('v_add_u32 %s, 0x%x, %s' % (v(vT[1]), L_W, v(oTR)))
A('s_lshl3_add_u32 %s, %s, %s' % (sKV, sRB, sW))
A('s_lshl_b32 %s, %s, 5' % (sKV, sKV))
A('s_add_u32 %s, %s, %s' % (sKV, sKV, sIDX))
A('s_mulk_i32 %s, %d' % (sKV, LS3))
A('s_add_u32 %s, %s, 0x%x' % (sKV, sKV, WS_E3))
if NC > 1:
    A('v_lshrrev_b32 %s, 3, %s' % (v(vT[4]), v(vL)))
    A('v_mul_u32_u24 %s, %d, %s' % (v(vT[4]), 1024 * LS3, v(vT[4])))
    A('v_add_u32 %s, %s, %s' % (v(vT[4]), v(vT[4]), v(oW2)))
    A('v_and_b32 %s, 8, %s' % (v(vT[6]), v(vL)))
    A('v_cmp_ne_u32 %s, 0, %s' % (sMSK, v(vT[6])))
def wtr():
    for b in range(4):
        A('ds_read_b64_tr_b16 %s, %s offset:%d' % (v(vW1 + 4 * b, 2), v(vT[1]), 8192 * b))
        A('ds_read_b64_tr_b16 %s, %s offset:%d' % (v(vW1 + 4 * b + 2, 2), v(vT[1]), 8192 * b + 1024))
if WPRE:
    A('s_waitcnt vmcnt(5)')
    A('s_barrier')
    wtr()
def lammax():
    A('v_max3_f32 %s, %s, %s, %s' % (v(vT[5]), v(g4[0] + 2), v(g4[1] + 2), v(g4[2] + 2)))
    A('v_max_f32 %s, %s, %s' % (v(vT[5]), v(vT[5]), v(g4[3] + 2)))
mpoll(l4, g4, chk_lam, first_in_flight=True, extra=lammax)
stamp(10)
dpp_add(vT[5], 8, 'max')
allred_rows(vT[5], vT[6], 'max')
for i in range(4): A('v_sub_f32 %s, %s, %s' % (v(g4[i] + 2), v(g4[i] + 2), v(vT[5])))
for i in range(4): A('v_exp_f32 %s, %s' % (v(g4[i] + 2), v(g4[i] + 2)))
A('v_mul_f32 %s, %s, %s' % (v(vP0), v(vP0 + 2), v(vP0)))
A('v_mul_f32 %s, %s, %s' % (v(vP0 + 1), v(vP0 + 2), v(vP0 + 1)))
for i in range(1, 4):
    A('v_fmac_f32 %s, %s, %s' % (v(vP0), v(g4[i] + 2), v(g4[i])))
    A('v_fmac_f32 %s, %s, %s' % (v(vP0 + 1), v(g4[i] + 2), v(g4[i] + 1)))
    A('v_add_f32 %s, %s, %s' % (v(vP0 + 2), v(vP0 + 2), v(g4[i] + 2)))
A('v_mov_b32 %s, %s' % (v(vP0 + 3), v(vP0 + 2)))
A('v_permlane32_swap_b32 %s, %s' % (v(vP0), v(vP0 + 1)))
A('v_permlane32_swap_b32 %s, %s' % (v(vP0 + 2), v(vP0 + 3)))
A('v_add_f32 %s, %s, %s' % (v(vP0), v(vP0), v(vP0 + 1)))
A('v_add_f32 %s, %s, %s' % (v(vP0 + 2), v(vP0 + 2), v(vP0 + 3)))
A('v_mov_b32 %s, %s' % (v(vP0 + 1), v(vP0)))
A('v_mov_b32 %s, %s' % (v(vP0 + 3), v(vP0 + 2)))
A('v_permlane16_swap_b32 %s, %s' % (v(vP0), v(vP0 + 1)))
A('v_permlane16_swap_b32 %s, %s' % (v(vP0 + 2), v(vP0 + 3)))
A('v_add_f32 %s, %s, %s' % (v(vP0 + 2), v(vP0 + 2), v(vP0 + 3)))
A('v_add_f32 %s, %s, %s' % (v(vP0), v(vP0), v(vP0 + 1)))
dpp_add(vP0 + 2, 8); dpp_add(vP0, 8)
A('v_rcp_f32 %s, %s' % (v(vP0 + 2), v(vP0 + 2)))
A('v_mul_f32 %s, %s, %s' % (v(vP0), v(vP0), v(vP0 + 2)))
cvt(vP0, vP0, vP0)
A('ds_write_b16 %s, %s offset:%d' % (v(vT[3]), v(vP0), L_ACC))
bar()
stamp(9)
for b in range(4):
    A('ds_read_b128 %s, %s offset:%d' % (v(vFB + 4 * b, 4), v(vT[2]), L_ACC + 64 * b))
    if not WPRE:
        A('ds_read_b64_tr_b16 %s, %s offset:%d' % (v(vW1 + 4 * b, 2), v(vT[1]), 8192 * b))
        A('ds_read_b64_tr_b16 %s, %s offset:%d' % (v(vW1 + 4 * b + 2, 2), v(vT[1]), 8192 * b + 1024))
for b in range(4):
    A('s_waitcnt lgkmcnt(%d)' % ((3 - b) if WPRE else (9 - 3 * b)))
    mfma(vACC, vFB + 4 * b, vW1 + 4 * b, b == 0)
A('s_cmp_eq_u32 %s, 0' % sRB)
if NC > 1:
    movdpp(vT[6], vACC, 'row_ror:8')
    A('v_cndmask_b32 %s, %s, %s, %s' % (v(vG), v(vACC + 1), v(vT[6]), sMSK))
    A('v_cndmask_b32 %s, %s, %s, %s' % (v(vG + 1), v(vT[6]), v(vACC + 1), sMSK))
    stws(vG, vT[4], sKV)
else:
    movdpp(vG + 1, vACC, 'row_ror:8')
    A('v_mov_b32 %s, %s' % (v(vG), v(vACC + 1)))
    set_exec(0xff)
    stws(vG, oX, sKV)
    set_exec(FULL)
stamp(11)
A('s_cbranch_scc1 L_RED')
A('L_FIN0:')
fin()
A('L_END0:')
A('s_endpgm')
A('L_GT:')
a.hist = []
A('s_barrier')
for i in range(4 - (TP.count('4') if G4 else 0)): tone()
if not GD: ddma()
if DG: A('s_memrealtime s[64:65]')
A('s_branch L_ROLE_G')
A('L_PAGE0_END:')
if not STAMPS:
    a.raw('.if (L_PAGE0_END - %s_kernel) > 4096\n.error "page 0 overflow"\n.endif' % NAME)
    a.raw('.fill (4096 - (L_PAGE0_END - %s_kernel)) / 4, 4, 0xbf800000' % NAME)
A('L_ROLE_G:')
a.hist = []
if DG == 1: A('s_memrealtime s[66:67]')
A('s_lshl_b32 %s, %s, 12' % (sJ := 's28', sIDX))
A('s_add_u32 %s, %s, 0x%x' % (sJ, sJ, WS_E4))
A('v_lshlrev_b32 %s, 4, v0' % v(vT[5]))
A('v_and_b32 %s, 0xff0, %s' % (v(vT[5]), v(vT[5])))
A(ldws(vCS, vT[5], sJ))
A('s_lshl_b32 %s, %s, 8' % (sC, sRB))
A('buffer_load_ushort %s, %s, %s, %s offen' % (v(vXR), v(vT[3]), srd(SRD_X), sC))
A('s_and_b32 %s, %s, 1' % (sE, sW))
A('s_lshl_b32 %s, %s, 2' % (sE, sE))
A('s_lshr_b32 %s, %s, 1' % (sD, sW))
A('s_or_b32 %s, %s, %s' % (sC, sE, sD))
A('s_xor_b32 %s, %s, %s' % (sC, sC, sW))
A('s_lshl_b32 %s, %s, 5' % (sC, sC))
A('v_xor_b32 %s, %s, %s' % (v(vT[1]), sC, v(oTR)))
A('v_add_u32 %s, 0x%x, %s' % (v(vT[1]), L_W, v(vT[1])))
sDST = 's33'
A('s_andn2_b32 %s, %s, 3' % (sDST, sIDX))
A('s_add_u32 %s, %s, %s' % (sDST, sDST, sD))
A('s_lshl_b32 %s, %s, 12' % (sDST, sDST))
A('s_add_u32 %s, %s, 0x%x' % (sDST, sDST, WS_E4))
A('s_add_u32 %s, %s, %s' % (sE, sE, sRB))
A('v_lshrrev_b32 %s, 1, %s' % (v(vT[4]), v(vCC)))
A('v_lshlrev_b32 %s, 8, %s' % (v(vT[4]), v(vT[4])))
A('v_and_b32 %s, 1, %s' % (v(vT[6]), v(vL)))
A('v_lshl_or_b32 %s, %s, 4, %s' % (v(vT[4]), v(vT[6]), v(vT[4])))
A('v_lshl_add_u32 %s, %s, 5, %s' % (v(vT[4]), sE, v(vT[4])))
A('s_lshl_b32 %s, %s, 4' % (sE, sE))
A('s_add_u32 %s, %s, 2048' % (sE, sE))
A('v_mov_b32 %s, %s' % (v(vT[7]), sE))
A('v_cmp_eq_u32 s[10:11], 8, %s' % v(vL))
A('v_and_b32 %s, 8, %s' % (v(vT[6]), v(vL)))
A('v_cmp_ne_u32 %s, 0, %s' % (sMSK, v(vT[6])))
A('v_cndmask_b32 %s, %s, %s, s[10:11]' % (v(oFR), v(vT[4]), v(vT[7])))
A('s_add_u32 %s, %s, 1024' % (sE, sDST))
A('v_and_b32 %s, 14, %s' % (v(oWQ), v(vL)))
A('v_lshlrev_b32 %s, 3, %s' % (v(oWQ), v(oWQ)))
A('s_lshl3_add_u32 %s, %s, %s' % (sA, sRB, sW))
if NC > 1:
    A('s_lshl_b32 %s, %s, 5' % (sC, sG))
    A('s_add_u32 %s, %s, %s' % (sA, sA, sC))
A('s_mul_i32 %s, %s, %d' % (sA, sA, 32 * LS3))
A('s_add_u32 %s, %s, 0x%x' % (sA, sA, WS_E3))
for i_, r_ in enumerate(('s48', 's49', 's50')): A('s_add_u32 %s, %s, %d' % (r_, sA, 8 * LS3 * (i_ + 1)))
A('v_lshrrev_b32 %s, 3, %s' % (v(vT[0]), v(vL)))
A('v_mul_u32_u24 %s, %d, %s' % (v(vT[0]), LS3, v(vT[0])))
A('v_add_u32 %s, %s, %s' % (v(vT[0]), v(vT[0]), v(oW2)))
l4 = [ldws(g4[i], vT[0], (sA, 's48', 's49', 's50')[i]) for i in range(4)]
if GP == 1:
    for l in l4: A(l)
A('s_lshl_b32 %s, %s, 9' % (sB, sW))
A('s_add_u32 %s, %s, %s' % (sB, sB, sIDX))
A('s_mul_i32 %s, %s, %d' % (sB, sB, LS5))
A('s_add_u32 %s, %s, 0x%x' % (sB, sB, WS_E5))
A('v_mul_u32_u24 %s, %d, %s' % (v(oV), 128 * LS5, v(vROW)))
A('v_add_u32 %s, %s, %s' % (v(oV), v(oV), v(oW2)))
A('v_bfe_u32 %s, %s, 3, 1' % (v(vT[6]), v(vL)))
A('v_lshl_or_b32 %s, %s, 1, %s' % (v(vT[6]), v(vROW), v(vT[6])))
A('v_bfe_u32 %s, %s, 2, 1' % (v(vT[7]), v(vL)))
A('v_and_b32 %s, 3, %s' % (v(oK), v(vT[6])))
A('v_lshl_or_b32 %s, %s, 2, %s' % (v(oK), v(vT[7]), v(oK)))
A('v_lshl_or_b32 %s, %s, 3, %s' % (v(vT[6]), v(vT[7]), v(vT[6])))
A('v_lshlrev_b32 %s, 2, %s' % (v(vT[7]), v(vWv)))
A('v_xor_b32 %s, %s, %s' % (v(oK), v(oK), v(vT[7])))
A('v_lshlrev_b32 %s, 5, %s' % (v(oK), v(oK)))
A('v_lshl_or_b32 %s, %s, 10, %s' % (v(oK), v(vT[6]), v(oK)))
A('v_and_b32 %s, 3, %s' % (v(vT[6]), v(vL)))
A('v_lshl_or_b32 %s, %s, 3, %s' % (v(oK), v(vT[6]), v(oK)))
A('v_cmp_eq_u32 s[98:99], 1, %s' % v(vROW))
for i in range(4): A('v_mov_b32 %s, %s' % (v(vA4 + i), sONE))
A('s_waitcnt vmcnt(0)')
A('s_barrier')
if DG == 2: A('s_memrealtime s[66:67]')
stamp(9)
if GP != 2:
    for l in l4: A(l)
for b in range(4):
    A('ds_read_b64_tr_b16 %s, %s offset:%d' % (v(vW1 + 4 * b, 2), v(vT[1]), 8192 * b))
    A('ds_read_b64_tr_b16 %s, %s offset:%d' % (v(vW1 + 4 * b + 2, 2), v(vT[1]), 8192 * b + 1024))
for t4 in range(4):
    if t4: A('v_xor_b32 %s, %d, %s' % (v(vT[6]), 32 * t4, v(oK)))
    A('ds_read_b64_tr_b16 %s, %s offset:%d' % (v(vW2 + 2 * t4, 2), v(vT[6] if t4 else oK), L_K))
lo16(vXR, vXR)
A('s_waitcnt lgkmcnt(0)')
for b in range(4): mfma(vACC, vA4, vW1 + 4 * b, b == 0)
A('v_mov_b32 %s, %s' % (v(vG), v(vACC)))
movdpp(vG + 1, vACC, 'row_ror:8')
set_exec(0xff)
st_grp(vG, vT[4], sE)
set_exec(FULL)
stamp(10)
mpoll(l4, g4, chk_tags, first_in_flight=(GP != 2))
if DG == 3: A('s_memrealtime s[66:67]')
stamp(11)
A('v_pk_add_f32 %s, %s, %s' % (v(vP0, 2), v(vP0, 2), v(vP0 + 4, 2)))
A('v_pk_add_f32 %s, %s, %s' % (v(vP1, 2), v(vP1, 2), v(vP1 + 4, 2)))
A('v_pk_add_f32 %s, %s, %s' % (v(vP0, 2), v(vP0, 2), v(vP1, 2)))
red8(vP0)
resid1(vP0, vXR)
A('ds_write_b16 %s, %s offset:%d' % (v(vT[3]), v(vP0), L_ACC))
bar()
for b in range(4): A('ds_read_b128 %s, %s offset:%d' % (v(vFB + 4 * b, 4), v(vT[2]), L_ACC + 64 * b))
A('s_bitcmp1_b32 %s, 0' % sW)
A('s_cbranch_scc1 L_ST_UP')
for b in range(4):
    A('s_waitcnt lgkmcnt(%d)' % (3 - b))
    mfma(vACC, vFB + 4 * b, vW1 + 4 * b, b == 0)
    mfma(vY, vFB + 4 * b, vFB + 4 * b, b == 0)
A('s_branch L_ST_GO')
A('L_ST_UP:')
a.hist = []
for b in range(4):
    A('s_waitcnt lgkmcnt(%d)' % (3 - b))
    mfma(vACC, vFB + 4 * b, vW1 + 4 * b, b == 0)
    mfma(vY, vFB + 4 * b, vA4, b == 0)
A('L_ST_GO:')
movdpp(vG + 1, vACC, 'row_ror:8')
A('v_cndmask_b32 %s, %s, %s, s[10:11]' % (v(vG), v(vACC + 1), v(vY)))
set_exec(0x1ff)
st_grp(vG, oFR, sDST)
set_exec(FULL)
stamp(12)
mpoll([ldws(vP0, oX, sJ), ldws(vP0 + 4, oWQ, sJ, 2048), ldws(vCS, oX, sJ, 1024)], [vP0, vP0 + 4, vCS], chk_tags)
stamp(13)
PR = ((vP0 + 4, vP0 + 5), (vP0, vP0 + 2), (vP0 + 1, vP0 + 3), (vCS, vCS + 2), (vCS + 1, vCS + 3))
for r, d in PR: dpp(r, r, 'quad_perm:[2,3,0,1]')
for r, d in PR: A('v_add_f32_dpp %s, %s, %s row_shr:4 row_mask:0xf bank_mask:0xa' % (v(d), v(r), v(r)))
for r, d in PR: A('v_add_f32_dpp %s, %s, %s row_shl:4 row_mask:0xf bank_mask:0x5' % (v(d), v(r), v(r)))
movdpp(vP0 + 4, vP0 + 5, 'row_ror:8')
A('v_cndmask_b32 %s, %s, %s, %s' % (v(vP0 + 6), v(vP0 + 4), v(vP0 + 5), sMSK))
A('v_cndmask_b32 %s, %s, %s, %s' % (v(vP0 + 7), v(vP0 + 5), v(vP0 + 4), sMSK))
ln_stats(vP0 + 6, vP0 + 7, vT[5], vT[6], vT[7])
for i in range(2): A('v_fma_f32 %s, -%s, %s, %s' % (v(vP0 + i), v(vT[5]), v(vCS + 2 + i), v(vP0 + 2 + i)))
for i in range(2): A('v_mul_f32 %s, %s, %s' % (v(vP0 + i), v(vP0 + i), v(vT[6])))
cvt(vT[7], vP0, vP0 + 1)
lo16(vP0, vT[7]); hi16(vP0 + 1, vT[7])
A('v_max_f32 %s, 0, %s' % (v(vP0 + 2), v(vP0)))
A('v_max_f32 %s, 0, %s' % (v(vP0 + 3), v(vP0 + 1)))
A('v_cndmask_b32 %s, %s, %s, %s' % (v(vP0), v(vP0 + 2), v(vP0), sMSK))
A('v_cndmask_b32 %s, %s, %s, %s' % (v(vP0 + 1), v(vP0 + 3), v(vP0 + 1), sMSK))
dpp(vP0, vP0, 'row_ror:8', 'mul'); dpp(vP0 + 1, vP0 + 1, 'row_ror:8', 'mul')
cvt(vT[7], vP0, vP0 + 1)
movdpp(vX4, vT[7], 'quad_perm:[0,0,2,2]'); movdpp(vX4 + 1, vT[7], 'quad_perm:[1,1,3,3]')
for t4 in range(4):
    A('v_mfma_f32_16x16x16_bf16 %s, %s, %s, 0' % (v(vFA + 4 * t4, 4), v(vX4, 2), v(vW2 + 2 * t4, 2)))
A('v_cndmask_b32 %s, %s, %s, s[98:99]' % (v(vG), v(vFA), v(vFA + 4)))
A('s_mov_b32 exec_lo, 0')
A('v_mov_b32 %s, %s' % (v(vG), v(vFA + 8)))
A('s_mov_b32 exec_hi, %s' % sHI)
A('v_mov_b32 %s, %s' % (v(vG), v(vFA + 12)))
set_exec(FULL)
movdpp(vG + 1, vG, 'row_ror:8')
set_exec(0x00ff00ff00ff00ff)
stws(vG, oV, sB)
set_exec(FULL)
if DG:
    A('s_waitcnt lgkmcnt(0)')
    A('s_sub_u32 s68, s66, s64')
    A('s_lshl_b32 s68, s68, 3')
    A('s_min_u32 s68, s68, 20000')
    A('s_memrealtime s[70:71]')
    A('s_waitcnt lgkmcnt(0)')
    A('L_DG2:')
    A('s_memrealtime s[72:73]')
    A('s_waitcnt lgkmcnt(0)')
    A('s_sub_u32 s69, s72, s70')
    A('s_cmp_lt_u32 s69, s68')
    A('s_cbranch_scc1 L_DG2')
stamp(14)
fin()
A('L_RED:')
a.hist = []
if OPT('rbar', 1): A('s_barrier')
A('s_load_dwordx2 s[20:21], s[0:1], 72')
A('s_mov_b64 s[22:23], s[%d:%d]' % (SRD_X + 2, SRD_X + 3))
A('v_lshrrev_b32 %s, 3, v0' % v(vT[4]))
A('v_and_b32 %s, 31, %s' % (v(vT[0]), v(vT[4])))
A('v_mul_u32_u24 %s, %d, %s' % (v(vT[0]), LS3, v(vT[0])))
A('v_add_u32 %s, %s, %s' % (v(vT[0]), v(vT[0]), v(oW2)))
A('v_mul_u32_u24 %s, %d, %s' % (v(vT[4]), LS5, v(vT[4])))
A('v_add_u32 %s, %s, %s' % (v(vT[4]), v(vT[4]), v(oW2)))
A('s_lshl_b32 %s, %s, 5' % (sA, sG))
A('s_add_u32 %s, %s, %s' % (sA, sIDX, sA if NC > 1 else '0'))
A('s_mul_i32 %s, %s, %d' % (sA, sA, 32 * LS3))
A('s_add_u32 %s, %s, 0x%x' % (sA, sA, WS_E3))
A('v_lshlrev_b32 %s, 1, %s' % (v(vT[1]), v(vL15)))
A('s_lshl_b32 %s, %s, 5' % (sD, sIDX))
A('buffer_load_ushort %s, %s, %s, %s offen' % (v(vX4), v(vT[1]), srd(SRD_X), sD))
A('v_lshl_or_b32 %s, %s, 3, %s' % (v(vT[2]), v(vPI), v(vCC)))
A('v_lshl_or_b32 %s, %s, 3, %s' % (v(vT[2]), v(vT[2]), v(vWv)))
A('v_lshlrev_b32 %s, 2, %s' % (v(vT[2]), v(vT[2])))
A('v_lshlrev_b32 %s, 5, %s' % (v(vT[3]), v(vL15)))
A('v_lshl_or_b32 %s, %s, 3, %s' % (v(vT[3]), v(vROW), v(vT[3])))
A('s_mul_i32 %s, %s, %d' % (sB, sIDX, 128 * LS5))
A('s_add_u32 %s, %s, 0x%x' % (sB, sB, WS_E5))
A('s_cmp_lt_u32 %s, 6' % sW)
A('s_cselect_b32 %s, %d, 0' % (sC, 64 * LS5))
A('s_cselect_b32 %s, 1.0, 0' % sE)
A('s_add_u32 %s, %s, %s' % (sC, sC, sB))
mpoll([ldws(vP0, vT[0], sA)], [vP0], chk_tags)
red8(vP0)
A('ds_write_b32 %s, %s offset:%d' % (v(vT[2]), v(vP0), L_R1))
lo16(vX4, vX4)
bar()
A('ds_read_b64 %s, %s offset:%d' % (v(vP1, 2), v(vT[3]), L_R1))
A('s_waitcnt lgkmcnt(0)')
A('v_add_f32 %s, %s, %s' % (v(vP1), v(vP1), v(vP1 + 1)))
allred_rows(vP1, vP1 + 1, 'add', (16,))
resid1(vP1, vX4)
lo16(vX4, vP1)
stamp(12)
mpoll([ldws(vP0, vT[4], sB), ldws(vP0 + 4, vT[4], sC)], [vP0, vP0 + 4], chk_tags)
stamp(13)
A('s_cmp_lt_u32 %s, 6' % sW)
A('s_cbranch_scc0 L_R_ONE')
A('v_pk_add_f32 %s, %s, %s' % (v(vP0, 2), v(vP0, 2), v(vP0 + 4, 2)))
A('L_R_ONE:')
red8(vP0)
A('ds_write_b32 %s, %s offset:%d' % (v(vT[2]), v(vP0), L_R2))
bar()
A('s_cmp_lg_u32 %s, 0' % sW)
A('s_cbranch_scc1 L_FIN')
A('ds_read_b64 %s, %s offset:%d' % (v(vP0, 2), v(vT[3]), L_R2))
A('s_waitcnt lgkmcnt(0)')
A('v_add_f32 %s, %s, %s' % (v(vP0), v(vP0), v(vP0 + 1)))
allred_rows(vP0, vP0 + 1, 'add')
resid1(vP0, vX4)
set_exec(0xffff)
A('buffer_store_short %s, %s, %s, %s offen' % (v(vP0), v(vT[1]), SRD_OUT, sD))
A('s_cmp_lg_u32 %s, 0' % sIDX)
A('s_cbranch_scc1 L_NOEP')
set_exec(1)
A('buffer_store_dword %s, %s, %s, 0 offen offset:%d' % (v(vG + 2), v(vT[1]), SRD_WS, WS_EPOCH))
if DIAG >= 0:
    A('L_NOEP:')
    A('s_cmp_lg_u32 %s, %d' % (sIDX, 4 * OPT('dx', 0)))
    A('s_cbranch_scc1 L_NOEP2')
    stamp(14)
    A('s_waitcnt lgkmcnt(0)')
    A('s_sub_u32 s68, s66, s64')
    A('s_lshl_b32 s68, s68, 3')
    A('s_min_u32 s68, s68, 20000')
    A('s_memrealtime s[70:71]')
    A('s_waitcnt lgkmcnt(0)')
    A('L_DG:')
    A('s_memrealtime s[72:73]')
    A('s_waitcnt lgkmcnt(0)')
    A('s_sub_u32 s69, s72, s70')
    A('s_cmp_lt_u32 s69, s68')
    A('s_cbranch_scc1 L_DG')
A('L_NOEP:' if DIAG < 0 else 'L_NOEP2:')
set_exec(FULL)
if DIAG < 0: stamp(14)
A('L_FIN:')
if STAMPS:
    A('s_waitcnt lgkmcnt(0)')
    A('v_mov_b32 %s, 0' % v(vT[8]))
    for i in range(16): A('v_writelane_b32 %s, s%d, %d' % (v(vT[8]), 64 + 2 * i, i))
    A('s_lshl_b32 %s, s2, 9' % sB)
    A('s_lshl_b32 %s, %s, 6' % (sC, sW))
    A('s_add_u32 %s, %s, %s' % (sB, sB, sC))
    A('s_add_u32 %s, %s, 0x%x' % (sB, sB, WS_ST))
    A('v_lshlrev_b32 %s, 2, %s' % (v(vT[9]), v(vL)))
    set_exec(0xffff)
    A('buffer_store_dword %s, %s, %s, %s offen' % (v(vT[8]), v(vT[9]), SRD_WS, sB))
A('s_endpgm')
A('L_E1_RETRY:')
a.hist = []
A('s_mov_b32 %s, 0x%x' % (sC, (-E1_FS if NOFAST else E1_FS) & 0xffffffff))
def flip():
    A('s_add_u32 %s, %s, %s' % (sA, sA, sC))
    A('s_add_u32 %s, %s, %s' % (sB, sB, sC))
    A('s_sub_u32 %s, 0, %s' % (sC, sC))
mpoll(e1l, [vP0, vP0 + 4], chk_tags, each=flip)
A('s_branch L_E1_OK')
a.raw('.p2align 12, 0')
nv = (NVGPR + 7) // 8 * 8
a.raw('''.section .rodata,"a"
.p2align 6
.amdhsa_kernel %s_kernel
  .amdhsa_next_free_vgpr %d
  .amdhsa_next_free_sgpr 102
  .amdhsa_accum_offset %d
  .amdhsa_group_segment_fixed_size 0
  .amdhsa_kernarg_size 96
  .amdhsa_user_sgpr_count 2
  .amdhsa_user_sgpr_kernarg_segment_ptr 1
  .amdhsa_system_sgpr_workgroup_id_x 1
  .amdhsa_float_denorm_mode_32 3
.end_amdhsa_kernel''' % (NAME, nv, nv))
open(OUT, 'w').write(a.text())
print('wrote', OUT, 'vgprs', NVGPR)
```
